```python
import torch

def _softmax(x, axis=-1):
    return torch.softmax(x, dim=axis)
def _gelu(x):
    return torch.nn.functional.gelu(x, approximate="tanh")
def _silu(x):
    return torch.nn.functional.silu(x)
def _sigmoid(x):
    return torch.sigmoid(x)
def _layernorm(x, axis=-1, eps=1e-5):
    m = x.mean(dim=axis, keepdim=True)
    v = x.var(dim=axis, keepdim=True, unbiased=False)
    return (x - m) / torch.sqrt(v + eps)
def _scatter_add(tgt, idx, src, axis=0):
    return tgt.clone().index_add_(axis, idx, src)
def _segment_sum(src, seg, n):
    out = torch.zeros((n,) + src.shape[1:], dtype=src.dtype)
    return out.index_add_(0, seg, src)
def _pad(x, pw):
    flat = tuple(v for pair in reversed(pw) for v in pair)
    return torch.nn.functional.pad(x, flat)

kernel_name = 'sequential_preLN__gqa_block_cached__swiglu_ffn__decode'

def setup_inputs():

    _w = (lambda a: (lambda t: t.to(torch.bfloat16) if t.is_floating_point() else t)(torch.as_tensor(a)))
    def _A_setup():
        B, Sq, D = 2, 1, 512
        Hq, Hkv, Sk, Dh = 32, 8, 16384, 128
        assert Hq % Hkv == 0, (Hq, Hkv)
        return {
            "x": _w((lambda *s: torch.randn(*s, dtype=torch.bfloat16) * 0.05)(B, Sq, D)),
            "k_cache": _w((lambda *s: torch.randn(*s, dtype=torch.bfloat16) * 3.2)(B, Hkv, Sk, Dh)),
            "v_cache": _w((lambda *s: torch.randn(*s, dtype=torch.bfloat16) * 0.4)(B, Hkv, Sk, Dh)),
            "wq": _w((lambda *s: torch.randn(*s, dtype=torch.bfloat16) * 3.2)(D, Hq * Dh) * (D ** -0.5)),
            "wo": _w((lambda *s: torch.randn(*s, dtype=torch.bfloat16) * 0.4)(Hq * Dh, D) * ((Hq * Dh) ** -0.5)),
        }
    _A_in = _A_setup()

    def _B_setup():
        B, S, D, F = 2, 1, 512, 1792
        return {
            "x": _w((lambda *s: torch.randn(*s, dtype=torch.bfloat16) * 0.05)(B, S, D)),
            "w_gate": _w((lambda *s: torch.randn(*s, dtype=torch.bfloat16) * 0.05)(D, F)),
            "w_up": _w((lambda *s: torch.randn(*s, dtype=torch.bfloat16) * 0.05)(D, F)),
            "w_down": _w((lambda *s: torch.randn(*s, dtype=torch.bfloat16) * 0.05)(F, D)),
        }
    _B_in = _B_setup()

    return {
        "A_x": _A_in["x"],
        "A_k_cache": _A_in["k_cache"],
        "A_v_cache": _A_in["v_cache"],
        "A_wq": _A_in["wq"],
        "A_wo": _A_in["wo"],
        "B_x": _B_in["x"],
        "B_w_gate": _B_in["w_gate"],
        "B_w_up": _B_in["w_up"],
        "B_w_down": _B_in["w_down"],
    }

def reference(A_x, A_k_cache, A_v_cache, A_wq, A_wo, B_x, B_w_gate, B_w_up, B_w_down):
    def _A_ref(x, k_cache, v_cache, wq, wo):
        B, Sq, D = x.shape
        Hq, Dh = 32, 128
        Hkv = k_cache.shape[1]
        rep = Hq // Hkv
        q = (lambda x, *d: x.permute(*d))((x @ wq).reshape(B, Sq, Hq, Dh), 0, 2, 1, 3)
        k = (lambda x, n, axis: torch.repeat_interleave(x, n, dim=axis))(k_cache, rep, axis=1)
        v = (lambda x, n, axis: torch.repeat_interleave(x, n, dim=axis))(v_cache, rep, axis=1)
        scores = torch.einsum("bhqd,bhkd->bhqk", q, k) * (Dh ** -0.5)
        p = _softmax(scores, axis=-1)
        o = torch.einsum("bhqk,bhkd->bhqd", p, v)
        return (lambda x, *d: x.permute(*d))(o, 0, 2, 1, 3).reshape(B, Sq, Hq * Dh) @ wo

    def _B_ref(x, w_gate, w_up, w_down):
        g = _silu(x @ w_gate)
        u = x @ w_up
        return (g * u) @ w_down

    x = A_x
    h = x + _A_ref(_layernorm(x, axis=-1), A_k_cache, A_v_cache, A_wq, A_wo)
    h2 = h + _B_ref(_layernorm(h, axis=-1), B_w_gate, B_w_up, B_w_down)
    return h2
```

```python
import re

TRANS = ("v_exp_f32", "v_log_f32", "v_rcp_f32", "v_rsq_f32", "v_sqrt_f32", "v_sin_f32", "v_cos_f32", "v_rcp_iflag_f32")

def regs_of(op):
    op = op.strip()
    neg = op.lstrip("-")
    if neg.startswith("abs(") and neg.endswith(")"): neg = neg[4:-1]
    if neg.startswith("|") and neg.endswith("|"): neg = neg[1:-1]
    m = re.fullmatch(r"([vas])(\d+)", neg)
    if m: return [(m.group(1), int(m.group(2)))]
    m = re.fullmatch(r"([vas])\[(\d+):(\d+)\]", neg)
    if m: return [(m.group(1), i) for i in range(int(m.group(2)), int(m.group(3)) + 1)]
    if neg == "vcc": return [("s", "vcc")]
    if neg in ("vcc_lo", "vcc_hi"): return [("s", "vcc")]
    if neg in ("exec", "exec_lo", "exec_hi"): return [("s", "exec")]
    if neg == "m0": return [("s", "m0")]
    return []

class Ins:
    def __init__(self, text):
        self.text = text
        t = text.split(";")[0].strip()
        self.label = None; self.mn = None; self.ops = []; self.mods = ""
        if t.endswith(":"):
            self.label = t[:-1]; self.kind = "label"; self.dst = []; self.src = []; return
        if t.startswith(".") or t == "":
            self.kind = "dir"; self.dst = []; self.src = []; return
        sp = t.split(None, 1)
        self.mn = sp[0]
        rest = sp[1] if len(sp) > 1 else ""
        ops = []; cur = ""; depth = 0
        for ch in rest:
            if ch in "[(": depth += 1
            if ch in "])": depth -= 1
            if ch == "," and depth == 0: ops.append(cur.strip()); cur = ""
            else: cur += ch
        if cur.strip(): ops.append(cur.strip())
        if ops:
            last = ops[-1]
            depth = 0; cut = None
            for i, ch in enumerate(last):
                if ch in "[(": depth += 1
                if ch in "])": depth -= 1
                if ch == " " and depth == 0: cut = i; break
            if cut is not None:
                self.mods = last[cut:].strip(); ops[-1] = last[:cut]
        self.ops = ops
        self.classify()

    def classify(self):
        mn = self.mn; ops = self.ops; R = regs_of
        self.dst = []; self.src = []; self.dpp = False; self.trans = False
        base = re.sub(r"_(e32|e64|dpp|sdwa)$", "", mn)
        self.base = base
        if mn.startswith("v_mfma"):
            self.kind = "mfma"; self.dst = R(ops[0]); self.a = R(ops[1]); self.b = R(ops[2]); self.c = R(ops[3])
            self.src = self.a + self.b + self.c
            self.passes = 8 if "32x32" in mn else 4
            return
        if mn.startswith("v_"):
            self.kind = "valu"
            self.dpp = mn.endswith("_dpp") or "quad_perm" in self.mods or "row_" in self.mods
            self.trans = base in TRANS
            if base.startswith("v_cmp"):
                self.dst = R(ops[0]); self.src = sum((R(o) for o in ops[1:]), [])
                if base.startswith("v_cmpx"): self.dst += [("s", "exec")]
            elif base in ("v_readfirstlane_b32", "v_readlane_b32"):
                self.dst = R(ops[0]); self.src = sum((R(o) for o in ops[1:]), [])
            elif base == "v_writelane_b32":
                self.dst = R(ops[0]); self.src = sum((R(o) for o in ops), [])
            elif base.startswith("v_permlane") and "swap" in base:
                self.dst = R(ops[0]) + R(ops[1]); self.src = R(ops[0]) + R(ops[1])
            elif base in ("v_add_co_u32", "v_sub_co_u32", "v_subrev_co_u32"):
                self.dst = R(ops[0]) + R(ops[1]); self.src = sum((R(o) for o in ops[2:]), [])
            elif base in ("v_addc_co_u32", "v_subb_co_u32"):
                self.dst = R(ops[0]) + R(ops[1]); self.src = sum((R(o) for o in ops[2:]), [])
            elif base in ("v_fmac_f32", "v_dot2c_f32_bf16", "v_pk_fmac_f16"):
                self.dst = R(ops[0]); self.src = sum((R(o) for o in ops), [])
            elif base == "v_cndmask_b32":
                self.dst = R(ops[0]); self.src = sum((R(o) for o in ops[1:]), [])
                if len(ops) == 3: self.src += [("s", "vcc")]
            else:
                self.dst = R(ops[0]); self.src = sum((R(o) for o in ops[1:]), [])
            if self.dpp:
                self.dppsrc = R(ops[1])
            self.src_exec = True
            return
        if mn.startswith("buffer_") or mn.startswith("global_"):
            self.kind = "vmem"
            self.lds = (" lds" in " " + self.mods) or mn.startswith("global_load_lds")
            isload = "load" in mn
            isatomic = "atomic" in mn
            self.isload = isload; self.isstore = "store" in mn
            if mn in ("buffer_wbl2", "buffer_inv"):
                return
            if mn.startswith("buffer_"):
                if isload and not self.lds:
                    self.dst = R(ops[0]); self.src = sum((R(o) for o in ops[1:]), [])
                elif isload and self.lds:
                    self.src = sum((R(o) for o in ops), []) + [("s", "m0")]
                else:
                    self.src = sum((R(o) for o in ops), []); self.data = R(ops[0])
                    if isatomic and "sc0" in self.mods: self.dst = R(ops[0])
            else:
                if isload and not self.lds:
                    self.dst = R(ops[0]); self.src = sum((R(o) for o in ops[1:]), [])
                else:
                    self.src = sum((R(o) for o in ops), []); self.data = R(ops[1]) if len(ops) > 1 else []
            return
        if mn.startswith("ds_"):
            self.kind = "ds"
            if mn.startswith("ds_read") or mn.startswith("ds_bpermute") or mn.startswith("ds_swizzle") or mn.startswith("ds_permute"):
                self.dst = R(ops[0]); self.src = sum((R(o) for o in ops[1:]), []); self.isload = True
            else:
                self.src = sum((R(o) for o in ops), []); self.isload = False
            return
        if mn.startswith("s_load") or mn.startswith("s_memrealtime") or mn.startswith("s_memtime") or mn.startswith("s_atomic") or mn.startswith("s_buffer_load"):
            self.kind = "smem"; self.dst = R(ops[0]); self.src = sum((R(o) for o in ops[1:]), [])
            return
        if mn == "s_waitcnt": self.kind = "wait"; return
        if mn == "s_nop": self.kind = "nop"; self.n = int(ops[0], 0) + 1; return
        if mn == "s_barrier": self.kind = "barrier"; return
        if mn.startswith("s_cbranch") or mn == "s_branch":
            self.kind = "branch"; self.target = ops[0]
            if "vcc" in mn: self.src = [("s", "vcc")]
            if "exec" in mn: self.src = [("s", "exec")]
            return
        if mn in ("s_endpgm", "s_setprio", "s_sleep", "s_setpc_b64", "s_swappc_b64", "s_call_b64"):
            self.kind = "misc"
            if mn == "s_setpc_b64": self.src = R(ops[0])
            if mn in ("s_swappc_b64", "s_call_b64"): self.dst = R(ops[0])
            return
        if mn.startswith("s_"):
            self.kind = "salu"
            if mn.startswith("s_cmp") or mn.startswith("s_bitcmp"):
                self.src = sum((R(o) for o in ops), [])
            else:
                self.dst = R(ops[0]); self.src = sum((R(o) for o in ops[1:]), [])
                if "saveexec" in mn: self.dst += [("s", "exec")]; self.src += [("s", "exec")]
            return
        raise ValueError("unknown instruction: " + self.text)

    def states(self):
        if self.kind in ("label", "dir"): return 0
        if self.kind == "nop": return self.n
        return 1

def vset(l): return set(x for x in l if x[0] in "va")
def sset(l): return set(x for x in l if x[0] == "s")

def required(p, c):
    need = 0
    if p.kind == "valu":
        pv = vset(p.dst); ps = sset(p.dst)
        if pv:
            if c.kind == "valu" and c.dpp and pv & vset(c.src): need = max(need, 2)
            if c.kind == "valu" and c.dpp and pv & vset(c.dst): need = max(need, 2)
            if c.kind == "mfma" and pv & vset(c.src): need = max(need, 2)
            if c.kind == "valu" and c.base in ("v_readlane_b32", "v_readfirstlane_b32") and pv & vset(c.src): need = max(need, 1)
            if c.kind == "valu" and c.base.startswith("v_permlane") and pv & vset(c.src): need = max(need, 2)
            if p.trans and c.kind == "valu" and pv & vset(c.src): need = max(need, 1)
            if p.trans and c.kind in ("vmem", "ds") and pv & vset(c.src): need = max(need, 1)
            if ("op_sel" in p.mods and not p.base.startswith("v_pk")) and c.kind == "valu" and pv & vset(c.src): need = max(need, 1)
        if ps:
            if c.kind == "valu" and ps & sset(c.src):
                need = max(need, 4 if c.base in ("v_readlane_b32", "v_writelane_b32") else 2)
            if c.kind == "vmem" and ps & sset(c.src): need = max(need, 5)
            if c.kind == "mfma" and ("s", "exec") in ps: need = max(need, 4)
            if c.kind in ("salu", "branch", "smem") and ps & sset(c.src): need = max(need, 1)
    if p.kind == "mfma":
        pd = vset(p.dst)
        big = p.passes == 8
        if c.kind == "mfma":
            if pd & (vset(c.a) | vset(c.b)): need = max(need, 12 if big else 8)
            if pd & vset(c.c):
                if not (p.dst == c.c and p.passes == c.passes): need = max(need, 10 if big else 6)
            if pd & vset(c.dst) and not (pd & vset(c.c)): need = max(need, 12 if big else 8)
        elif c.kind in ("valu", "vmem", "ds"):
            if pd & (vset(c.src) | vset(c.dst)): need = max(need, 12 if big else 8)
        if c.kind == "valu" and vset(p.c) & vset(c.dst): need = max(need, 7 if big else 3)
    if p.kind == "salu":
        if ("s", "m0") in p.dst and ((c.kind == "vmem" and getattr(c, "lds", False)) or (c.kind == "valu" and ("s", "m0") in c.src)): need = max(need, 1)
    if p.kind == "vmem" and getattr(p, "isstore", False) and ("x4" in p.mn or "x3" in p.mn):
        d = vset(getattr(p, "data", []))
        if c.kind == "valu" and d & vset(c.dst): need = max(need, 2)
        elif c.kind in ("vmem", "ds", "mfma") and d & vset(c.dst): need = max(need, 1)
    return need

class Asm:
    def __init__(self):
        self.L = []
    def __call__(self, text):
        for t in text.split("\n"):
            t = t.strip()
            if t: self.L.append(Ins(t))
    def label(self, name): self.L.append(Ins(name + ":"))
    def raw(self, text):
        i = Ins(""); i.text = text; self.L.append(i)

    def fix_hazards(self, window=24):
        total = 0
        while True:
            inserted = 0
            i = 0
            brmap = None
            while i < len(self.L):
                L = self.L
                c = L[i]
                if c.kind in ("label", "dir", "nop", "wait", "barrier"):
                    i += 1; continue
                if brmap is None:
                    brmap = {}
                    for k, y in enumerate(L):
                        if y.kind == "branch": brmap.setdefault(y.target, []).append(k)
                        if y.kind == "misc" and y.mn == "s_call_b64": brmap.setdefault(y.ops[1], []).append(k)
                acc = []
                seen = set()
                stack = [(i, 0)]
                while stack:
                    pos, dist = stack.pop()
                    j = pos - 1
                    while j >= 0 and dist < window:
                        x = L[j]
                        if x.kind == "label":
                            for k in brmap.get(x.label, []):
                                if (k, dist) not in seen:
                                    seen.add((k, dist)); stack.append((k, dist + 1))
                            j -= 1; continue
                        if x.kind == "dir": j -= 1; continue
                        if j != pos - 1 or True:
                            if x.kind == "branch" and x.mn == "s_branch": break
                            if x.kind == "misc" and x.mn in ("s_endpgm", "s_setpc_b64"): break
                        acc.append((x, dist))
                        dist += x.states()
                        j -= 1
                worst = 0
                for p, d in acc:
                    if p.kind in ("label", "dir", "nop", "wait", "barrier", "branch"): continue
                    n = required(p, c)
                    if n > d: worst = max(worst, n - d)
                if worst > 0:
                    ins = []
                    w = worst
                    while w > 0:
                        k = min(w, 16); ins.append(Ins("s_nop %d" % (k - 1))); w -= k
                    self.L[i:i] = ins
                    total += worst; inserted += 1
                    brmap = None
                    i += len(ins)
                i += 1
            if inserted == 0: break
        return total

    def text(self):
        out = []
        for x in self.L:
            if x.kind == "label": out.append(x.text)
            else: out.append("    " + x.text)
        return "\n".join(out) + "\n"
```

```python
from gen import *

def poll_loop(g, name, issue, check, spin):
    a = g.a
    lp = g.lab(name); ok = g.lab(name + "ok")
    a("s_mov_b32 s%d, 0" % sCnt)
    a.label(lp)
    issue()
    a("s_waitcnt vmcnt(0)")
    check()
    a("s_cbranch_scc1 %s" % ok)
    a("s_add_u32 s%d, s%d, 1" % (sCnt, sCnt)); a("s_cmp_lt_u32 s%d, %d" % (sCnt, spin)); a("s_cbranch_scc1 %s" % lp)
    a("s_branch L_fail")
    a.label(ok)

def chk_acc(g, regs, t0, t1, t2):
    a = g.a
    first = True
    for d in regs:
        a("v_perm_b32 v%d, v%d, v%d, s%d" % (t0, d + 1, d, sChkA))
        a("v_perm_b32 v%d, v%d, v%d, s%d" % (t1, d + 3, d + 2, sChkB))
        if first:
            a("v_or_b32 v%d, v%d, v%d" % (t2, t0, t1)); a("v_xor_b32 v%d, v%d, v%d" % (t2, t2, vTagW)); first = False
        else:
            a("v_or_b32 v%d, v%d, v%d" % (t0, t0, t1)); a("v_xor_b32 v%d, v%d, v%d" % (t0, t0, vTagW)); a("v_or_b32 v%d, v%d, v%d" % (t2, t2, t0))
    a("v_cmp_ne_u32 vcc, 0, v%d" % t2)
    a("s_cmp_eq_u64 vcc, 0")

def weights_hook(g):
    a = g.a
    W = vVS[2]
    for i in range(8):
        a("buffer_load_dwordx4 v[%d:%d], v%d, s[%d:%d], s%d offen offset:%d nt" % (W + 4 * i, W + 4 * i + 3, vG + 56, SRD_W1, SRD_W1 + 3, sT2 if i >= 4 else sT3, (i & 3) * 1024))
        g.sq.append(("W", 0, i))

def weights_setup(g):
    a = g.a
    a("s_lshl_b32 s%d, s%d, 19" % (sT0, sX)); a("s_lshl_b32 s%d, s%d, 15" % (sT1, sJ)); a("s_add_u32 s%d, s%d, s%d" % (sT0, sT0, sT1))
    a("s_cmp_lt_u32 s%d, 16" % sJ); a("s_cselect_b32 s%d, s%d, 0" % (sT0, sT0)); a("s_cselect_b32 s%d, 0x8000, 0" % sT1)
    g.make_srd(SRD_W1, sPWO, 0, off_sreg=sT0)
    a("s_mov_b32 s%d, s%d" % (SRD_W1 + 2, sT1))
    a("v_lshrrev_b32 v%d, 4, v%d" % (vTmp, vLane)); a("v_lshlrev_b32 v%d, 13, v%d" % (vG + 56, vTmp))
    a("v_and_b32 v%d, 15, v%d" % (vTmp, vLane)); a("v_lshl_add_u32 v%d, v%d, 4, v%d" % (vG + 56, vTmp, vG + 56))
    a("s_lshl_b32 s%d, s%d, 8" % (sT0, sWave)); a("v_add_u32 v%d, s%d, v%d" % (vG + 56, sT0, vG + 56))
    a("s_mov_b32 s%d, 4096" % sT2); a("s_mov_b32 s%d, 0" % sT3)

def o_role(g):
    a = g.a; o = g.o; spin = o["spin"]
    W = vVS[2]; WF = vVS[0]
    t0, t1, t2 = vTmp, vTmp + 1, vTmp + 2
    l1 = g.lab("w23"); l2 = g.lab("wj")
    a("s_cmp_ge_u32 s%d, 2" % sWave); a("s_cbranch_scc1 %s" % l1)
    a("s_waitcnt vmcnt(2)"); a("s_branch %s" % l2)
    a.label(l1); a("s_waitcnt vmcnt(0)"); a.label(l2)
    for p in range(4):
        for j in range(8):
            a("v_perm_b32 v%d, v%d, v%d, s%d" % (WF + 4 * j + p, W + 4 * (2 * p + 1) + (j >> 1), W + 4 * (2 * p) + (j >> 1), sSelHi if j & 1 else sSelLo))
    a("s_lshl_b32 s%d, s%d, 4" % (sT0, sX)); a("s_add_u32 s%d, s%d, s%d" % (sSave, sT0, sJ))
    a("v_and_b32 v%d, 1, v%d" % (t0, vLane)); a("v_lshlrev_b32 v%d, 10, v%d" % (t0, t0))
    a("s_lshl_b32 s%d, s%d, 3" % (sT0, sSave))
    XR = vT
    a("buffer_load_dwordx2 v[%d:%d], v%d, s[%d:%d], s%d offen" % (XR, XR + 1, t0, SRD_X, SRD_X + 3, sT0))
    skip = g.lab("h1skip")
    a("s_cmp_ge_u32 s%d, 2" % sWave); a("s_cbranch_scc1 %s" % skip)
    D = vO
    AO, AM = vO + 16, vO + 17
    a("v_lshrrev_b32 v%d, 3, v%d" % (t0, vLane))
    a("v_lshlrev_b32 v%d, 11, v%d" % (AO, t0)); a("v_and_b32 v%d, 7, v%d" % (t1, vLane)); a("v_lshl_add_u32 v%d, v%d, 4, v%d" % (AO, t1, AO))
    a("v_lshlrev_b32 v%d, 7, v%d" % (AM, t0))
    a("s_lshl_b32 s%d, s%d, 5" % (sT0, sX)); a("s_lshl_b32 s%d, s%d, 4" % (sT1, sWave)); a("s_add_u32 s%d, s%d, s%d" % (sT0, sT0, sT1))
    a("s_lshl_b32 s%d, s%d, 11" % (sT1, sT0)); a("s_lshl_b32 s%d, s%d, 7" % (sT2, sJ)); a("s_add_u32 s%d, s%d, s%d" % (sT1, sT1, sT2))
    a("s_add_u32 s%d, s%d, %d" % (sT1, sT1, WS_PO))
    a("s_lshl_b32 s%d, s%d, 7" % (sT2, sT0)); a("s_lshr_b32 s%d, s%d, 2" % (sT3, sJ)); a("s_lshl_b32 s%d, s%d, 4" % (sT3, sT3))
    a("s_add_u32 s%d, s%d, s%d" % (sT2, sT2, sT3)); a("s_add_u32 s%d, s%d, %d" % (sT2, sT2, WS_PML))
    a("s_add_u32 s%d, s%d, %d" % (sT0, sT1, 8 * 2048)); a("s_add_u32 s%d, s%d, %d" % (sT3, sT2, 8 * 128))
    def issue():
        a("buffer_load_dwordx4 v[%d:%d], v%d, s[%d:%d], s%d offen sc1" % (D, D + 3, AO, SRD_WS, SRD_WS + 3, sT1))
        a("buffer_load_dwordx4 v[%d:%d], v%d, s[%d:%d], s%d offen sc1" % (D + 4, D + 7, AO, SRD_WS, SRD_WS + 3, sT0))
        a("buffer_load_dwordx4 v[%d:%d], v%d, s[%d:%d], s%d offen sc1" % (D + 8, D + 11, AM, SRD_WS, SRD_WS + 3, sT2))
        a("buffer_load_dwordx4 v[%d:%d], v%d, s[%d:%d], s%d offen sc1" % (D + 12, D + 15, AM, SRD_WS, SRD_WS + 3, sT3))
    poll_loop(g, "h1", issue, lambda: chk_acc(g, [D, D + 4, D + 8, D + 12], t0, t1, t2), spin)
    g.ts()
    Ma, La, Mb, Lb = D + 8, D + 9, D + 12, D + 13
    a("v_and_b32 v%d, 0xffffff00, v%d" % (Ma, Ma)); a("v_and_b32 v%d, 0xffffff00, v%d" % (Mb, Mb))
    MX = D + 10
    a("v_max_f32 v%d, v%d, v%d" % (MX, Ma, Mb))
    a("v_max_f32_dpp v%d, v%d, v%d row_ror:8 row_mask:0xf bank_mask:0xf" % (MX, MX, MX))
    g.allred_x16("v_max_f32", MX, t0); g.allred_x32("v_max_f32", MX, t0)
    a("v_sub_f32 v%d, v%d, v%d" % (Ma, Ma, MX)); a("v_sub_f32 v%d, v%d, v%d" % (Mb, Mb, MX))
    a("v_mul_f32 v%d, s%d, v%d" % (Ma, sLog2e, Ma)); a("v_mul_f32 v%d, s%d, v%d" % (Mb, sLog2e, Mb))
    a("v_exp_f32 v%d, v%d" % (Ma, Ma)); a("v_exp_f32 v%d, v%d" % (Mb, Mb))
    R = vO + 20
    a("v_mul_f32 v%d, v%d, v%d" % (R + 4, Ma, La)); a("v_fmac_f32 v%d, v%d, v%d" % (R + 4, Mb, Lb))
    for e in range(4):
        a("v_mul_f32 v%d, v%d, v%d" % (R + e, Ma, D + e)); a("v_fmac_f32 v%d, v%d, v%d" % (R + e, Mb, D + 4 + e))
    for e in range(5): a("v_add_f32_dpp v%d, v%d, v%d row_ror:8 row_mask:0xf bank_mask:0xf" % (R + e, R + e, R + e))
    T5 = vO + 26
    for e in range(5): a("v_mov_b32 v%d, v%d" % (T5 + e, R + e))
    for e in range(5): a("v_permlane16_swap_b32 v%d, v%d" % (R + e, T5 + e))
    for e in range(5): a("v_add_f32 v%d, v%d, v%d" % (R + e, R + e, T5 + e))
    for e in range(5): a("v_mov_b32 v%d, v%d" % (T5 + e, R + e))
    for e in range(5): a("v_permlane32_swap_b32 v%d, v%d" % (R + e, T5 + e))
    for e in range(5): a("v_add_f32 v%d, v%d, v%d" % (R + e, R + e, T5 + e))
    a("v_rcp_f32 v%d, v%d" % (T5, R + 4))
    a("v_fma_f32 v%d, -v%d, v%d, 1.0" % (T5 + 1, R + 4, T5)); a("v_fma_f32 v%d, v%d, v%d, v%d" % (T5, T5 + 1, T5, T5))
    for e in range(4): a("v_mul_f32 v%d, v%d, v%d" % (R + e, R + e, T5))
    a("v_cvt_pk_bf16_f32 v%d, v%d, v%d" % (R, R, R + 1)); a("v_cvt_pk_bf16_f32 v%d, v%d, v%d" % (R + 1, R + 2, R + 3))
    a("v_and_b32 v%d, 7, v%d" % (t0, vLane)); a("v_lshlrev_b32 v%d, 1, v%d" % (t0, t0))
    a("s_lshl_b32 s%d, s%d, 6" % (sT0, sWave)); a("v_add_u32 v%d, s%d, v%d" % (t0, sT0, t0))
    a("s_mov_b64 exec, 0xff")
    a("ds_write_b16 v%d, v%d offset:%d" % (t0, R, L_OA)); a("ds_write_b16_d16_hi v%d, v%d offset:%d" % (t0, R, L_OA + 16))
    a("ds_write_b16 v%d, v%d offset:%d" % (t0, R + 1, L_OA + 32)); a("ds_write_b16_d16_hi v%d, v%d offset:%d" % (t0, R + 1, L_OA + 48))
    a("s_mov_b64 exec, -1")
    a("s_waitcnt lgkmcnt(0)")
    a.label(skip)
    a("v_bfe_u32 v%d, v%d, 2, 1" % (t0, vLane)); a("v_lshlrev_b32 v%d, 6, v%d" % (t0, t0))
    a("v_lshrrev_b32 v%d, 4, v%d" % (t1, vLane)); a("v_lshl_add_u32 v%d, v%d, 4, v%d" % (t0, t1, t0))
    a("s_barrier")
    AF = vS
    a("ds_read_b128 v[%d:%d], v%d offset:%d" % (AF, AF + 3, t0, L_OA))
    a("v_and_b32 v%d, 15, v%d" % (t0, vLane)); a("v_lshlrev_b32 v%d, 6, v%d" % (t0, t0))
    a("v_bfe_u32 v%d, v%d, 5, 1" % (t1, vLane)); a("v_lshl_add_u32 v%d, v%d, 5, v%d" % (t0, t1, t0))
    a("v_bfe_u32 v%d, v%d, 4, 1" % (t1, vLane)); a("v_lshl_add_u32 v%d, v%d, 4, v%d" % (t0, t1, t0))
    a("s_lshl_b32 s%d, s%d, 10" % (sT0, sWave)); a("v_add_u32 v%d, s%d, v%d" % (t0, sT0, t0))
    a("s_lshl_b32 s%d, s%d, 4" % (sT0, sX)); a("s_add_u32 s%d, s%d, s%d" % (sT0, sT0, sJ)); a("s_lshl_b32 s%d, s%d, 12" % (sT0, sT0))
    a("s_add_u32 s%d, s%d, %d" % (sT0, sT0, WS_YP))
    a("s_mov_b32 s%d, 0" % sMsk); a("s_mov_b32 s%d, -1" % (sMsk + 1))
    a("s_waitcnt lgkmcnt(0)")
    YD = vO
    for j in range(8):
        a("v_mfma_f32_16x16x32_bf16 v[%d:%d], v[%d:%d], v[%d:%d], 0" % (YD + 4 * j, YD + 4 * j + 3, AF, AF + 3, WF + 4 * j, WF + 4 * j + 3))
    G = vS + 4
    for e in range(4): a("v_cndmask_b32 v%d, v%d, v%d, s[%d:%d]" % (G + e, YD + 4 * e, YD + 4 * (4 + e), sMsk, sMsk + 1))
    g.tag4(G + 4, [G, G + 1, G + 2, G + 3])
    g.by_mode(lambda fl: a("buffer_store_dwordx4 v[%d:%d], v%d, s[%d:%d], s%d offen %s" % (G + 4, G + 7, t0, SRD_WS, SRD_WS + 3, sT0, fl)))
    g.ts()
    a("s_cmp_lg_u32 s%d, 0" % sWave); a("s_cbranch_scc1 L_done")
    D = vO
    a("v_lshrrev_b32 v%d, 4, v%d" % (t0, vLane)); a("v_lshlrev_b32 v%d, 12, v%d" % (t0, t0))
    a("v_and_b32 v%d, 15, v%d" % (t1, vLane)); a("v_lshl_add_u32 v%d, v%d, 4, v%d" % (vO + 20, t1, t0))
    a("s_lshl_b32 s%d, s%d, 16" % (sT0, sX)); a("s_lshl_b32 s%d, s%d, 8" % (sT1, sJ)); a("s_add_u32 s%d, s%d, s%d" % (sT0, sT0, sT1))
    a("s_add_u32 s%d, s%d, %d" % (sT0, sT0, WS_YP))
    for u in range(1, 4): a("s_add_u32 s%d, s%d, %d" % (sT0 + u, sT0, u * 4 * 4096))
    def issue2():
        for u in range(4):
            a("buffer_load_dwordx4 v[%d:%d], v%d, s[%d:%d], s%d offen sc1" % (D + 4 * u, D + 4 * u + 3, vO + 20, SRD_WS, SRD_WS + 3, sT0 + u))
    poll_loop(g, "h1c", issue2, lambda: chk_acc(g, [D, D + 4, D + 8, D + 12], t0, t1, t2), spin)
    g.ts()
    for e in (0, 2):
        a("v_pk_add_f32 v[%d:%d], v[%d:%d], v[%d:%d]" % (D + e, D + e + 1, D + e, D + e + 1, D + 4 + e, D + 5 + e))
        a("v_pk_add_f32 v[%d:%d], v[%d:%d], v[%d:%d]" % (D + 8 + e, D + 9 + e, D + 8 + e, D + 9 + e, D + 12 + e, D + 13 + e))
    for e in (0, 2):
        a("v_pk_add_f32 v[%d:%d], v[%d:%d], v[%d:%d]" % (D + e, D + e + 1, D + e, D + e + 1, D + 8 + e, D + 9 + e))
    T4 = D + 4
    for e in range(4): a("v_mov_b32 v%d, v%d" % (T4 + e, D + e))
    for e in range(4): a("v_permlane16_swap_b32 v%d, v%d" % (D + e, T4 + e))
    for e in range(4): a("v_add_f32 v%d, v%d, v%d" % (D + e, D + e, T4 + e))
    for e in range(4): a("v_mov_b32 v%d, v%d" % (T4 + e, D + e))
    for e in range(4): a("v_permlane32_swap_b32 v%d, v%d" % (D + e, T4 + e))
    for e in range(4): a("v_add_f32 v%d, v%d, v%d" % (D + e, D + e, T4 + e))
    g.tag4(D + 8, [D, D + 1, D + 2, D + 3])
    a("v_lshlrev_b32 v%d, 4, v%d" % (t0, vLane))
    a("s_lshl_b32 s%d, s%d, 12" % (sT0, sX)); a("s_lshl_b32 s%d, s%d, 8" % (sT1, sJ)); a("s_add_u32 s%d, s%d, s%d" % (sT0, sT0, sT1))
    a("s_add_u32 s%d, s%d, %d" % (sT0, sT0, WS_Y))
    a("s_mov_b64 exec, 0xffff")
    a("buffer_store_dwordx4 v[%d:%d], v%d, s[%d:%d], s%d offen sc1" % (D + 8, D + 11, t0, SRD_WS, SRD_WS + 3, sT0))
    a("s_mov_b64 exec, -1")
    g.ts()
    a("v_bfe_u32 v%d, v%d, 1, 3" % (t0, vLane)); a("v_lshlrev_b32 v%d, 12, v%d" % (t0, t0))
    a("v_and_b32 v%d, 1, v%d" % (t1, vLane)); a("v_lshl_add_u32 v%d, v%d, 4, v%d" % (vO + 20, t1, t0))
    a("s_lshl_b32 s%d, s%d, 5" % (sT0, sSave)); a("s_add_u32 s%d, s%d, %d" % (sT0, sT0, WS_Y))
    def issue3():
        a("buffer_load_dwordx4 v[%d:%d], v%d, s[%d:%d], s%d offen sc1" % (D, D + 3, vO + 20, SRD_WS, SRD_WS + 3, sT0))
    poll_loop(g, "hy", issue3, lambda: chk_acc(g, [D], t0, t1, t2), spin)
    for sh in (8, 4, 2):
        for e in range(4): a("v_add_f32_dpp v%d, v%d, v%d row_ror:%d row_mask:0xf bank_mask:0xf" % (D + e, D + e, D + e, sh))
    H = vO + 8
    a("v_cvt_pk_bf16_f32 v%d, v%d, v%d" % (D + 4, D, D + 1)); a("v_cvt_pk_bf16_f32 v%d, v%d, v%d" % (D + 5, D + 2, D + 3))
    for p in range(2):
        a("v_lshlrev_b32 v%d, 16, v%d" % (D + 2 * p, D + 4 + p)); a("v_and_b32 v%d, 0xffff0000, v%d" % (D + 2 * p + 1, D + 4 + p))
        a("v_lshlrev_b32 v%d, 16, v%d" % (H + 2 * p, XR + p)); a("v_and_b32 v%d, 0xffff0000, v%d" % (H + 2 * p + 1, XR + p))
    for e in range(4): a("v_add_f32 v%d, v%d, v%d" % (H + e, H + e, D + e))
    a("v_cvt_pk_bf16_f32 v%d, v%d, v%d" % (D + 4, H, H + 1)); a("v_cvt_pk_bf16_f32 v%d, v%d, v%d" % (D + 5, H + 2, H + 3))
    for p in range(2):
        a("v_lshlrev_b32 v%d, 16, v%d" % (H + 2 * p, D + 4 + p)); a("v_and_b32 v%d, 0xffff0000, v%d" % (H + 2 * p + 1, D + 4 + p))
    D = vO + 12
    a("v_lshrrev_b32 v%d, 1, v%d" % (t0, vLane)); a("v_lshlrev_b32 v%d, 12, v%d" % (t0, t0))
    a("v_and_b32 v%d, 1, v%d" % (t1, vLane)); a("v_lshl_add_u32 v%d, v%d, 4, v%d" % (vO + 30, t1, t0))
    a("s_lshl_b32 s%d, s%d, 5" % (sT0, sSave)); a("s_add_u32 s%d, s%d, %d" % (sT0, sT0, WS_OP))
    for u in range(1, 4): a("s_add_u32 s%d, s%d, %d" % (sT0 + u, sT0, u * 32 * 4096))
    a("v_add_u32 v%d, %d, v%d" % (vO + 31, 96 * 4096, vO + 30)); a("v_subrev_u32 v%d, %d, v%d" % (vO + 29, 16 * 4096, vO + 30))
    a("v_cndmask_b32 v%d, v%d, v%d, s[%d:%d]" % (vO + 31, vO + 31, vO + 29, sMsk, sMsk + 1))
    def issue4():
        for u in range(4):
            a("buffer_load_dwordx4 v[%d:%d], v%d, s[%d:%d], s%d offen sc1" % (D + 4 * u, D + 4 * u + 3, vO + (31 if u == 3 else 30), SRD_WS, SRD_WS + 3, sT0 + (0 if u == 3 else u)))
    poll_loop(g, "h3", issue4, lambda: chk_acc(g, [D, D + 4, D + 8, D + 12], t0, t1, t2), spin)
    g.ts()
    for e in range(4): a("v_cndmask_b32 v%d, v%d, 0, s[%d:%d]" % (D + 12 + e, D + 12 + e, sMsk, sMsk + 1))
    for e in (0, 2):
        a("v_pk_add_f32 v[%d:%d], v[%d:%d], v[%d:%d]" % (D + e, D + e + 1, D + e, D + e + 1, D + 4 + e, D + 5 + e))
        a("v_pk_add_f32 v[%d:%d], v[%d:%d], v[%d:%d]" % (D + 8 + e, D + 9 + e, D + 8 + e, D + 9 + e, D + 12 + e, D + 13 + e))
    for e in (0, 2):
        a("v_pk_add_f32 v[%d:%d], v[%d:%d], v[%d:%d]" % (D + e, D + e + 1, D + e, D + e + 1, D + 8 + e, D + 9 + e))
    for sh in (8, 4, 2):
        for e in range(4): a("v_add_f32_dpp v%d, v%d, v%d row_ror:%d row_mask:0xf bank_mask:0xf" % (D + e, D + e, D + e, sh))
    T4 = D + 4
    for e in range(4): a("v_mov_b32 v%d, v%d" % (T4 + e, D + e))
    for e in range(4): a("v_permlane16_swap_b32 v%d, v%d" % (D + e, T4 + e))
    for e in range(4): a("v_add_f32 v%d, v%d, v%d" % (D + e, D + e, T4 + e))
    for e in range(4): a("v_mov_b32 v%d, v%d" % (T4 + e, D + e))
    for e in range(4): a("v_permlane32_swap_b32 v%d, v%d" % (D + e, T4 + e))
    for e in range(4): a("v_add_f32 v%d, v%d, v%d" % (D + e, D + e, T4 + e))
    a("v_cvt_pk_bf16_f32 v%d, v%d, v%d" % (D + 4, D, D + 1)); a("v_cvt_pk_bf16_f32 v%d, v%d, v%d" % (D + 5, D + 2, D + 3))
    for p in range(2):
        a("v_lshlrev_b32 v%d, 16, v%d" % (D + 2 * p, D + 4 + p)); a("v_and_b32 v%d, 0xffff0000, v%d" % (D + 2 * p + 1, D + 4 + p))
    for e in range(4): a("v_add_f32 v%d, v%d, v%d" % (D + e, D + e, H + e))
    a("v_cvt_pk_bf16_f32 v%d, v%d, v%d" % (D + 4, D, D + 1)); a("v_cvt_pk_bf16_f32 v%d, v%d, v%d" % (D + 5, D + 2, D + 3))
    g.make_srd(SRD_W2, sPOUT, 2048)
    a("v_and_b32 v%d, 1, v%d" % (t0, vLane)); a("v_lshlrev_b32 v%d, 10, v%d" % (t0, t0))
    a("s_lshl_b32 s%d, s%d, 3" % (sT0, sSave))
    a("s_mov_b64 exec, 3")
    a("buffer_store_dwordx2 v[%d:%d], v%d, s[%d:%d], s%d offen" % (D + 4, D + 5, t0, SRD_W2, SRD_W2 + 3, sT0))
    a("s_cmp_lg_u32 s%d, 0" % sSave); a("s_cbranch_scc1 L_done")
    a("s_mov_b64 exec, 1")
    a("v_mov_b32 v%d, s%d" % (t0, sEp1)); a("v_mov_b32 v%d, 0" % t1)
    a("buffer_store_dword v%d, v%d, s[%d:%d], 0 offen offset:%d" % (t0, t1, SRD_WS, SRD_WS + 3, WS_EPOCH))
    a("s_branch L_done")

def f_role(g):
    a = g.a; o = g.o; spin = o["spin"]
    t0, t1, t2, t3 = vTmp, vTmp + 1, vTmp + 2, vTmp + 3
    a("s_mul_i32 s%d, s%d, 14" % (sSave, sX)); a("s_add_u32 s%d, s%d, s%d" % (sSave, sSave, sJ)); a("s_sub_u32 s%d, s%d, 16" % (sSave, sSave))
    a("s_lshl_b32 s%d, s%d, 5" % (sT0, sSave))
    g.make_srd(SRD_W1, sPG, 0, off_sreg=sT0); a("s_sub_u32 s%d, %d, s%d" % (SRD_W1 + 2, 512 * 3584, sT0))
    g.make_srd(SRD_W2, sPU, 0, off_sreg=sT0); a("s_sub_u32 s%d, %d, s%d" % (SRD_W2 + 2, 512 * 3584, sT0))
    a("s_lshl_b32 s%d, s%d, 14" % (sT0, sSave))
    g.make_srd(SRD_W3, sPD, 16384, off_sreg=sT0)
    a("v_lshrrev_b32 v%d, 1, v%d" % (t0, vLane)); a("s_lshl_b32 s%d, s%d, 7" % (sT0, sWave)); a("v_add_u32 v%d, s%d, v%d" % (t0, sT0, t0))
    a("s_movk_i32 s%d, 3584" % sT1); a("v_mul_lo_u32 v%d, v%d, s%d" % (t0, t0, sT1))
    a("v_and_b32 v%d, 1, v%d" % (t1, vLane)); a("v_lshl_add_u32 v%d, v%d, 4, v%d" % (t0, t1, t0))
    a("s_lshl_b32 s%d, s%d, 12" % (sT0, sWave))
    for mat, srd, img in ((0, SRD_W1, L_IMG0), (1, SRD_W2, L_IMG1)):
        for c in range(4):
            a("s_add_u32 m0, s%d, %d" % (sT0, img + c * 1024)); a("s_mov_b32 s%d, %d" % (sT1, c * 32 * 3584))
            a("buffer_load_dwordx4 v%d, s[%d:%d], s%d offen nt lds" % (t0, srd, srd + 3, sT1))
    DW = vVS[2]
    a("v_lshrrev_b32 v%d, 4, v%d" % (t1, vLane)); a("v_lshlrev_b32 v%d, 12, v%d" % (t1, t1))
    a("v_and_b32 v%d, 15, v%d" % (t2, vLane)); a("v_lshl_add_u32 v%d, v%d, 4, v%d" % (t1, t2, t1))
    a("s_lshl_b32 s%d, s%d, 8" % (sT0, sWave)); a("v_add_u32 v%d, s%d, v%d" % (t1, sT0, t1))
    for i in range(4):
        a("buffer_load_dwordx4 v[%d:%d], v%d, s[%d:%d], 0 offen offset:%d nt" % (DW + 4 * i, DW + 4 * i + 3, t1, SRD_W3, SRD_W3 + 3, i * 1024))
    XR = vT
    a("v_lshrrev_b32 v%d, 7, v0" % t1); a("v_lshlrev_b32 v%d, 10, v%d" % (t1, t1)); a("v_and_b32 v%d, 127, v0" % t2); a("v_lshl_add_u32 v%d, v%d, 3, v%d" % (t1, t2, t1))
    a("buffer_load_dwordx2 v[%d:%d], v%d, s[%d:%d], 0 offen" % (XR, XR + 1, t1, SRD_X, SRD_X + 3))
    AY = vG
    a("v_lshrrev_b32 v%d, 7, v0" % t1); a("v_lshlrev_b32 v%d, 4, v%d" % (t1, t1)); a("v_lshl_add_u32 v%d, v%d, 5, v%d" % (AY, t2, t1))
    TR = vG + 1
    a("v_lshrrev_b32 v%d, 4, v%d" % (t1, vLane)); a("v_bfe_u32 v%d, v%d, 2, 2" % (t2, vLane)); a("v_lshl_add_u32 v%d, v%d, 3, v%d" % (t2, t1, t2))
    a("v_lshlrev_b32 v%d, 5, v%d" % (t2, t2)); a("v_and_b32 v%d, 3, v%d" % (t3, vLane)); a("v_lshl_add_u32 v%d, v%d, 3, v%d" % (TR, t3, t2))
    a("s_lshl_b32 s%d, s%d, 12" % (sT0, sWave)); a("v_add_u32 v%d, s%d, v%d" % (TR, sT0, TR))
    AH = vG + 2
    a("v_bfe_u32 v%d, v%d, 2, 1" % (t2, vLane)); a("v_lshlrev_b32 v%d, 10, v%d" % (t2, t2)); a("v_lshl_add_u32 v%d, v%d, 4, v%d" % (AH, t1, t2))
    a("s_lshl_b32 s%d, s%d, 8" % (sT0, sWave)); a("v_add_u32 v%d, s%d, v%d" % (AH, sT0, AH))
    AW = vG + 3
    a("v_lshrrev_b32 v%d, 7, v0" % t2); a("v_lshlrev_b32 v%d, 10, v%d" % (t2, t2)); a("v_and_b32 v%d, 127, v0" % t3); a("v_lshl_add_u32 v%d, v%d, 3, v%d" % (AW, t3, t2))
    AS = vG + 4
    a("v_and_b32 v%d, 15, v%d" % (AS, vLane)); a("v_lshlrev_b32 v%d, 6, v%d" % (AS, AS))
    a("v_bfe_u32 v%d, v%d, 5, 1" % (t2, vLane)); a("v_lshl_add_u32 v%d, v%d, 5, v%d" % (AS, t2, AS))
    a("v_bfe_u32 v%d, v%d, 4, 1" % (t2, vLane)); a("v_lshl_add_u32 v%d, v%d, 4, v%d" % (AS, t2, AS))
    a("s_lshl_b32 s%d, s%d, 10" % (sT0, sWave)); a("v_add_u32 v%d, s%d, v%d" % (AS, sT0, AS))
    a("s_waitcnt vmcnt(0)")
    BG = vVS[0]
    for mat, img in ((0, L_IMG0), (1, L_IMG1)):
        a("s_waitcnt lgkmcnt(4)") if mat else None
        for t in range(4):
            b = BG + 16 * mat + 4 * t
            a("ds_read_b64_tr_b16 v[%d:%d], v%d offset:%d" % (b, b + 1, TR, img + t * 1024))
            a("ds_read_b64_tr_b16 v[%d:%d], v%d offset:%d" % (b + 2, b + 3, TR, img + t * 1024 + 128))
    DF = vVS[1]
    for j in range(8):
        for p in range(2):
            a("v_perm_b32 v%d, v%d, v%d, s%d" % (DF + 2 * j + p, DW + 4 * (2 * p + 1) + (j >> 1), DW + 4 * (2 * p) + (j >> 1), sSelHi if j & 1 else sSelLo))
    XF = vT + 2
    for p in range(2):
        a("v_lshlrev_b32 v%d, 16, v%d" % (XF + 2 * p, XR + p)); a("v_and_b32 v%d, 0xffff0000, v%d" % (XF + 2 * p + 1, XR + p))
    a("s_waitcnt lgkmcnt(0)")
    g.ts()
    D = vO
    for u in range(8): pass
    def issue():
        for u in range(8):
            a("s_mov_b32 s%d, %d" % (sT0, WS_Y + u * 4096))
            a("buffer_load_dwordx4 v[%d:%d], v%d, s[%d:%d], s%d offen sc1" % (D + 4 * u, D + 4 * u + 3, AY, SRD_WS, SRD_WS + 3, sT0))
    poll_loop(g, "h2", issue, lambda: chk_acc(g, [D + 4 * u for u in range(8)], t0, t1, t2), spin)
    g.ts()
    for st in (16, 8, 4):
        for q in range(0, st, 2):
            a("v_pk_add_f32 v[%d:%d], v[%d:%d], v[%d:%d]" % (D + q, D + q + 1, D + q, D + q + 1, D + st + q, D + st + q + 1))
    H = vO + 8
    a("v_cvt_pk_bf16_f32 v%d, v%d, v%d" % (D + 4, D, D + 1)); a("v_cvt_pk_bf16_f32 v%d, v%d, v%d" % (D + 5, D + 2, D + 3))
    for p in range(2):
        a("v_lshlrev_b32 v%d, 16, v%d" % (D + 2 * p, D + 4 + p)); a("v_and_b32 v%d, 0xffff0000, v%d" % (D + 2 * p + 1, D + 4 + p))
    for e in (0, 2): a("v_pk_add_f32 v[%d:%d], v[%d:%d], v[%d:%d]" % (H + e, H + e + 1, D + e, D + e + 1, XF + e, XF + e + 1))
    a("v_cvt_pk_bf16_f32 v%d, v%d, v%d" % (D + 4, H, H + 1)); a("v_cvt_pk_bf16_f32 v%d, v%d, v%d" % (D + 5, H + 2, H + 3))
    for p in range(2):
        a("v_lshlrev_b32 v%d, 16, v%d" % (H + 2 * p, D + 4 + p)); a("v_and_b32 v%d, 0xffff0000, v%d" % (H + 2 * p + 1, D + 4 + p))
    S1, S2 = D, D + 1
    a("v_add_f32 v%d, v%d, v%d" % (S1, H, H + 1)); a("v_mul_f32 v%d, v%d, v%d" % (S2, H, H))
    a("v_add_f32 v%d, v%d, v%d" % (D + 2, H + 2, H + 3)); a("v_fmac_f32 v%d, v%d, v%d" % (S2, H + 1, H + 1))
    a("v_add_f32 v%d, v%d, v%d" % (S1, S1, D + 2)); a("v_fmac_f32 v%d, v%d, v%d" % (S2, H + 2, H + 2)); a("v_fmac_f32 v%d, v%d, v%d" % (S2, H + 3, H + 3))
    for sh in (8, 4, 2, 1):
        a("v_add_f32_dpp v%d, v%d, v%d row_ror:%d row_mask:0xf bank_mask:0xf" % (S1, S1, S1, sh))
        a("v_add_f32_dpp v%d, v%d, v%d row_ror:%d row_mask:0xf bank_mask:0xf" % (S2, S2, S2, sh))
    for sw in ("v_permlane16_swap_b32", "v_permlane32_swap_b32"):
        a("v_mov_b32 v%d, v%d" % (D + 2, S1)); a("v_mov_b32 v%d, v%d" % (D + 3, S2))
        a("%s v%d, v%d" % (sw, S1, D + 2)); a("%s v%d, v%d" % (sw, S2, D + 3))
        a("v_add_f32 v%d, v%d, v%d" % (S1, S1, D + 2)); a("v_add_f32 v%d, v%d, v%d" % (S2, S2, D + 3))
    a("s_lshl_b32 s%d, s%d, 3" % (sT0, sWave)); a("v_mov_b32 v%d, s%d" % (t0, sT0))
    a("s_mov_b64 exec, 1")
    a("ds_write_b64 v%d, v[%d:%d] offset:%d" % (t0, S1, S2, L_HST))
    a("s_mov_b64 exec, -1")
    a("s_lshr_b32 s%d, s%d, 1" % (sT0, sWave)); a("s_lshl_b32 s%d, s%d, 4" % (sT0, sT0)); a("v_mov_b32 v%d, s%d" % (t0, sT0))
    a("s_waitcnt lgkmcnt(0)")
    a("s_barrier")
    a("ds_read_b128 v[%d:%d], v%d offset:%d" % (D, D + 3, t0, L_HST))
    a("s_waitcnt lgkmcnt(0)")
    a("v_add_f32 v%d, v%d, v%d" % (D, D, D + 2)); a("v_add_f32 v%d, v%d, v%d" % (D + 1, D + 1, D + 3))
    a("v_mul_f32 v%d, 0x3b000000, v%d" % (D, D)); a("v_mul_f32 v%d, 0x3b000000, v%d" % (D + 1, D + 1))
    a("v_fma_f32 v%d, -v%d, v%d, v%d" % (D + 1, D, D, D + 1))
    a("v_cvt_pk_bf16_f32 v%d, v%d, v%d" % (t0, D, D + 1))
    a("v_lshlrev_b32 v%d, 16, v%d" % (D, t0)); a("v_and_b32 v%d, 0xffff0000, v%d" % (D + 2, t0))
    a("v_add_f32 v%d, 0x3727c5ac, v%d" % (D + 2, D + 2))
    a("v_mov_b32 v%d, v%d" % (D + 1, D))
    a("v_cvt_pk_bf16_f32 v%d, v%d, v%d" % (D + 2, D + 2, D + 2)); a("v_lshlrev_b32 v%d, 16, v%d" % (D + 2, D + 2))
    for e in (0, 2): a("v_pk_add_f32 v[%d:%d], v[%d:%d], v[%d:%d] neg_lo:[0,1] neg_hi:[0,1]" % (H + e, H + e + 1, H + e, H + e + 1, D, D + 1))
    a("v_sqrt_f32 v%d, v%d" % (D + 2, D + 2))
    a("v_cvt_pk_bf16_f32 v%d, v%d, v%d" % (D + 4, H, H + 1)); a("v_cvt_pk_bf16_f32 v%d, v%d, v%d" % (D + 5, H + 2, H + 3))
    a("v_cvt_pk_bf16_f32 v%d, v%d, v%d" % (D + 2, D + 2, D + 2)); a("v_lshlrev_b32 v%d, 16, v%d" % (D + 2, D + 2))
    a("v_rcp_f32 v%d, v%d" % (D + 6, D + 2)); a("v_mov_b32 v%d, v%d" % (D + 3, D + 2))
    for p in range(2):
        a("v_lshlrev_b32 v%d, 16, v%d" % (H + 2 * p, D + 4 + p)); a("v_and_b32 v%d, 0xffff0000, v%d" % (H + 2 * p + 1, D + 4 + p))
    a("v_mov_b32 v%d, v%d" % (D + 7, D + 6))
    Q = vO + 12
    for e in (0, 2): a("v_pk_mul_f32 v[%d:%d], v[%d:%d], v[%d:%d]" % (Q + e, Q + e + 1, H + e, H + e + 1, D + 6, D + 7))
    for e in (0, 2): a("v_pk_fma_f32 v[%d:%d], v[%d:%d], v[%d:%d], v[%d:%d] neg_lo:[1,0,0] neg_hi:[1,0,0]" % (H + e, H + e + 1, Q + e, Q + e + 1, D + 2, D + 3, H + e, H + e + 1))
    for e in (0, 2): a("v_pk_fma_f32 v[%d:%d], v[%d:%d], v[%d:%d], v[%d:%d]" % (Q + e, Q + e + 1, H + e, H + e + 1, D + 6, D + 7, Q + e, Q + e + 1))
    a("v_cvt_pk_bf16_f32 v%d, v%d, v%d" % (D + 4, Q, Q + 1)); a("v_cvt_pk_bf16_f32 v%d, v%d, v%d" % (D + 5, Q + 2, Q + 3))
    a("ds_write_b64 v%d, v[%d:%d] offset:%d" % (AW, D + 4, D + 5, L_HN))
    a("s_waitcnt lgkmcnt(0)")
    a("s_barrier")
    AF = vS
    for t in range(4): a("ds_read_b128 v[%d:%d], v%d offset:%d" % (AF + 4 * t, AF + 4 * t + 3, AH, L_HN + 64 * t))
    GD, UD = vO, vO + 4
    for t in range(4):
        a("s_waitcnt lgkmcnt(%d)" % (3 - t))
        for mat, dd in ((0, GD), (1, UD)):
            b = BG + 16 * mat + 4 * t
            a("v_mfma_f32_16x16x32_bf16 v[%d:%d], v[%d:%d], v[%d:%d], %s" % (dd, dd + 3, AF + 4 * t, AF + 4 * t + 3, b, b + 3, "0" if t == 0 else "v[%d:%d]" % (dd, dd + 3)))
    a("s_lshl_b32 s%d, s%d, 8" % (sT0, sWave)); a("v_lshl_add_u32 v%d, v%d, 2, s%d" % (t0, vLane, sT0))
    a("s_mov_b32 exec_hi, 0")
    a("ds_write_b32 v%d, v%d offset:%d" % (t0, GD, L_GU)); a("ds_write_b32 v%d, v%d offset:%d" % (t0, UD, L_GU + 128))
    a("s_mov_b64 exec, -1")
    a("v_bfe_u32 v%d, v%d, 2, 1" % (t0, vLane)); a("v_lshlrev_b32 v%d, 6, v%d" % (t0, t0))
    a("v_lshrrev_b32 v%d, 4, v%d" % (t1, vLane)); a("v_lshl_add_u32 v%d, v%d, 4, v%d" % (t0, t1, t0))
    a("s_waitcnt lgkmcnt(0)")
    a("s_barrier")
    R = vO + 8
    for mat in range(2):
        for w in range(4):
            a("ds_read_b128 v[%d:%d], v%d offset:%d" % (R + 16 * mat + 4 * w, R + 16 * mat + 4 * w + 3, t0, L_GU + 256 * w + 128 * mat))
    a("s_waitcnt lgkmcnt(4)")
    def sum4(base):
        for e in (0, 2):
            a("v_pk_add_f32 v[%d:%d], v[%d:%d], v[%d:%d]" % (base + e, base + e + 1, base + e, base + e + 1, base + 4 + e, base + 5 + e))
            a("v_pk_add_f32 v[%d:%d], v[%d:%d], v[%d:%d]" % (base + 8 + e, base + 9 + e, base + 8 + e, base + 9 + e, base + 12 + e, base + 13 + e))
        for e in (0, 2):
            a("v_pk_add_f32 v[%d:%d], v[%d:%d], v[%d:%d]" % (base + e, base + e + 1, base + e, base + e + 1, base + 8 + e, base + 9 + e))
    sum4(R)
    Gv = R; Uv = R + 16
    a("v_cvt_pk_bf16_f32 v%d, v%d, v%d" % (R + 4, Gv, Gv + 1)); a("v_cvt_pk_bf16_f32 v%d, v%d, v%d" % (R + 5, Gv + 2, Gv + 3))
    for p in range(2):
        a("v_lshlrev_b32 v%d, 16, v%d" % (Gv + 2 * p, R + 4 + p)); a("v_and_b32 v%d, 0xffff0000, v%d" % (Gv + 2 * p + 1, R + 4 + p))
    E = R + 8
    for e in range(4): a("v_mul_f32 v%d, s%d, v%d" % (E + e, sLog2e, Gv + e))
    for e in range(4): a("v_exp_f32 v%d, -v%d" % (E + e, E + e))
    for e in range(4): a("v_add_f32 v%d, 1.0, v%d" % (E + e, E + e))
    for e in range(4): a("v_rcp_f32 v%d, v%d" % (E + e, E + e))
    a("s_waitcnt lgkmcnt(0)")
    sum4(Uv)
    for e in range(4): a("v_mul_f32 v%d, v%d, v%d" % (Gv + e, Gv + e, E + e))
    a("v_cvt_pk_bf16_f32 v%d, v%d, v%d" % (R + 4, Gv, Gv + 1)); a("v_cvt_pk_bf16_f32 v%d, v%d, v%d" % (R + 5, Gv + 2, Gv + 3))
    a("v_cvt_pk_bf16_f32 v%d, v%d, v%d" % (R + 6, Uv, Uv + 1)); a("v_cvt_pk_bf16_f32 v%d, v%d, v%d" % (R + 7, Uv + 2, Uv + 3))
    for p in range(2):
        a("v_lshlrev_b32 v%d, 16, v%d" % (Gv + 2 * p, R + 4 + p)); a("v_and_b32 v%d, 0xffff0000, v%d" % (Gv + 2 * p + 1, R + 4 + p))
        a("v_lshlrev_b32 v%d, 16, v%d" % (Uv + 2 * p, R + 6 + p)); a("v_and_b32 v%d, 0xffff0000, v%d" % (Uv + 2 * p + 1, R + 6 + p))
    for e in range(4): a("v_mul_f32 v%d, v%d, v%d" % (Gv + e, Gv + e, Uv + e))
    AC = vS
    a("v_cvt_pk_bf16_f32 v%d, v%d, v%d" % (AC, Gv, Gv + 1)); a("v_cvt_pk_bf16_f32 v%d, v%d, v%d" % (AC + 1, Gv + 2, Gv + 3))
    YD = vO
    for j in range(8):
        a("v_mfma_f32_16x16x16_bf16 v[%d:%d], v[%d:%d], v[%d:%d], 0" % (YD + 4 * j, YD + 4 * j + 3, AC, AC + 1, DF + 2 * j, DF + 2 * j + 1))
    a("s_mov_b32 s%d, 0" % sMsk); a("s_mov_b32 s%d, -1" % (sMsk + 1))
    a("s_lshl_b32 s%d, s%d, 12" % (sT0, sSave)); a("s_add_u32 s%d, s%d, %d" % (sT0, sT0, WS_OP))
    G = vS + 4
    for e in range(4): a("v_cndmask_b32 v%d, v%d, v%d, s[%d:%d]" % (G + e, YD + 4 * e, YD + 4 * (4 + e), sMsk, sMsk + 1))
    g.tag4(G + 4, [G, G + 1, G + 2, G + 3])
    a("buffer_store_dwordx4 v[%d:%d], v%d, s[%d:%d], s%d offen sc1" % (G + 4, G + 7, AS, SRD_WS, SRD_WS + 3, sT0))
    g.ts()
    a("s_branch L_done")

def emit(g):
    a = g.a
    weights_setup(g)
    g.stream(weights_hook=lambda: weights_hook(g))
    g.ts()
    g.wg_combine()
    g.ts()
    if g.o.get("stop") == "p": return
    a("s_cmp_lt_u32 s%d, 16" % sJ); a("s_cbranch_scc1 L_orole")
    a("s_cmp_lt_u32 s%d, 30" % sJ); a("s_cbranch_scc0 L_done")
    n0 = g.nts
    f_role(g)
    n1 = g.nts
    g.nts = n0
    a.label("L_orole")
    o_role(g)
    g.nts = max(g.nts, n1)
```

```python
import sys
sys.path.insert(0, "gen")
from asmlib import Asm

NAME = "sequential_preLN__gqa_block_cached__swiglu_ffn__decode_kernel"

WS_EPOCH = 0x0
WS_Q     = 0x1A0000
WS_PO    = 0x10000
WS_PML   = 0x90000
WS_YP    = 0xA0000
WS_Y     = 0x120000
WS_OP    = 0x130000
WS_QA    = 0x1E0000
WS_DBG   = 0x300000
WS_TS    = 0x400000
WS_SIZE  = 0x10000000

L_IMG0 = 0x0000
L_IMG1 = 0x4000
L_XN   = 0x8000
L_QP   = 0xA000
L_CO   = 0xB800
L_CML  = 0xD800
L_OA   = 0xD900
L_HST  = 0xDA00
L_HN   = 0xDB00
L_GU   = 0xE400
LDS_SIZE = 0xF000

sPX, sPK, sPV, sPWQ, sPWO, sPBX, sPG, sPU, sPD, sPOUT, sPDBG, sPWS = [4 + 2 * i for i in range(12)]
SRD_K, SRD_V, SRD_WS, SRD_W1, SRD_W2, SRD_W3, SRD_X = 28, 32, 36, 40, 44, 48, 52
sX, sJ, sWave, sB, sTag, sXcc, sSelLo, sSelHi = 56, 57, 58, 59, 60, 61, 62, 63
sTSel = 64
sChkA, sChkB = 68, 69
sScale = 70
sLog2e, sCnt = 72, 73
sOffA, sOffB = 74, 75
sRot, sMode = 76, 77
sT0, sT1, sT2, sT3 = 78, 79, 80, 81
sSave = 82
sMsk = 84
sEp1 = 86
sP = 87
sTS = 88
vTid, vLane, vOffK, vOffV = 0, 1, 2, 3
vQ = 4
vM, vL, vAl = 8, 9, 10
vTmp = 12
vO = 16
vS = 48
vVS = [80, 112, 144]
vT = 176
vU = 184
vP = 192
vTagW = 196
vG = 198
aKS = [0, 32, 64]

def sr(n, k=1): return "s%d" % n if k == 1 else "s[%d:%d]" % (n, n + k - 1)
def vr(n, k=1): return "v%d" % n if k == 1 else "v[%d:%d]" % (n, n + k - 1)
def ar(n, k=1): return "a%d" % n if k == 1 else "a[%d:%d]" % (n, n + k - 1)

class Gen:
    def __init__(self, **opt):
        self.o = dict(stop_after=None, ts=False, dbg=None, rotw=1, rotx=4, rotj=0, ntflag="nt", spin=3000,
                      local=True, sched=None, prefetch_code=True)
        self.o.update(opt)
        self.a = Asm()
        self.nts = 0
        self.sTagW = sTag
        self.uid = 0
        self.vq = []
        self.NS = self.o.get("NS", 3)
        self.bulk = [(k, t, h) for t in range(self.NS) for k in "KV" for h in range(2)]
        self.bi = 0
    def lab(self, p):
        self.uid += 1
        return "L_%s_%d" % (p, self.uid)
    def ts(self):
        if not self.o["ts"]: return
        a = self.a
        i = self.nts; self.nts += 1
        assert i < 12
        a("s_memrealtime s[102-2]" if False else "s_memrealtime s[%d:%d]" % (100, 101))
        a("s_waitcnt lgkmcnt(0)")
        a("s_mov_b32 s%d, s100" % (sTS + i))

    def ts_slot(self):
        if not self.o["ts"]: return None
        i = self.nts; self.nts += 1
        return i
    def ts_at(self, i, val=None):
        if i is None: return
        a = self.a
        if val is not None:
            a("s_mov_b32 s%d, %d" % (sTS + i, val)); return
        a("s_memrealtime s[100:101]"); a("s_waitcnt lgkmcnt(0)"); a("s_mov_b32 s%d, s100" % (sTS + i))

    def vm(self, tag, n=1): self.vq += [tag] * n
    def vwait(self, tag):
        idx = max(i for i, t in enumerate(self.vq) if t == tag)
        self.a("s_waitcnt vmcnt(%d)" % (len(self.vq) - 1 - idx))
    def issue_bulk(self, n):
        for _ in range(n):
            if self.bi < len(self.bulk):
                k, t, h = self.bulk[self.bi]; self.bi += 1
                self.load_half(k, t, h); self.vm("bulk", 4)

    def make_srd(self, srd, ptr, size, off_sreg=None, off_imm=None):
        a = self.a
        if off_sreg is None and off_imm is None:
            a("s_mov_b32 s%d, s%d" % (srd, ptr)); a("s_mov_b32 s%d, s%d" % (srd + 1, ptr + 1))
        elif off_sreg is not None:
            a("s_add_u32 s%d, s%d, s%d" % (srd, ptr, off_sreg)); a("s_addc_u32 s%d, s%d, 0" % (srd + 1, ptr + 1))
        else:
            a("s_add_u32 s%d, s%d, %d" % (srd, ptr, off_imm)); a("s_addc_u32 s%d, s%d, 0" % (srd + 1, ptr + 1))
        a("s_mov_b32 s%d, %s" % (srd + 2, size if isinstance(size, str) else "0x%x" % size))
        a("s_mov_b32 s%d, 0x20000" % (srd + 3))

    def tag4(self, dst, src):
        for k in range(4):
            self.a("v_perm_b32 v%d, v%d, v%d, s%d" % (dst + k, src[k], vTagW, sTSel + k))
    def chk4(self, d, t0, t1):
        a = self.a
        a("v_perm_b32 v%d, v%d, v%d, s%d" % (t0, d + 1, d, sChkA))
        a("v_perm_b32 v%d, v%d, v%d, s%d" % (t1, d + 3, d + 2, sChkB))
        a("v_or_b32 v%d, v%d, v%d" % (t0, t0, t1))
        a("v_cmp_eq_u32 vcc, v%d, v%d" % (t0, vTagW))

    def allred_row16(self, op, r, t=None):
        for sh in (8, 4, 2, 1):
            self.a("%s_dpp v%d, v%d, v%d row_ror:%d row_mask:0xf bank_mask:0xf" % (op, r, r, r, sh))
    def allred_x16(self, op, r, t):
        a = self.a
        a("v_mov_b32 v%d, v%d" % (t, r)); a("v_permlane16_swap_b32 v%d, v%d" % (r, t)); a("%s v%d, v%d, v%d" % (op, r, r, t))
    def allred_x32(self, op, r, t):
        a = self.a
        a("v_mov_b32 v%d, v%d" % (t, r)); a("v_permlane32_swap_b32 v%d, v%d" % (r, t)); a("%s v%d, v%d, v%d" % (op, r, r, t))

    def prologue(self):
        a = self.a; o = self.o
        a("s_cmp_ge_u32 s2, 256"); a("s_cbranch_scc1 L_end")
        for q in range(o.get("jumps", 0)):
            a("s_branch L_jmp%d" % q); a.raw(".fill %d, 4, 0xbf800000" % (o.get("jgap", 1024) // 4)); a.label("L_jmp%d" % q)
        a("s_load_dwordx16 s[4:19], s[0:1], 0")
        a("s_load_dwordx8 s[20:27], s[0:1], 64")
        if o["ts"]:
            for i in range(12): a("s_mov_b32 s%d, 0" % (sTS + i))
        self.ts()
        a("v_and_b32 v%d, 63, v0" % vLane)
        a("v_lshrrev_b32 v%d, 6, v0" % vTmp)
        a("s_and_b32 s%d, s2, 7" % sX)
        a("v_readfirstlane_b32 s%d, v%d" % (sWave, vTmp))
        a("s_lshr_b32 s%d, s2, 3" % sJ)
        a("s_lshr_b32 s%d, s%d, 4" % (sB, sJ))
        a("s_lshl_b32 s%d, s%d, 5" % (sP, sX)); a("s_add_u32 s%d, s%d, s%d" % (sP, sP, sJ))
        a("v_bfe_u32 v%d, v%d, 2, 2" % (vTmp, vLane)); a("v_lshlrev_b32 v%d, 8, v%d" % (vOffK, vTmp))
        a("v_lshrrev_b32 v%d, 4, v%d" % (vTmp, vLane)); a("v_lshl_add_u32 v%d, v%d, 6, v%d" % (vOffK, vTmp, vOffK))
        a("v_and_b32 v%d, 3, v%d" % (vTmp, vLane)); a("v_lshl_add_u32 v%d, v%d, 4, v%d" % (vOffK, vTmp, vOffK))
        a("v_lshlrev_b32 v%d, 4, v%d" % (vOffV, vLane))
        a("s_lshl_b32 s%d, s%d, 16" % (sT0, sWave))
        a("v_add_u32 v%d, s%d, v%d" % (vOffK, sT0, vOffK)); a("v_add_u32 v%d, s%d, v%d" % (vOffV, sT0, vOffV))
        a("v_lshrrev_b32 v%d, 5, v%d" % (vTmp, vLane)); a("v_and_b32 v%d, 31, v%d" % (vTmp + 1, vLane))
        a("v_lshlrev_b32 v%d, 10, v%d" % (vG, vTmp)); a("v_lshl_add_u32 v%d, v%d, 4, v%d" % (vG, vTmp + 1, vG))
        a("v_lshrrev_b32 v%d, 3, v%d" % (vTmp, vLane)); a("v_lshlrev_b32 v%d, 13, v%d" % (vG + 1, vTmp))
        a("v_and_b32 v%d, 7, v%d" % (vTmp, vLane)); a("v_lshl_add_u32 v%d, v%d, 4, v%d" % (vG + 1, vTmp, vG + 1))
        a("s_mul_i32 s%d, s%d, %d" % (sRot, sWave, o["rotw"])); a("s_mul_i32 s%d, s%d, %d" % (sT1, sX, o["rotx"]))
        a("s_add_u32 s%d, s%d, s%d" % (sRot, sRot, sT1)); a("s_mul_i32 s%d, s%d, %d" % (sT1, sJ, o["rotj"]))
        a("s_add_u32 s%d, s%d, s%d" % (sRot, sRot, sT1)); a("s_and_b32 s%d, s%d, 15" % (sRot, sRot))
        a("s_lshl_b32 s%d, s%d, 3" % (sT1, sB)); a("s_add_u32 s%d, s%d, s%d" % (sT1, sT1, sX)); a("s_lshl_b32 s%d, s%d, 4" % (sT1, sT1))
        a("s_and_b32 s%d, s%d, 15" % (sT2, sJ)); a("s_add_u32 s%d, s%d, s%d" % (sT1, sT1, sT2)); a("s_lshl_b32 s%d, s%d, 18" % (sT1, sT1))
        a("s_lshl_b32 s%d, s%d, 10" % (sT2, sX)); a("s_and_b32 s%d, s%d, 7" % (sT3, sJ)); a("s_lshl_b32 s%d, s%d, 7" % (sT3, sT3))
        a("s_add_u32 s%d, s%d, s%d" % (sT2, sT2, sT3)); a("s_lshr_b32 s%d, s%d, 3" % (sT3, sJ)); a("s_lshl_b32 s%d, s%d, 20" % (sT3, sT3))
        a("s_add_u32 s%d, s%d, s%d" % (sT2, sT2, sT3))
        a("s_waitcnt lgkmcnt(0)")
        self.make_srd(SRD_X, sPX, 2048)
        self.make_srd(SRD_W1, sPWQ, "s%d" % sT3 if False else 0x400000, off_sreg=sT2)
        a("s_sub_u32 s%d, 0x400000, s%d" % (SRD_W1 + 2, sT2))
        self.make_srd(SRD_K, sPK, 0x40000, off_sreg=sT1)
        self.make_srd(SRD_WS, sPWS, WS_SIZE)
        a("s_load_dword s%d, s[%d:%d], 0x%x" % (sTag, sPWS, sPWS + 1, WS_EPOCH))
        lab = self.lab("w0")
        a("s_cmp_lg_u32 s%d, 0" % sWave); a("s_cbranch_scc1 %s" % lab)
        a("buffer_load_dwordx4 v[%d:%d], v%d, s[%d:%d], 0 offen" % (vG + 4, vG + 7, vG, SRD_X, SRD_X + 3))
        a("buffer_load_dwordx4 v[%d:%d], v%d, s[%d:%d], 0 offen offset:512" % (vG + 8, vG + 11, vG, SRD_X, SRD_X + 3))
        self.vm("x", 2)
        for c in range(16):
            a("s_mov_b32 m0, %d" % (L_IMG0 + c * 1024))
            a("s_mov_b32 s%d, %d" % (sOffA, c * 8 * 8192))
            a("buffer_load_dwordx4 v%d, s[%d:%d], s%d offen nt lds" % (vG + 1, SRD_W1, SRD_W1 + 3, sOffA))
        self.vm("wq", 16)
        if o.get("touch", True):
            a("s_lshl_b32 s%d, s%d, 15" % (sT2, sX)); a("s_lshl_b32 s%d, s%d, 12" % (sT3, sB)); a("s_add_u32 s%d, s%d, s%d" % (sT2, sT2, sT3))
            a("s_add_u32 s%d, s%d, %d" % (sT2, sT2, WS_QA))
            a("v_and_b32 v%d, 31, v%d" % (vTmp, vLane)); a("v_lshlrev_b32 v%d, 7, v%d" % (vTmp, vTmp))
            a("v_lshrrev_b32 v%d, 5, v%d" % (vTmp + 1, vLane)); a("v_lshl_add_u32 v%d, v%d, 13, v%d" % (vTmp, vTmp + 1, vTmp))
            a("buffer_load_dword v%d, v%d, s[%d:%d], s%d offen %s" % (vG + 56, vTmp, SRD_WS, SRD_WS + 3, sT2, o.get("touchflag", "sc1")))
            a("s_add_u32 s%d, s%d, 16384" % (sT2, sT2))
            a("buffer_load_dword v%d, v%d, s[%d:%d], s%d offen %s" % (vG + 57, vTmp, SRD_WS, SRD_WS + 3, sT2, o.get("touchflag", "sc1")))
            self.vm("touch", 2)
        a.label(lab)
        self.make_srd(SRD_V, sPV, 0x40000, off_sreg=sT1)
        a("s_barrier")
        a("s_mov_b32 s%d, 0x05040100" % sSelLo); a("s_mov_b32 s%d, 0x07060302" % sSelHi)
        for k in range(4): a("s_mov_b32 s%d, 0x%08x" % (sTSel + k, 0x07060500 + k))
        a("s_mov_b32 s%d, 0x0c0c0400" % sChkA); a("s_mov_b32 s%d, 0x04000c0c" % sChkB)
        a("s_mov_b32 s%d, 0x3db504f3" % sScale); a("s_mov_b32 s%d, 0x3db504f3" % (sScale + 1)); a("s_mov_b32 s%d, 0x3fb8aa3b" % sLog2e)
        a("s_getreg_b32 s%d, hwreg(HW_REG_XCC_ID, 0, 4)" % sXcc)

    def soff_half(self, t, half, dst):
        a = self.a
        a("s_add_u32 s%d, s%d, %d" % (dst, sRot, 2 * t + half))
        a("s_and_b32 s%d, s%d, 15" % (dst, dst)); a("s_lshl_b32 s%d, s%d, 12" % (dst, dst))

    def load_half(self, kind, t, half, dyn=False):
        a = self.a
        so = sOffA if half == 0 else sOffB
        if not dyn: self.soff_half(t, half, so)
        setsel = t % self.NS
        for i in range(4):
            slot = 4 * half + i
            if kind == "K":
                dst = ar(aKS[setsel] + 4 * slot, 4); voff = vOffK; srd = SRD_K
            else:
                dst = vr(vVS[setsel] + 4 * slot, 4); voff = vOffV; srd = SRD_V
            a("buffer_load_dwordx4 %s, v%d, s[%d:%d], s%d offen offset:%d %s" % (dst, voff, srd, srd + 3, so, i * 1024, self.o["ntflag"]))

    def tag_consts(self):
        a = self.a
        a("s_waitcnt lgkmcnt(0)")
        a("s_and_b32 s%d, s%d, 0xff" % (sT0, sTag))
        a("s_add_u32 s%d, s%d, 0x35" % (sT1, sT0)); a("s_and_b32 s%d, s%d, 0xff" % (sT1, sT1)); a("s_lshl_b32 s%d, s%d, 8" % (sT1, sT1))
        a("s_add_u32 s%d, s%d, 0x6a" % (sT2, sT0)); a("s_and_b32 s%d, s%d, 0xff" % (sT2, sT2)); a("s_lshl_b32 s%d, s%d, 16" % (sT2, sT2))
        a("s_add_u32 s%d, s%d, 0xc1" % (sT3, sT0)); a("s_lshl_b32 s%d, s%d, 24" % (sT3, sT3))
        a("s_or_b32 s%d, s%d, s%d" % (sT0, sT0, sT1)); a("s_or_b32 s%d, s%d, s%d" % (sT2, sT2, sT3)); a("s_or_b32 s%d, s%d, s%d" % (sT0, sT0, sT2))
        a("s_add_u32 s%d, s%d, 1" % (sEp1, sTag))
        a("s_mov_b32 s%d, s%d" % (self.sTagW, sT0))
        a("v_mov_b32 v%d, s%d" % (vTagW, sT0))

    def helper_startup(self):
        a = self.a; o = self.o
        W = o.get("win", 10)
        n = 0
        for (k, t, h) in self.bulk:
            if n + 4 > W: a("s_waitcnt vmcnt(%d)" % max(W - 4, 0))
            self.load_half(k, t, h); n += 4
        self.tag_consts()

    def ln_x(self):
        a = self.a
        X = vG + 4; F = vO
        t0, t1 = vTmp, vTmp + 1
        self.vwait("x")
        if self.o.get("tsq"): self.ts()
        for i in range(8):
            a("v_lshlrev_b32 v%d, 16, v%d" % (F + 2 * i, X + i))
            a("v_and_b32 v%d, 0xffff0000, v%d" % (F + 2 * i + 1, X + i))
        S = vO + 16
        a("v_pk_add_f32 v[%d:%d], v[%d:%d], v[%d:%d]" % (S, S + 1, F, F + 1, F + 2, F + 3))
        a("v_pk_add_f32 v[%d:%d], v[%d:%d], v[%d:%d]" % (S + 2, S + 3, F + 4, F + 5, F + 6, F + 7))
        for i in (4, 6):
            a("v_pk_add_f32 v[%d:%d], v[%d:%d], v[%d:%d]" % (S, S + 1, S, S + 1, F + 2 * i, F + 2 * i + 1))
            a("v_pk_add_f32 v[%d:%d], v[%d:%d], v[%d:%d]" % (S + 2, S + 3, S + 2, S + 3, F + 2 * i + 2, F + 2 * i + 3))
        a("v_pk_add_f32 v[%d:%d], v[%d:%d], v[%d:%d]" % (S, S + 1, S, S + 1, S + 2, S + 3))
        a("v_add_f32 v%d, v%d, v%d" % (S, S, S + 1))
        self.allred_row16("v_add_f32", S); self.allred_x16("v_add_f32", S, t0)
        a("v_mul_f32 v%d, 0x3b000000, v%d" % (S, S))
        MEAN = S; D = vO + 20
        a("v_mov_b32 v%d, v%d" % (S + 1, S))
        for i in range(8):
            a("v_pk_add_f32 v[%d:%d], v[%d:%d], v[%d:%d] neg_lo:[0,1] neg_hi:[0,1]" % (D + 2 * i, D + 2 * i + 1, F + 2 * i, F + 2 * i + 1, S, S + 1))
        Q = vO + 36
        a("v_pk_mul_f32 v[%d:%d], v[%d:%d], v[%d:%d]" % (Q, Q + 1, D, D + 1, D, D + 1))
        a("v_pk_mul_f32 v[%d:%d], v[%d:%d], v[%d:%d]" % (Q + 2, Q + 3, D + 2, D + 3, D + 2, D + 3))
        for i in range(2, 8):
            q = Q + 2 * (i & 1)
            a("v_pk_fma_f32 v[%d:%d], v[%d:%d], v[%d:%d], v[%d:%d]" % (q, q + 1, D + 2 * i, D + 2 * i + 1, D + 2 * i, D + 2 * i + 1, q, q + 1))
        a("v_pk_add_f32 v[%d:%d], v[%d:%d], v[%d:%d]" % (Q, Q + 1, Q, Q + 1, Q + 2, Q + 3))
        a("v_add_f32 v%d, v%d, v%d" % (Q, Q, Q + 1))
        self.allred_row16("v_add_f32", Q); self.allred_x16("v_add_f32", Q, t0)
        lab = self.lab("lo")
        a("s_cmp_lt_u32 s%d, 16" % sJ); a("s_cbranch_scc1 %s" % lab)
        for i in range(8): a("v_mov_b32 v%d, v%d" % (F + i, F + 8 + i))
        a.label(lab)
        a("v_mul_f32 v%d, 0x3b000000, v%d" % (Q, Q))
        a("v_cvt_pk_bf16_f32 v%d, v%d, v%d" % (t0, MEAN, Q))
        a("v_lshlrev_b32 v%d, 16, v%d" % (S, t0))
        a("v_and_b32 v%d, 0xffff0000, v%d" % (Q, t0))
        a("v_add_f32 v%d, 0x3727c5ac, v%d" % (Q, Q))
        a("v_mov_b32 v%d, v%d" % (S + 1, S))
        a("v_cvt_pk_bf16_f32 v%d, v%d, v%d" % (Q, Q, Q)); a("v_lshlrev_b32 v%d, 16, v%d" % (Q, Q))
        for i in range(4):
            a("v_pk_add_f32 v[%d:%d], v[%d:%d], v[%d:%d] neg_lo:[0,1] neg_hi:[0,1]" % (D + 2 * i, D + 2 * i + 1, F + 2 * i, F + 2 * i + 1, S, S + 1))
        a("v_sqrt_f32 v%d, v%d" % (Q, Q))
        for i in range(4):
            a("v_cvt_pk_bf16_f32 v%d, v%d, v%d" % (X + i, D + 2 * i, D + 2 * i + 1))
        a("v_cvt_pk_bf16_f32 v%d, v%d, v%d" % (Q, Q, Q)); a("v_lshlrev_b32 v%d, 16, v%d" % (Q, Q))
        a("v_rcp_f32 v%d, v%d" % (Q + 2, Q)); a("v_mov_b32 v%d, v%d" % (Q + 1, Q))
        for i in range(4):
            a("v_lshlrev_b32 v%d, 16, v%d" % (D + 2 * i, X + i)); a("v_and_b32 v%d, 0xffff0000, v%d" % (D + 2 * i + 1, X + i))
        a("v_mov_b32 v%d, v%d" % (Q + 3, Q + 2))
        for i in range(4):
            a("v_pk_mul_f32 v[%d:%d], v[%d:%d], v[%d:%d]" % (F + 2 * i, F + 2 * i + 1, D + 2 * i, D + 2 * i + 1, Q + 2, Q + 3))
        for i in range(4):
            a("v_pk_fma_f32 v[%d:%d], v[%d:%d], v[%d:%d], v[%d:%d] neg_lo:[1,0,0] neg_hi:[1,0,0]" % (D + 2 * i, D + 2 * i + 1, F + 2 * i, F + 2 * i + 1, Q, Q + 1, D + 2 * i, D + 2 * i + 1))
        for i in range(4):
            a("v_pk_fma_f32 v[%d:%d], v[%d:%d], v[%d:%d], v[%d:%d]" % (F + 2 * i, F + 2 * i + 1, D + 2 * i, D + 2 * i + 1, Q + 2, Q + 3, F + 2 * i, F + 2 * i + 1))
        for i in range(4):
            a("v_cvt_pk_bf16_f32 v%d, v%d, v%d" % (X + i, F + 2 * i, F + 2 * i + 1))

    def q_slice(self):
        a = self.a
        X = vG + 4
        AF = vG + 12; BF = vO; DQ = vG + 28
        a("ds_write_b128 v%d, v[%d:%d]" % (vG + 52, X, X + 3))
        a("s_waitcnt lgkmcnt(0)")
        for t in range(4):
            a("ds_read_b128 v[%d:%d], v%d offset:%d" % (AF + 4 * t, AF + 4 * t + 3, vG + 53, 64 * t))
        if self.o.get("tsq"): self.ts()
        self.vwait("wq")
        if self.o.get("tsq"): self.ts()
        for nt in range(4):
            a("s_waitcnt lgkmcnt(%d)" % (0 if nt == 0 else 4))
            for t in range(4):
                b = BF + 16 * nt + 4 * t
                a("ds_read_b64_tr_b16 v[%d:%d], v%d offset:%d" % (b, b + 1, vG + 54, L_IMG0 + t * 4096 + nt * 32))
                a("ds_read_b64_tr_b16 v[%d:%d], v%d offset:%d" % (b + 2, b + 3, vG + 54, L_IMG0 + t * 4096 + nt * 32 + 512))
            if nt >= 1:
                a("s_waitcnt lgkmcnt(8)")
                self._q_mfma(nt - 1, AF, BF, DQ)
        a("s_waitcnt lgkmcnt(0)")
        self._q_mfma(3, AF, BF, DQ)
        G = vG + 44
        for nt in range(4):
            g = vO + 4 * nt
            a("v_mov_b32_dpp v%d, v%d quad_perm:[0,0,2,2] row_mask:0xf bank_mask:0xf" % (g, DQ + 4 * nt))
            a("v_mov_b32_dpp v%d, v%d quad_perm:[1,1,3,3] row_mask:0xf bank_mask:0xf" % (g + 2, DQ + 4 * nt))
            a("v_mov_b32 v%d, v%d" % (g + 1, vTagW)); a("v_mov_b32 v%d, s%d" % (g + 3, sT3))
        a("s_mov_b32 exec_lo, 0x55555555"); a("s_mov_b32 exec_hi, 0")
        for nt in range(4):
            g = vO + 4 * nt
            a("buffer_store_dwordx4 v[%d:%d], v%d, s[%d:%d], s%d offen offset:%d" % (g, g + 3, vG + 55, SRD_WS, SRD_WS + 3, sT1, nt * 128))
        for nt in range(4):
            g = vO + 4 * nt
            a("buffer_store_dwordx4 v[%d:%d], v%d, s[%d:%d], s%d offen offset:%d sc1" % (g, g + 3, vG + 55, SRD_WS, SRD_WS + 3, sT0, nt * 128))
        self.vm("pub", 8)
        a("s_mov_b64 exec, -1")

    def _q_mfma(self, nt, AF, BF, DQ):
        for t in range(4):
            b = BF + 16 * nt + 4 * t
            self.a("v_mfma_f32_16x16x32_bf16 v[%d:%d], v[%d:%d], v[%d:%d], %s" % (DQ + 4 * nt, DQ + 4 * nt + 3, AF + 4 * t, AF + 4 * t + 3, b, b + 3, "0" if t == 0 else "v[%d:%d]" % (DQ + 4 * nt, DQ + 4 * nt + 3)))

    def q_pre(self):
        a = self.a
        a("v_add_u32 v%d, %d, v%d" % (vG + 52, L_XN, vG))
        a("v_bfe_u32 v%d, v%d, 2, 1" % (vTmp + 1, vLane)); a("v_lshlrev_b32 v%d, 10, v%d" % (vTmp + 1, vTmp + 1))
        a("v_lshrrev_b32 v%d, 4, v%d" % (vTmp + 2, vLane)); a("v_lshl_add_u32 v%d, v%d, 4, v%d" % (vTmp + 1, vTmp + 2, vTmp + 1))
        a("s_bfe_u32 s%d, s%d, 0x10003" % (sT1, sJ)); a("s_lshl_b32 s%d, s%d, 8" % (sT1, sT1)); a("s_add_u32 s%d, s%d, %d" % (sT1, sT1, L_XN))
        a("v_add_u32 v%d, s%d, v%d" % (vG + 53, sT1, vTmp + 1))
        a("v_bfe_u32 v%d, v%d, 2, 2" % (vTmp + 3, vLane)); a("v_lshl_add_u32 v%d, v%d, 3, v%d" % (vTmp + 3, vTmp + 2, vTmp + 3))
        a("v_lshlrev_b32 v%d, 7, v%d" % (vTmp + 3, vTmp + 3)); a("v_and_b32 v%d, 3, v%d" % (vTmp + 2, vLane))
        a("v_lshl_add_u32 v%d, v%d, 3, v%d" % (vG + 54, vTmp + 2, vTmp + 3))
        a("v_lshrrev_b32 v%d, 4, v%d" % (vTmp, vLane)); a("v_lshlrev_b32 v%d, 12, v%d" % (vTmp, vTmp))
        a("v_and_b32 v%d, 15, v%d" % (vTmp + 1, vLane)); a("v_lshl_add_u32 v%d, v%d, 3, v%d" % (vG + 55, vTmp + 1, vTmp))
        self.tag_consts()
        a("s_lshr_b32 s%d, s%d, 3" % (sT0, sJ)); a("s_lshl_b32 s%d, s%d, 2" % (sT2, sX)); a("s_add_u32 s%d, s%d, s%d" % (sT0, sT0, sT2))
        a("s_lshl_b32 s%d, s%d, 13" % (sT0, sT0)); a("s_and_b32 s%d, s%d, 7" % (sT2, sJ)); a("s_lshl_b32 s%d, s%d, 9" % (sT2, sT2))
        a("s_add_u32 s%d, s%d, s%d" % (sT0, sT0, sT2)); a("s_add_u32 s%d, s%d, %d" % (sT0, sT0, WS_Q))
        a("s_add_u32 s%d, s%d, %d" % (sT1, sT0, WS_QA - WS_Q))
        a("s_and_b32 s%d, s%d, 0xfffffff0" % (sT3, self.sTagW)); a("s_or_b32 s%d, s%d, s%d" % (sT3, sT3, sXcc))

    def q_wait(self):
        a = self.a; o = self.o
        QA = vG + 3; D = vO
        L_QB = L_QP
        a("v_lshlrev_b32 v%d, 4, v%d" % (QA, vLane))
        a("s_lshl_b32 s%d, s%d, 15" % (sT0, sX)); a("s_lshl_b32 s%d, s%d, 12" % (sT1, sB)); a("s_add_u32 s%d, s%d, s%d" % (sT0, sT0, sT1))
        a("s_add_u32 s%d, s%d, %d" % (sSave, sT0, WS_Q))
        a("s_add_u32 s%d, s%d, %d" % (sSave + 1, sT0, WS_QA))
        a("v_mov_b32 v%d, s%d" % (vG + 2, sT3))
        rem = self.bulk[self.bi:]
        pre = o.get("w0pre", 2); sizes = o.get("rounds", [2, 2, 2, 2, 2])
        for (k, t, h) in rem[:pre]: self.load_half(k, t, h)
        if o.get("waitpub", True): a("s_waitcnt vmcnt(%d)" % (4 + 4 * pre))
        rem = rem[pre:]
        rounds = []
        for n in sizes:
            if rem: rounds.append(rem[:n]); rem = rem[n:]
        if rem: rounds.append(rem)
        def poll(local):
            base = sSave + 1 if local else sSave
            for kg in range(4):
                a("s_add_u32 s%d, s%d, %d" % (sT2, base, kg * 8192))
                for u in range(4):
                    d = D + 16 * kg + 4 * u
                    a("buffer_load_dwordx4 v[%d:%d], v%d, s[%d:%d], s%d offen offset:%d %s" % (d, d + 3, QA, SRD_WS, SRD_WS + 3, sT2, u * 1024, o.get("pollflag", "sc1")))
        def check(n, stamp=False):
            a("s_waitcnt vmcnt(%d)" % n)
            if stamp: self.ts()
            t0, t1, t2, t3 = vTmp, vTmp + 1, vTmp + 2, vTmp + 3
            a("v_xor_b32 v%d, v%d, v%d" % (t0, D + 1, vTagW)); a("v_xor_b32 v%d, v%d, v%d" % (t1, D + 3, vG + 2))
            for q in range(1, 16):
                a("v_xor_b32 v%d, v%d, v%d" % (t2, D + 4 * q + 1, vTagW)); a("v_xor_b32 v%d, v%d, v%d" % (t3, D + 4 * q + 3, vG + 2))
                a("v_or_b32 v%d, v%d, v%d" % (t0, t0, t2)); a("v_or_b32 v%d, v%d, v%d" % (t1, t1, t3))
            a("v_lshrrev_b32 v%d, 4, v%d" % (t2, t1)); a("v_or_b32 v%d, v%d, v%d" % (t0, t0, t2))
            a("v_cmp_eq_u32 vcc, 0, v%d" % t1); a("s_cmp_eq_u64 vcc, -1"); a("s_cselect_b32 s%d, 1, 0" % sMode)
            a("v_cmp_eq_u32 vcc, 0, v%d" % t0); a("s_cmp_eq_u64 vcc, -1")
        done = [self.lab("qok") for _ in range(len(rounds) + 1)]
        for r, g in enumerate(rounds):
            poll(True)
            n = 0
            for (k, t, h) in g: self.load_half(k, t, h); n += 4
            check(n, stamp=(o.get("tsr") and r < 3))
            a("s_cbranch_scc1 %s" % done[r])
        lp = self.lab("qpoll")
        a("s_mov_b32 s%d, 0" % sCnt)
        a.label(lp)
        for k in range(2):
            poll(k == 0); check(0)
            a("s_cbranch_scc1 %s" % done[-1])
        a("s_add_u32 s%d, s%d, 1" % (sCnt, sCnt)); a("s_cmp_lt_u32 s%d, %d" % (sCnt, o["spin"])); a("s_cbranch_scc1 %s" % lp)
        a("s_mov_b32 s%d, 2" % sMode)
        a("s_branch %s" % done[-1])
        for r in range(len(rounds)):
            a.label(done[r])
            if r + 1 < len(rounds):
                pass
            a("s_mov_b32 s%d, %d" % (sT3, r + 1)); a("s_branch L_qsum")
        a.label(done[-1])
        a("s_mov_b32 s%d, %d" % (sT3, len(rounds)))
        a.label("L_qsum")
        if o.get("tss"):
            self.ts(); i = self.ts_slot(); a("s_mul_i32 s%d, s%d, 100" % (sTS + i, sT3))
        for u in range(4):
            for e in (0, 2):
                d = D + 4 * u + e
                a("v_add_f32 v%d, v%d, v%d" % (d, d, d + 16)); a("v_add_f32 v%d, v%d, v%d" % (d + 32, d + 32, d + 48))
        for u in range(4):
            for e in (0, 2):
                d = D + 4 * u + e
                a("v_add_f32 v%d, v%d, v%d" % (d, d, d + 32))
        a("v_lshlrev_b32 v%d, 2, v%d" % (vTmp, vLane))
        for u in range(4):
            a("v_cvt_pk_bf16_f32 v%d, v%d, v%d" % (D + 4 * u, D + 4 * u, D + 4 * u + 2))
            a("ds_write_b32 v%d, v%d offset:%d" % (vTmp, D + 4 * u, L_QB + 256 * u))
        if not o["local"]:
            a("s_and_b32 s%d, s%d, 2" % (sMode, sMode))
        a("v_mov_b32 v%d, s%d" % (vTmp + 1, sMode))
        a("ds_write_b32 v%d, v%d offset:%d" % (vTmp, vTmp + 1, L_QB + 1024))
        self.rounds = rounds
        if o.get("rem_before", False):
            for r in range(1, len(rounds)):
                l = self.lab("rb")
                a("s_cmp_gt_u32 s%d, %d" % (sT3, r)); a("s_cbranch_scc1 %s" % l)
                for (k, t, h) in rounds[r]: self.load_half(k, t, h)
                a.label(l)
            self.rounds = rounds[:1]
        a("s_waitcnt lgkmcnt(0)")

    def q_join(self):
        a = self.a
        L_QB = L_QP
        a("v_bfe_u32 v%d, v%d, 2, 2" % (vTmp, vLane)); a("v_lshlrev_b32 v%d, 4, v%d" % (vTmp, vTmp))
        a("v_lshrrev_b32 v%d, 4, v%d" % (vTmp + 1, vLane)); a("v_lshl_add_u32 v%d, v%d, 2, v%d" % (vTmp, vTmp + 1, vTmp))
        a("v_and_b32 v%d, 3, v%d" % (vTmp + 1, vLane)); a("v_add_u32 v%d, v%d, v%d" % (vTmp, vTmp, vTmp + 1))
        a("v_lshlrev_b32 v%d, 4, v%d" % (vTmp, vTmp)); a("v_mov_b32 v%d, 0" % (vTmp + 1))
        a("s_barrier")
        a("ds_read_b128 v[%d:%d], v%d offset:%d" % (vQ, vQ + 3, vTmp, L_QB))
        a("ds_read_b32 v%d, v%d offset:%d" % (vTmp + 2, vTmp + 1, L_QB + 1024))
        a("v_mov_b32 v%d, 0xff800000" % vM); a("v_mov_b32 v%d, 0" % vL)
        for i in range(32): a("v_mov_b32 v%d, 0" % (vO + i))
        a("s_waitcnt lgkmcnt(0)")
        a("v_readfirstlane_b32 s%d, v%d" % (sMode, vTmp + 2))
        a("s_cmp_eq_u32 s%d, 2" % sMode); a("s_cbranch_scc1 L_fail")
        lab = self.lab("nw0")
        a("s_cmp_lg_u32 s%d, 0" % sWave); a("s_cbranch_scc1 %s" % lab)
        for r in range(1, len(self.rounds)):
            l = self.lab("rb")
            a("s_cmp_gt_u32 s%d, %d" % (sT3, r)); a("s_cbranch_scc1 %s" % l)
            for (k, t, h) in self.rounds[r]: self.load_half(k, t, h)
            a.label(l)
        a.label(lab)

    def qwait(self, tag):
        idx = self.sq.index(tag)
        n = len(self.sq) - 1 - idx
        assert n <= 63
        self.a("s_waitcnt vmcnt(%d)" % n)

    def set_soff(self, t):
        a = self.a
        a("s_add_u32 s%d, s%d, %d" % (sOffA, sRot, 2 * t)); a("s_add_u32 s%d, s%d, %d" % (sOffB, sRot, 2 * t + 1))
        a("s_and_b32 s%d, s%d, 15" % (sOffA, sOffA)); a("s_and_b32 s%d, s%d, 15" % (sOffB, sOffB))
        a("s_lshl_b32 s%d, s%d, 12" % (sOffA, sOffA)); a("s_lshl_b32 s%d, s%d, 12" % (sOffB, sOffB))

    def tile(self, t, hook=None, qkhook=None):
        a = self.a
        st = t % self.NS
        aK = aKS[st]; vV = vVS[st]
        nt = self.o["ntflag"]
        tn = self.plan.get(t)
        refill = tn is not None
        if refill:
            assert tn % self.NS == st or tn - self.NS < t, (t, tn)
            assert tn - self.NS <= t
        nocomp = self.o.get("nocompute")
        if refill: self.set_soff(tn)
        for i in range(8):
            self.qwait(("K", t, i))
            if not nocomp:
                a("v_mfma_f32_16x16x32_bf16 v[%d:%d], a[%d:%d], v[%d:%d], 0" % (vS + 4 * i, vS + 4 * i + 3, aK + 4 * i, aK + 4 * i + 3, vQ, vQ + 3))
            if refill:
                so = sOffA if i < 4 else sOffB
                aN = aKS[tn % self.NS]
                a("buffer_load_dwordx4 a[%d:%d], v%d, s[%d:%d], s%d offen offset:%d %s" % (aN + 4 * i, aN + 4 * i + 3, vOffK, SRD_K, SRD_K + 3, so, (i & 3) * 1024, nt))
                self.sq.append(("K", tn, i))
        if qkhook: qkhook()
        if not nocomp: self.softmax_a()
        for p in range(4):
            self.qwait(("V", t, 2 * p + 1))
            if not nocomp:
                for j in range(8):
                    a("v_perm_b32 v%d, v%d, v%d, s%d" % (vS + 4 * j + p, vV + 4 * (2 * p + 1) + (j >> 1), vV + 4 * (2 * p) + (j >> 1), sSelHi if j & 1 else sSelLo))
            if refill:
                for i in (2 * p, 2 * p + 1):
                    so = sOffA if i < 4 else sOffB
                    vN = vVS[tn % self.NS]
                    a("buffer_load_dwordx4 v[%d:%d], v%d, s[%d:%d], s%d offen offset:%d %s" % (vN + 4 * i, vN + 4 * i + 3, vOffV, SRD_V, SRD_V + 3, so, (i & 3) * 1024, nt))
                    self.sq.append(("V", tn, i))
        if hook: hook()
        if not nocomp: self.softmax_b()

    def softmax_a(self):
        a = self.a
        for i in range(8): a("v_mov_b32_dpp v%d, v%d quad_perm:[0,0,0,0] row_mask:0xf bank_mask:0xf" % (vT + i, vS + 4 * i))
        for c in range(1, 4):
            for i in range(8):
                a("v_add_f32_dpp v%d, v%d, v%d quad_perm:[%d,%d,%d,%d] row_mask:0xf bank_mask:0xf" % (vT + i, vS + 4 * i + c, vT + i, c, c, c, c))
        for p in range(4): a("v_cvt_pk_bf16_f32 v%d, v%d, v%d" % (vP + p, vT + 2 * p, vT + 2 * p + 1))
        for p in range(4):
            a("v_lshlrev_b32 v%d, 16, v%d" % (vU + 2 * p, vP + p)); a("v_and_b32 v%d, 0xffff0000, v%d" % (vU + 2 * p + 1, vP + p))
        for p in range(4): a("v_pk_mul_f32 v[%d:%d], v[%d:%d], s[%d:%d]" % (vU + 2 * p, vU + 2 * p + 1, vU + 2 * p, vU + 2 * p + 1, sScale, sScale + 1))
        for p in range(4): a("v_cvt_pk_bf16_f32 v%d, v%d, v%d" % (vP + p, vU + 2 * p, vU + 2 * p + 1))
        for p in range(4):
            a("v_lshlrev_b32 v%d, 16, v%d" % (vT + 2 * p, vP + p)); a("v_and_b32 v%d, 0xffff0000, v%d" % (vT + 2 * p + 1, vP + p))
        t0, t1 = vTmp, vTmp + 1
        a("v_max3_f32 v%d, v%d, v%d, v%d" % (t0, vT, vT + 1, vT + 2)); a("v_max3_f32 v%d, v%d, v%d, v%d" % (t1, vT + 3, vT + 4, vT + 5))
        a("v_max3_f32 v%d, v%d, v%d, v%d" % (t0, t0, vT + 6, vT + 7)); a("v_max_f32 v%d, v%d, v%d" % (t0, t0, t1))
        self.allred_x16("v_max_f32", t0, t1); self.allred_x32("v_max_f32", t0, t1)
        a("v_max_f32 v%d, v%d, v%d" % (t0, t0, vM))
        a("v_sub_f32 v%d, v%d, v%d" % (vAl, vM, t0)); a("v_mul_f32 v%d, s%d, v%d" % (vAl, sLog2e, vAl))
        a("v_mov_b32 v%d, v%d" % (vM, t0))
        a("v_mul_f32 v%d, s%d, v%d" % (t1, sLog2e, t0))
        a("v_exp_f32 v%d, v%d" % (vAl, vAl))
        for i in range(8): a("v_fma_f32 v%d, v%d, s%d, -v%d" % (vU + i, vT + i, sLog2e, t1))
        for i in range(8): a("v_exp_f32 v%d, v%d" % (vU + i, vU + i))
        for p in range(4): a("v_cvt_pk_bf16_f32 v%d, v%d, v%d" % (vP + p, vU + 2 * p, vU + 2 * p + 1))
        a("v_pk_add_f32 v[%d:%d], v[%d:%d], v[%d:%d]" % (vU, vU + 1, vU, vU + 1, vU + 2, vU + 3))
        a("v_pk_add_f32 v[%d:%d], v[%d:%d], v[%d:%d]" % (vU + 4, vU + 5, vU + 4, vU + 5, vU + 6, vU + 7))
        a("v_pk_add_f32 v[%d:%d], v[%d:%d], v[%d:%d]" % (vU, vU + 1, vU, vU + 1, vU + 4, vU + 5))
        a("v_fma_f32 v%d, v%d, v%d, v%d" % (vL, vL, vAl, vU)); a("v_add_f32 v%d, v%d, v%d" % (vL, vL, vU + 1))
        for i in range(16):
            a("v_pk_mul_f32 v[%d:%d], v[%d:%d], v[%d:%d] op_sel_hi:[1,0]" % (vO + 2 * i, vO + 2 * i + 1, vO + 2 * i, vO + 2 * i + 1, vAl, vAl + 1))

    def softmax_b(self):
        a = self.a
        for j in range(8):
            a("v_mfma_f32_16x16x32_bf16 v[%d:%d], v[%d:%d], v[%d:%d], v[%d:%d]" % (vO + 4 * j, vO + 4 * j + 3, vS + 4 * j, vS + 4 * j + 3, vP, vP + 3, vO + 4 * j, vO + 4 * j + 3))

    def stream(self, weights_hook=None):
        self.sq = [(k, t, i) for t in range(self.NS) for k in "KV" for i in range(8)]
        plan = self.o.get("plan")
        if plan is None:
            plan = {3: [(0, 3), (1, 4), (3, 5), (5, 6), (6, 7)], 2: [(0, 2), (1, 3), (2, 4), (3, 5), (5, 6), (6, 7)]}[self.NS]
        self.plan = dict((int(x), int(y)) for x, y in plan)
        assert sorted(self.plan.values()) == list(range(self.NS, 8))
        last = [t for t, u in self.plan.items() if u == 7][0]
        for t in range(8):
            hook = None; qkhook = None
            if t == last and self.o.get("endbar"):
                hook = lambda: self.a("s_barrier")
            if t == 7: qkhook = weights_hook
            self.tile(t, hook, qkhook)
            if t == last: self.ts()

    def wg_combine(self):
        a = self.a
        t0, t1 = vTmp, vTmp + 1
        self.allred_x16("v_add_f32", vL, t0); self.allred_x32("v_add_f32", vL, t0)
        a("v_bfe_u32 v%d, v%d, 2, 2" % (t0, vLane)); a("v_lshlrev_b32 v%d, 9, v%d" % (t0, t0))
        a("v_lshrrev_b32 v%d, 4, v%d" % (t1, vLane)); a("v_lshl_add_u32 v%d, v%d, 7, v%d" % (t0, t1, t0))
        a("s_lshl_b32 s%d, s%d, 11" % (sT0, sWave)); a("v_add_u32 v%d, s%d, v%d" % (t0, sT0, t0))
        a("v_bfe_u32 v%d, v%d, 2, 2" % (t1, vLane)); a("v_lshlrev_b32 v%d, 4, v%d" % (t1, t1))
        a("s_lshl_b32 s%d, s%d, 2" % (sT0, sWave)); a("v_add_u32 v%d, s%d, v%d" % (t1, sT0, t1))
        a("s_mov_b32 s%d, 0x11111111" % sMsk); a("s_mov_b32 s%d, 0x11111111" % (sMsk + 1))
        a("s_mov_b64 exec, s[%d:%d]" % (sMsk, sMsk + 1))
        for j in range(8):
            a("ds_write_b128 v%d, v[%d:%d] offset:%d" % (t0, vO + 4 * j, vO + 4 * j + 3, L_CO + 16 * j))
        a("s_mov_b64 exec, 0x1111")
        a("ds_write_b32 v%d, v%d offset:%d" % (t1, vM, L_CML)); a("ds_write_b32 v%d, v%d offset:%d" % (t1, vL, L_CML + 64))
        a("s_mov_b64 exec, -1")
        a("s_waitcnt lgkmcnt(0)")
        a("s_barrier")
        lab = self.lab("nocomb")
        a("s_cmp_ge_u32 s%d, 2" % sWave); a("s_cbranch_scc1 %s" % lab)
        R = vG + 12
        a("v_lshlrev_b32 v%d, 4, v0" % t0)
        a("v_lshrrev_b32 v%d, 5, v0" % t1); a("v_lshlrev_b32 v%d, 4, v%d" % (t1, t1))
        a("ds_read_b128 v[%d:%d], v%d offset:%d" % (R, R + 3, t1, L_CML))
        a("ds_read_b128 v[%d:%d], v%d offset:%d" % (R + 4, R + 7, t1, L_CML + 64))
        for w in range(4):
            a("ds_read_b128 v[%d:%d], v%d offset:%d" % (R + 8 + 4 * w, R + 11 + 4 * w, t0, L_CO + 2048 * w))
        a("s_waitcnt lgkmcnt(4)")
        Mx = R + 24
        a("v_max3_f32 v%d, v%d, v%d, v%d" % (Mx, R, R + 1, R + 2)); a("v_max_f32 v%d, v%d, v%d" % (Mx, Mx, R + 3))
        for w in range(4):
            a("v_sub_f32 v%d, v%d, v%d" % (R + w, R + w, Mx))
        for w in range(4):
            a("v_mul_f32 v%d, s%d, v%d" % (R + w, sLog2e, R + w))
        for w in range(4):
            a("v_exp_f32 v%d, v%d" % (R + w, R + w))
        Ls = R + 25
        a("v_mul_f32 v%d, v%d, v%d" % (Ls, R, R + 4))
        for w in range(1, 4): a("v_fmac_f32 v%d, v%d, v%d" % (Ls, R + w, R + 4 + w))
        a("s_waitcnt lgkmcnt(0)")
        Oa = R + 26
        for e in range(4): a("v_mul_f32 v%d, v%d, v%d" % (Oa + e, R, R + 8 + e))
        for w in range(1, 4):
            for e in range(4): a("v_fmac_f32 v%d, v%d, v%d" % (Oa + e, R + w, R + 8 + 4 * w + e))
        G = R + 30
        self.tag4(G, [Oa, Oa + 1, Oa + 2, Oa + 3])
        self.tag4(G + 4, [Mx, Ls, Mx, Ls])
        a("s_lshl_b32 s%d, s%d, 11" % (sT0, sP)); a("s_add_u32 s%d, s%d, %d" % (sT0, sT0, WS_PO))
        a("s_lshl_b32 s%d, s%d, 7" % (sT1, sP)); a("s_add_u32 s%d, s%d, %d" % (sT1, sT1, WS_PML))
        def stores(fl):
            a("buffer_store_dwordx4 v[%d:%d], v%d, s[%d:%d], s%d offen %s" % (G, G + 3, t0, SRD_WS, SRD_WS + 3, sT0, fl))
            a("s_mov_b32 s%d, 1" % sMsk); a("s_mov_b32 s%d, 1" % (sMsk + 1)); a("s_mov_b64 exec, s[%d:%d]" % (sMsk, sMsk + 1))
            a("buffer_store_dwordx4 v[%d:%d], v%d, s[%d:%d], s%d offen %s" % (G + 4, G + 7, t1, SRD_WS, SRD_WS + 3, sT1, fl))
            a("s_mov_b64 exec, -1")
        self.by_mode(stores)
        a.label(lab)

    def by_mode(self, fn):
        a = self.a
        l1 = self.lab("m1"); l2 = self.lab("m2")
        a("s_cmp_eq_u32 s%d, 0" % sMode); a("s_cbranch_scc1 %s" % l1)
        fn(""); a("s_branch %s" % l2)
        a.label(l1); fn("sc1"); a.label(l2)

    def epilogue(self):
        a = self.a
        a.label("L_fail")
        a.label("L_done")
        a("s_mov_b64 exec, -1")
        if self.o["ts"]:
            self.ts()
            a("s_lshl_b32 s%d, s2, 2" % sT0); a("s_add_u32 s%d, s%d, s%d" % (sT0, sT0, sWave)); a("s_lshl_b32 s%d, s%d, 6" % (sT0, sT0))
            a("s_add_u32 s%d, s%d, %d" % (sT0, sT0, WS_TS))
            a("v_mov_b32 v%d, 0" % vTmp)
            for i in range(self.nts):
                a("v_writelane_b32 v%d, s%d, %d" % (vTmp, sTS + i, i))
            a("v_writelane_b32 v%d, s%d, 15" % (vTmp, sXcc))
            a("v_lshlrev_b32 v%d, 2, v%d" % (vTmp + 1, vLane))
            a("s_mov_b64 exec, 0xffff")
            a("buffer_store_dword v%d, v%d, s[%d:%d], s%d offen" % (vTmp, vTmp + 1, SRD_WS, SRD_WS + 3, sT0))
        a("s_waitcnt vmcnt(0)")
        a.label("L_end")
        a("s_endpgm")

    def build(self):
        o = self.o
        self.prologue()
        a = self.a
        if o.get("noq"):
            self.issue_bulk(99)
            a("s_mov_b32 s%d, 0" % sMode); a("v_mov_b32 v%d, 0" % vTagW)
            self.ts(); self.ts()
        else:
            if o.get("prio0"):
                l = self.lab("pr"); a("s_cmp_lg_u32 s%d, 0" % sWave); a("s_cbranch_scc1 %s" % l); a("s_setprio 3"); a.label(l)
            a("s_cmp_lg_u32 s%d, 0" % sWave); a("s_cbranch_scc1 L_helper")
            self.issue_bulk(o.get("w0start", 0))
            self.q_pre()
            self.ln_x()
            self.q_slice()
            self.ts()
            self.q_wait()
            a("s_branch L_qjoin")
            a.label("L_helper")
            self.helper_startup()
            a.label("L_qjoin")
            self.q_join()
            self.ts()
        import tail
        tail.emit(self)
        self.epilogue()
        n = self.a.fix_hazards()
        head = ["; generated by gen.py (hand-written generator) ; hazard nops inserted: %d" % n,
                "; @launch grid=(256,1,1) block=(256,1,1) lds=%d" % LDS_SIZE,
                '.amdgcn_target "amdgcn-amd-amdhsa--gfx950"', ".text", ".globl %s" % NAME, ".p2align 8",
                ".type %s,@function" % NAME, "%s:" % NAME]
        tailtxt = ['.section .rodata,"a"', ".p2align 6", ".amdhsa_kernel %s" % NAME,
                   "  .amdhsa_next_free_vgpr 512", "  .amdhsa_next_free_sgpr 102", "  .amdhsa_accum_offset 256",
                   "  .amdhsa_group_segment_fixed_size 0", "  .amdhsa_kernarg_size 96", "  .amdhsa_user_sgpr_count 2",
                   "  .amdhsa_user_sgpr_kernarg_segment_ptr 1", "  .amdhsa_system_sgpr_workgroup_id_x 1",
                   ".end_amdhsa_kernel"]
        return "\n".join(head) + "\n" + self.a.text() + "\n".join(tailtxt) + "\n"

if __name__ == "__main__":
    import json
    opt = json.loads(sys.argv[1]) if len(sys.argv) > 1 else {}
    g = Gen(**opt)
    print(g.build())
```

```python
import sys
sys.path.insert(0, "gen")
from asmlib import Asm

NAME = "sequential_preLN__gqa_block_cached__swiglu_ffn__decode_kernel"

WS_EPOCH = 0x0
WS_Q     = 0x1A0000
WS_PO    = 0x10000
WS_PML   = 0x90000
WS_YP    = 0xA0000
WS_Y     = 0x120000
WS_OP    = 0x130000
WS_QA    = 0x1E0000
WS_DBG   = 0x300000
WS_TS    = 0x400000
WS_SIZE  = 0x10000000

L_IMG0 = 0x0000
L_IMG1 = 0x4000
L_XN   = 0x8000
L_QP   = 0xA000
L_CO   = 0xB800
L_CML  = 0xD800
L_OA   = 0xD900
L_HST  = 0xDA00
L_HN   = 0xDB00
L_GU   = 0xE400
LDS_SIZE = 0xF000

sPX, sPK, sPV, sPWQ, sPWO, sPBX, sPG, sPU, sPD, sPOUT, sPDBG, sPWS = [4 + 2 * i for i in range(12)]
SRD_K, SRD_V, SRD_WS, SRD_W1, SRD_W2, SRD_W3, SRD_X = 28, 32, 36, 40, 44, 48, 52
sX, sJ, sWave, sB, sTag, sXcc, sSelLo, sSelHi = 56, 57, 58, 59, 60, 61, 62, 63
sTSel = 64
sChkA, sChkB = 68, 69
sScale = 70
sLog2e, sCnt = 72, 73
sOffA, sOffB = 74, 75
sRot, sMode = 76, 77
sT0, sT1, sT2, sT3 = 78, 79, 80, 81
sSave = 82
sMsk = 84
sEp1 = 86
sP = 87
sTS = 88
vTid, vLane, vOffK, vOffV = 0, 1, 2, 3
vQ = 4
vM, vL, vAl = 8, 9, 10
vTmp = 12
vO = 16
vS = 48
vVS = [80, 112, 144]
vT = 176
vU = 184
vP = 192
vTagW = 196
vG = 198
aKS = [0, 32, 64]

def sr(n, k=1): return "s%d" % n if k == 1 else "s[%d:%d]" % (n, n + k - 1)
def vr(n, k=1): return "v%d" % n if k == 1 else "v[%d:%d]" % (n, n + k - 1)
def ar(n, k=1): return "a%d" % n if k == 1 else "a[%d:%d]" % (n, n + k - 1)

class Gen:
    def __init__(self, **opt):
        self.o = dict(stop_after=None, ts=False, dbg=None, rotw=1, rotx=4, rotj=0, ntflag="nt", spin=3000,
                      local=True, sched=None, prefetch_code=True)
        self.o.update(opt)
        self.a = Asm()
        self.nts = 0
        self.sTagW = sTag
        self.uid = 0
        self.vq = []
        self.NS = self.o.get("NS", 3)
        self.bulk = [(k, t, h) for t in range(self.NS) for k in "KV" for h in range(2)]
        self.bi = 0
    def lab(self, p):
        self.uid += 1
        return "L_%s_%d" % (p, self.uid)
    def ts(self):
        if not self.o["ts"]: return
        a = self.a
        i = self.nts; self.nts += 1
        assert i < 12
        a("s_memrealtime s[102-2]" if False else "s_memrealtime s[%d:%d]" % (100, 101))
        a("s_waitcnt lgkmcnt(0)")
        a("s_mov_b32 s%d, s100" % (sTS + i))

    def ts_slot(self):
        if not self.o["ts"]: return None
        i = self.nts; self.nts += 1
        return i
    def ts_at(self, i, val=None):
        if i is None: return
        a = self.a
        if val is not None:
            a("s_mov_b32 s%d, %d" % (sTS + i, val)); return
        a("s_memrealtime s[100:101]"); a("s_waitcnt lgkmcnt(0)"); a("s_mov_b32 s%d, s100" % (sTS + i))

    def vm(self, tag, n=1): self.vq += [tag] * n
    def vwait(self, tag):
        idx = max(i for i, t in enumerate(self.vq) if t == tag)
        self.a("s_waitcnt vmcnt(%d)" % (len(self.vq) - 1 - idx))
    def issue_bulk(self, n):
        for _ in range(n):
            if self.bi < len(self.bulk):
                k, t, h = self.bulk[self.bi]; self.bi += 1
                self.load_half(k, t, h); self.vm("bulk", 4)

    def make_srd(self, srd, ptr, size, off_sreg=None, off_imm=None):
        a = self.a
        if off_sreg is None and off_imm is None:
            a("s_mov_b32 s%d, s%d" % (srd, ptr)); a("s_mov_b32 s%d, s%d" % (srd + 1, ptr + 1))
        elif off_sreg is not None:
            a("s_add_u32 s%d, s%d, s%d" % (srd, ptr, off_sreg)); a("s_addc_u32 s%d, s%d, 0" % (srd + 1, ptr + 1))
        else:
            a("s_add_u32 s%d, s%d, %d" % (srd, ptr, off_imm)); a("s_addc_u32 s%d, s%d, 0" % (srd + 1, ptr + 1))
        a("s_mov_b32 s%d, %s" % (srd + 2, size if isinstance(size, str) else "0x%x" % size))
        a("s_mov_b32 s%d, 0x20000" % (srd + 3))

    def tag4(self, dst, src):
        for k in range(4):
            self.a("v_perm_b32 v%d, v%d, v%d, s%d" % (dst + k, src[k], vTagW, sTSel + k))
    def chk4(self, d, t0, t1):
        a = self.a
        a("v_perm_b32 v%d, v%d, v%d, s%d" % (t0, d + 1, d, sChkA))
        a("v_perm_b32 v%d, v%d, v%d, s%d" % (t1, d + 3, d + 2, sChkB))
        a("v_or_b32 v%d, v%d, v%d" % (t0, t0, t1))
        a("v_cmp_eq_u32 vcc, v%d, v%d" % (t0, vTagW))

    def allred_row16(self, op, r, t=None):
        for sh in (8, 4, 2, 1):
            self.a("%s_dpp v%d, v%d, v%d row_ror:%d row_mask:0xf bank_mask:0xf" % (op, r, r, r, sh))
    def allred_x16(self, op, r, t):
        a = self.a
        a("v_mov_b32 v%d, v%d" % (t, r)); a("v_permlane16_swap_b32 v%d, v%d" % (r, t)); a("%s v%d, v%d, v%d" % (op, r, r, t))
    def allred_x32(self, op, r, t):
        a = self.a
        a("v_mov_b32 v%d, v%d" % (t, r)); a("v_permlane32_swap_b32 v%d, v%d" % (r, t)); a("%s v%d, v%d, v%d" % (op, r, r, t))

    def prologue(self):
        a = self.a; o = self.o
        a("s_cmp_ge_u32 s2, 256"); a("s_cbranch_scc1 L_end")
        for q in range(o.get("jumps", 0)):
            a("s_branch L_jmp%d" % q); a.raw(".fill %d, 4, 0xbf800000" % (o.get("jgap", 1024) // 4)); a.label("L_jmp%d" % q)
        a("s_load_dwordx16 s[4:19], s[0:1], 0")
        a("s_load_dwordx8 s[20:27], s[0:1], 64")
        if o["ts"]:
            for i in range(12): a("s_mov_b32 s%d, 0" % (sTS + i))
        self.ts()
        a("v_and_b32 v%d, 63, v0" % vLane)
        a("v_lshrrev_b32 v%d, 6, v0" % vTmp)
        a("s_and_b32 s%d, s2, 7" % sX)
        a("v_readfirstlane_b32 s%d, v%d" % (sWave, vTmp))
        a("s_lshr_b32 s%d, s2, 3" % sJ)
        a("s_lshr_b32 s%d, s%d, 4" % (sB, sJ))
        a("s_lshl_b32 s%d, s%d, 5" % (sP, sX)); a("s_add_u32 s%d, s%d, s%d" % (sP, sP, sJ))
        a("v_bfe_u32 v%d, v%d, 2, 2" % (vTmp, vLane)); a("v_lshlrev_b32 v%d, 8, v%d" % (vOffK, vTmp))
        a("v_lshrrev_b32 v%d, 4, v%d" % (vTmp, vLane)); a("v_lshl_add_u32 v%d, v%d, 6, v%d" % (vOffK, vTmp, vOffK))
        a("v_and_b32 v%d, 3, v%d" % (vTmp, vLane)); a("v_lshl_add_u32 v%d, v%d, 4, v%d" % (vOffK, vTmp, vOffK))
        a("v_lshlrev_b32 v%d, 4, v%d" % (vOffV, vLane))
        a("s_lshl_b32 s%d, s%d, 16" % (sT0, sWave))
        a("v_add_u32 v%d, s%d, v%d" % (vOffK, sT0, vOffK)); a("v_add_u32 v%d, s%d, v%d" % (vOffV, sT0, vOffV))
        a("v_lshrrev_b32 v%d, 5, v%d" % (vTmp, vLane)); a("v_and_b32 v%d, 31, v%d" % (vTmp + 1, vLane))
        a("v_lshlrev_b32 v%d, 10, v%d" % (vG, vTmp)); a("v_lshl_add_u32 v%d, v%d, 4, v%d" % (vG, vTmp + 1, vG))
        a("v_lshrrev_b32 v%d, 3, v%d" % (vTmp, vLane)); a("v_lshlrev_b32 v%d, 13, v%d" % (vG + 1, vTmp))
        a("v_and_b32 v%d, 7, v%d" % (vTmp, vLane)); a("v_lshl_add_u32 v%d, v%d, 4, v%d" % (vG + 1, vTmp, vG + 1))
        a("s_mul_i32 s%d, s%d, %d" % (sRot, sWave, o["rotw"])); a("s_mul_i32 s%d, s%d, %d" % (sT1, sX, o["rotx"]))
        a("s_add_u32 s%d, s%d, s%d" % (sRot, sRot, sT1)); a("s_mul_i32 s%d, s%d, %d" % (sT1, sJ, o["rotj"]))
        a("s_add_u32 s%d, s%d, s%d" % (sRot, sRot, sT1)); a("s_and_b32 s%d, s%d, 15" % (sRot, sRot))
        a("s_lshl_b32 s%d, s%d, 3" % (sT1, sB)); a("s_add_u32 s%d, s%d, s%d" % (sT1, sT1, sX)); a("s_lshl_b32 s%d, s%d, 4" % (sT1, sT1))
        a("s_and_b32 s%d, s%d, 15" % (sT2, sJ)); a("s_add_u32 s%d, s%d, s%d" % (sT1, sT1, sT2)); a("s_lshl_b32 s%d, s%d, 18" % (sT1, sT1))
        a("s_lshl_b32 s%d, s%d, 10" % (sT2, sX)); a("s_and_b32 s%d, s%d, 7" % (sT3, sJ)); a("s_lshl_b32 s%d, s%d, 7" % (sT3, sT3))
        a("s_add_u32 s%d, s%d, s%d" % (sT2, sT2, sT3)); a("s_lshr_b32 s%d, s%d, 3" % (sT3, sJ)); a("s_lshl_b32 s%d, s%d, 20" % (sT3, sT3))
        a("s_add_u32 s%d, s%d, s%d" % (sT2, sT2, sT3))
        a("s_waitcnt lgkmcnt(0)")
        self.make_srd(SRD_X, sPX, 2048)
        self.make_srd(SRD_W1, sPWQ, "s%d" % sT3 if False else 0x400000, off_sreg=sT2)
        a("s_sub_u32 s%d, 0x400000, s%d" % (SRD_W1 + 2, sT2))
        self.make_srd(SRD_K, sPK, 0x40000, off_sreg=sT1)
        self.make_srd(SRD_WS, sPWS, WS_SIZE)
        a("s_load_dword s%d, s[%d:%d], 0x%x" % (sTag, sPWS, sPWS + 1, WS_EPOCH))
        lab = self.lab("w0")
        a("s_cmp_lg_u32 s%d, 0" % sWave); a("s_cbranch_scc1 %s" % lab)
        a("buffer_load_dwordx4 v[%d:%d], v%d, s[%d:%d], 0 offen" % (vG + 4, vG + 7, vG, SRD_X, SRD_X + 3))
        a("buffer_load_dwordx4 v[%d:%d], v%d, s[%d:%d], 0 offen offset:512" % (vG + 8, vG + 11, vG, SRD_X, SRD_X + 3))
        self.vm("x", 2)
        for c in range(16):
            a("s_mov_b32 m0, %d" % (L_IMG0 + c * 1024))
            a("s_mov_b32 s%d, %d" % (sOffA, c * 8 * 8192))
            a("buffer_load_dwordx4 v%d, s[%d:%d], s%d offen nt lds" % (vG + 1, SRD_W1, SRD_W1 + 3, sOffA))
        self.vm("wq", 16)
        if o.get("touch", True):
            a("s_lshl_b32 s%d, s%d, 15" % (sT2, sX)); a("s_lshl_b32 s%d, s%d, 12" % (sT3, sB)); a("s_add_u32 s%d, s%d, s%d" % (sT2, sT2, sT3))
            a("s_add_u32 s%d, s%d, %d" % (sT2, sT2, WS_QA))
            a("v_and_b32 v%d, 31, v%d" % (vTmp, vLane)); a("v_lshlrev_b32 v%d, 7, v%d" % (vTmp, vTmp))
            a("v_lshrrev_b32 v%d, 5, v%d" % (vTmp + 1, vLane)); a("v_lshl_add_u32 v%d, v%d, 13, v%d" % (vTmp, vTmp + 1, vTmp))
            a("buffer_load_dword v%d, v%d, s[%d:%d], s%d offen %s" % (vG + 56, vTmp, SRD_WS, SRD_WS + 3, sT2, o.get("touchflag", "sc1")))
            a("s_add_u32 s%d, s%d, 16384" % (sT2, sT2))
            a("buffer_load_dword v%d, v%d, s[%d:%d], s%d offen %s" % (vG + 57, vTmp, SRD_WS, SRD_WS + 3, sT2, o.get("touchflag", "sc1")))
            self.vm("touch", 2)
        a.label(lab)
        self.make_srd(SRD_V, sPV, 0x40000, off_sreg=sT1)
        a("s_barrier")
        a("s_mov_b32 s%d, 0x05040100" % sSelLo); a("s_mov_b32 s%d, 0x07060302" % sSelHi)
        for k in range(4): a("s_mov_b32 s%d, 0x%08x" % (sTSel + k, 0x07060500 + k))
        a("s_mov_b32 s%d, 0x0c0c0400" % sChkA); a("s_mov_b32 s%d, 0x04000c0c" % sChkB)
        a("s_mov_b32 s%d, 0x3db504f3" % sScale); a("s_mov_b32 s%d, 0x3db504f3" % (sScale + 1)); a("s_mov_b32 s%d, 0x3fb8aa3b" % sLog2e)
        a("s_getreg_b32 s%d, hwreg(HW_REG_XCC_ID, 0, 4)" % sXcc)

    def soff_half(self, t, half, dst):
        a = self.a
        a("s_add_u32 s%d, s%d, %d" % (dst, sRot, 2 * t + half))
        a("s_and_b32 s%d, s%d, 15" % (dst, dst)); a("s_lshl_b32 s%d, s%d, 12" % (dst, dst))

    def load_half(self, kind, t, half, dyn=False):
        a = self.a
        so = sOffA if half == 0 else sOffB
        if not dyn: self.soff_half(t, half, so)
        setsel = t % self.NS
        for i in range(4):
            slot = 4 * half + i
            if kind == "K":
                dst = ar(aKS[setsel] + 4 * slot, 4); voff = vOffK; srd = SRD_K
            else:
                dst = vr(vVS[setsel] + 4 * slot, 4); voff = vOffV; srd = SRD_V
            a("buffer_load_dwordx4 %s, v%d, s[%d:%d], s%d offen offset:%d %s" % (dst, voff, srd, srd + 3, so, i * 1024, self.o["ntflag"]))

    def tag_consts(self):
        a = self.a
        a("s_waitcnt lgkmcnt(0)")
        a("s_and_b32 s%d, s%d, 0xff" % (sT0, sTag))
        a("s_add_u32 s%d, s%d, 0x35" % (sT1, sT0)); a("s_and_b32 s%d, s%d, 0xff" % (sT1, sT1)); a("s_lshl_b32 s%d, s%d, 8" % (sT1, sT1))
        a("s_add_u32 s%d, s%d, 0x6a" % (sT2, sT0)); a("s_and_b32 s%d, s%d, 0xff" % (sT2, sT2)); a("s_lshl_b32 s%d, s%d, 16" % (sT2, sT2))
        a("s_add_u32 s%d, s%d, 0xc1" % (sT3, sT0)); a("s_lshl_b32 s%d, s%d, 24" % (sT3, sT3))
        a("s_or_b32 s%d, s%d, s%d" % (sT0, sT0, sT1)); a("s_or_b32 s%d, s%d, s%d" % (sT2, sT2, sT3)); a("s_or_b32 s%d, s%d, s%d" % (sT0, sT0, sT2))
        a("s_add_u32 s%d, s%d, 1" % (sEp1, sTag))
        a("s_mov_b32 s%d, s%d" % (self.sTagW, sT0))
        a("v_mov_b32 v%d, s%d" % (vTagW, sT0))

    def helper_startup(self):
        a = self.a; o = self.o
        W = o.get("win", 10)
        n = 0
        for (k, t, h) in self.bulk:
            if n + 4 > W: a("s_waitcnt vmcnt(%d)" % max(W - 4, 0))
            self.load_half(k, t, h); n += 4
        self.tag_consts()

    def ln_x(self):
        a = self.a
        X = vG + 4; F = vO
        t0, t1 = vTmp, vTmp + 1
        self.vwait("x")
        if self.o.get("tsq"): self.ts()
        for i in range(8):
            a("v_lshlrev_b32 v%d, 16, v%d" % (F + 2 * i, X + i))
            a("v_and_b32 v%d, 0xffff0000, v%d" % (F + 2 * i + 1, X + i))
        S = vO + 16
        a("v_pk_add_f32 v[%d:%d], v[%d:%d], v[%d:%d]" % (S, S + 1, F, F + 1, F + 2, F + 3))
        a("v_pk_add_f32 v[%d:%d], v[%d:%d], v[%d:%d]" % (S + 2, S + 3, F + 4, F + 5, F + 6, F + 7))
        for i in (4, 6):
            a("v_pk_add_f32 v[%d:%d], v[%d:%d], v[%d:%d]" % (S, S + 1, S, S + 1, F + 2 * i, F + 2 * i + 1))
            a("v_pk_add_f32 v[%d:%d], v[%d:%d], v[%d:%d]" % (S + 2, S + 3, S + 2, S + 3, F + 2 * i + 2, F + 2 * i + 3))
        a("v_pk_add_f32 v[%d:%d], v[%d:%d], v[%d:%d]" % (S, S + 1, S, S + 1, S + 2, S + 3))
        a("v_add_f32 v%d, v%d, v%d" % (S, S, S + 1))
        self.allred_row16("v_add_f32", S); self.allred_x16("v_add_f32", S, t0)
        a("v_mul_f32 v%d, 0x3b000000, v%d" % (S, S))
        MEAN = S; D = vO + 20
        a("v_mov_b32 v%d, v%d" % (S + 1, S))
        for i in range(8):
            a("v_pk_add_f32 v[%d:%d], v[%d:%d], v[%d:%d] neg_lo:[0,1] neg_hi:[0,1]" % (D + 2 * i, D + 2 * i + 1, F + 2 * i, F + 2 * i + 1, S, S + 1))
        Q = vO + 36
        a("v_pk_mul_f32 v[%d:%d], v[%d:%d], v[%d:%d]" % (Q, Q + 1, D, D + 1, D, D + 1))
        a("v_pk_mul_f32 v[%d:%d], v[%d:%d], v[%d:%d]" % (Q + 2, Q + 3, D + 2, D + 3, D + 2, D + 3))
        for i in range(2, 8):
            q = Q + 2 * (i & 1)
            a("v_pk_fma_f32 v[%d:%d], v[%d:%d], v[%d:%d], v[%d:%d]" % (q, q + 1, D + 2 * i, D + 2 * i + 1, D + 2 * i, D + 2 * i + 1, q, q + 1))
        a("v_pk_add_f32 v[%d:%d], v[%d:%d], v[%d:%d]" % (Q, Q + 1, Q, Q + 1, Q + 2, Q + 3))
        a("v_add_f32 v%d, v%d, v%d" % (Q, Q, Q + 1))
        self.allred_row16("v_add_f32", Q); self.allred_x16("v_add_f32", Q, t0)
        lab = self.lab("lo")
        a("s_cmp_lt_u32 s%d, 16" % sJ); a("s_cbranch_scc1 %s" % lab)
        for i in range(8): a("v_mov_b32 v%d, v%d" % (F + i, F + 8 + i))
        a.label(lab)
        a("v_mul_f32 v%d, 0x3b000000, v%d" % (Q, Q))
        a("v_cvt_pk_bf16_f32 v%d, v%d, v%d" % (t0, MEAN, Q))
        a("v_lshlrev_b32 v%d, 16, v%d" % (S, t0))
        a("v_and_b32 v%d, 0xffff0000, v%d" % (Q, t0))
        a("v_add_f32 v%d, 0x3727c5ac, v%d" % (Q, Q))
        a("v_mov_b32 v%d, v%d" % (S + 1, S))
        a("v_cvt_pk_bf16_f32 v%d, v%d, v%d" % (Q, Q, Q)); a("v_lshlrev_b32 v%d, 16, v%d" % (Q, Q))
        for i in range(4):
            a("v_pk_add_f32 v[%d:%d], v[%d:%d], v[%d:%d] neg_lo:[0,1] neg_hi:[0,1]" % (D + 2 * i, D + 2 * i + 1, F + 2 * i, F + 2 * i + 1, S, S + 1))
        a("v_sqrt_f32 v%d, v%d" % (Q, Q))
        for i in range(4):
            a("v_cvt_pk_bf16_f32 v%d, v%d, v%d" % (X + i, D + 2 * i, D + 2 * i + 1))
        a("v_cvt_pk_bf16_f32 v%d, v%d, v%d" % (Q, Q, Q)); a("v_lshlrev_b32 v%d, 16, v%d" % (Q, Q))
        a("v_rcp_f32 v%d, v%d" % (Q + 2, Q)); a("v_mov_b32 v%d, v%d" % (Q + 1, Q))
        for i in range(4):
            a("v_lshlrev_b32 v%d, 16, v%d" % (D + 2 * i, X + i)); a("v_and_b32 v%d, 0xffff0000, v%d" % (D + 2 * i + 1, X + i))
        a("v_mov_b32 v%d, v%d" % (Q + 3, Q + 2))
        for i in range(4):
            a("v_pk_mul_f32 v[%d:%d], v[%d:%d], v[%d:%d]" % (F + 2 * i, F + 2 * i + 1, D + 2 * i, D + 2 * i + 1, Q + 2, Q + 3))
        for i in range(4):
            a("v_pk_fma_f32 v[%d:%d], v[%d:%d], v[%d:%d], v[%d:%d] neg_lo:[1,0,0] neg_hi:[1,0,0]" % (D + 2 * i, D + 2 * i + 1, F + 2 * i, F + 2 * i + 1, Q, Q + 1, D + 2 * i, D + 2 * i + 1))
        for i in range(4):
            a("v_pk_fma_f32 v[%d:%d], v[%d:%d], v[%d:%d], v[%d:%d]" % (F + 2 * i, F + 2 * i + 1, D + 2 * i, D + 2 * i + 1, Q + 2, Q + 3, F + 2 * i, F + 2 * i + 1))
        for i in range(4):
            a("v_cvt_pk_bf16_f32 v%d, v%d, v%d" % (X + i, F + 2 * i, F + 2 * i + 1))

    def q_slice(self):
        a = self.a
        X = vG + 4
        AF = vG + 12; BF = vO; DQ = vG + 28
        a("ds_write_b128 v%d, v[%d:%d]" % (vG + 52, X, X + 3))
        a("s_waitcnt lgkmcnt(0)")
        for t in range(4):
            a("ds_read_b128 v[%d:%d], v%d offset:%d" % (AF + 4 * t, AF + 4 * t + 3, vG + 53, 64 * t))
        if self.o.get("tsq"): self.ts()
        self.vwait("wq")
        if self.o.get("tsq"): self.ts()
        for nt in range(4):
            a("s_waitcnt lgkmcnt(%d)" % (0 if nt == 0 else 4))
            for t in range(4):
                b = BF + 16 * nt + 4 * t
                a("ds_read_b64_tr_b16 v[%d:%d], v%d offset:%d" % (b, b + 1, vG + 54, L_IMG0 + t * 4096 + nt * 32))
                a("ds_read_b64_tr_b16 v[%d:%d], v%d offset:%d" % (b + 2, b + 3, vG + 54, L_IMG0 + t * 4096 + nt * 32 + 512))
            if nt >= 1:
                a("s_waitcnt lgkmcnt(8)")
                self._q_mfma(nt - 1, AF, BF, DQ)
        a("s_waitcnt lgkmcnt(0)")
        self._q_mfma(3, AF, BF, DQ)
        G = vG + 44
        for nt in range(4):
            g = vO + 4 * nt
            a("v_mov_b32_dpp v%d, v%d quad_perm:[0,0,2,2] row_mask:0xf bank_mask:0xf" % (g, DQ + 4 * nt))
            a("v_mov_b32_dpp v%d, v%d quad_perm:[1,1,3,3] row_mask:0xf bank_mask:0xf" % (g + 2, DQ + 4 * nt))
            a("v_mov_b32 v%d, v%d" % (g + 1, vTagW)); a("v_mov_b32 v%d, s%d" % (g + 3, sT3))
        a("s_mov_b32 exec_lo, 0x55555555"); a("s_mov_b32 exec_hi, 0")
        for nt in range(4):
            g = vO + 4 * nt
            a("buffer_store_dwordx4 v[%d:%d], v%d, s[%d:%d], s%d offen offset:%d" % (g, g + 3, vG + 55, SRD_WS, SRD_WS + 3, sT1, nt * 128))
        for nt in range(4):
            g = vO + 4 * nt
            a("buffer_store_dwordx4 v[%d:%d], v%d, s[%d:%d], s%d offen offset:%d sc1" % (g, g + 3, vG + 55, SRD_WS, SRD_WS + 3, sT0, nt * 128))
        self.vm("pub", 8)
        a("s_mov_b64 exec, -1")

    def _q_mfma(self, nt, AF, BF, DQ):
        for t in range(4):
            b = BF + 16 * nt + 4 * t
            self.a("v_mfma_f32_16x16x32_bf16 v[%d:%d], v[%d:%d], v[%d:%d], %s" % (DQ + 4 * nt, DQ + 4 * nt + 3, AF + 4 * t, AF + 4 * t + 3, b, b + 3, "0" if t == 0 else "v[%d:%d]" % (DQ + 4 * nt, DQ + 4 * nt + 3)))

    def q_pre(self):
        a = self.a
        a("v_add_u32 v%d, %d, v%d" % (vG + 52, L_XN, vG))
        a("v_bfe_u32 v%d, v%d, 2, 1" % (vTmp + 1, vLane)); a("v_lshlrev_b32 v%d, 10, v%d" % (vTmp + 1, vTmp + 1))
        a("v_lshrrev_b32 v%d, 4, v%d" % (vTmp + 2, vLane)); a("v_lshl_add_u32 v%d, v%d, 4, v%d" % (vTmp + 1, vTmp + 2, vTmp + 1))
        a("s_bfe_u32 s%d, s%d, 0x10003" % (sT1, sJ)); a("s_lshl_b32 s%d, s%d, 8" % (sT1, sT1)); a("s_add_u32 s%d, s%d, %d" % (sT1, sT1, L_XN))
        a("v_add_u32 v%d, s%d, v%d" % (vG + 53, sT1, vTmp + 1))
        a("v_bfe_u32 v%d, v%d, 2, 2" % (vTmp + 3, vLane)); a("v_lshl_add_u32 v%d, v%d, 3, v%d" % (vTmp + 3, vTmp + 2, vTmp + 3))
        a("v_lshlrev_b32 v%d, 7, v%d" % (vTmp + 3, vTmp + 3)); a("v_and_b32 v%d, 3, v%d" % (vTmp + 2, vLane))
        a("v_lshl_add_u32 v%d, v%d, 3, v%d" % (vG + 54, vTmp + 2, vTmp + 3))
        a("v_lshrrev_b32 v%d, 4, v%d" % (vTmp, vLane)); a("v_lshlrev_b32 v%d, 12, v%d" % (vTmp, vTmp))
        a("v_and_b32 v%d, 15, v%d" % (vTmp + 1, vLane)); a("v_lshl_add_u32 v%d, v%d, 3, v%d" % (vG + 55, vTmp + 1, vTmp))
        self.tag_consts()
        a("s_lshr_b32 s%d, s%d, 3" % (sT0, sJ)); a("s_lshl_b32 s%d, s%d, 2" % (sT2, sX)); a("s_add_u32 s%d, s%d, s%d" % (sT0, sT0, sT2))
        a("s_lshl_b32 s%d, s%d, 13" % (sT0, sT0)); a("s_and_b32 s%d, s%d, 7" % (sT2, sJ)); a("s_lshl_b32 s%d, s%d, 9" % (sT2, sT2))
        a("s_add_u32 s%d, s%d, s%d" % (sT0, sT0, sT2)); a("s_add_u32 s%d, s%d, %d" % (sT0, sT0, WS_Q))
        a("s_add_u32 s%d, s%d, %d" % (sT1, sT0, WS_QA - WS_Q))
        a("s_and_b32 s%d, s%d, 0xfffffff0" % (sT3, self.sTagW)); a("s_or_b32 s%d, s%d, s%d" % (sT3, sT3, sXcc))

    def q_wait(self):
        a = self.a; o = self.o
        QA = vG + 3; D = vO
        L_QB = L_QP
        a("v_lshlrev_b32 v%d, 4, v%d" % (QA, vLane))
        a("s_lshl_b32 s%d, s%d, 15" % (sT0, sX)); a("s_lshl_b32 s%d, s%d, 12" % (sT1, sB)); a("s_add_u32 s%d, s%d, s%d" % (sT0, sT0, sT1))
        a("s_add_u32 s%d, s%d, %d" % (sSave, sT0, WS_Q))
        a("s_add_u32 s%d, s%d, %d" % (sSave + 1, sT0, WS_QA))
        a("v_mov_b32 v%d, s%d" % (vG + 2, sT3))
        rem = self.bulk[self.bi:]
        pre = o.get("w0pre", 2); sizes = o.get("rounds", [2, 2, 2, 2, 2])
        for (k, t, h) in rem[:pre]: self.load_half(k, t, h)
        if o.get("waitpub", True): a("s_waitcnt vmcnt(%d)" % (4 + 4 * pre))
        rem = rem[pre:]
        rounds = []
        for n in sizes:
            if rem: rounds.append(rem[:n]); rem = rem[n:]
        if rem: rounds.append(rem)
        def poll(local):
            base = sSave + 1 if local else sSave
            for kg in range(4):
                a("s_add_u32 s%d, s%d, %d" % (sT2, base, kg * 8192))
                for u in range(4):
                    d = D + 16 * kg + 4 * u
                    a("buffer_load_dwordx4 v[%d:%d], v%d, s[%d:%d], s%d offen offset:%d %s" % (d, d + 3, QA, SRD_WS, SRD_WS + 3, sT2, u * 1024, o.get("pollflag", "sc1")))
        def check(n, stamp=False):
            a("s_waitcnt vmcnt(%d)" % n)
            if stamp: self.ts()
            t0, t1, t2, t3 = vTmp, vTmp + 1, vTmp + 2, vTmp + 3
            a("v_xor_b32 v%d, v%d, v%d" % (t0, D + 1, vTagW)); a("v_xor_b32 v%d, v%d, v%d" % (t1, D + 3, vG + 2))
            for q in range(1, 16):
                a("v_xor_b32 v%d, v%d, v%d" % (t2, D + 4 * q + 1, vTagW)); a("v_xor_b32 v%d, v%d, v%d" % (t3, D + 4 * q + 3, vG + 2))
                a("v_or_b32 v%d, v%d, v%d" % (t0, t0, t2)); a("v_or_b32 v%d, v%d, v%d" % (t1, t1, t3))
            a("v_lshrrev_b32 v%d, 4, v%d" % (t2, t1)); a("v_or_b32 v%d, v%d, v%d" % (t0, t0, t2))
            a("v_cmp_eq_u32 vcc, 0, v%d" % t1); a("s_cmp_eq_u64 vcc, -1"); a("s_cselect_b32 s%d, 1, 0" % sMode)
            a("v_cmp_eq_u32 vcc, 0, v%d" % t0); a("s_cmp_eq_u64 vcc, -1")
        done = [self.lab("qok") for _ in range(len(rounds) + 1)]
        for r, g in enumerate(rounds):
            poll(True)
            n = 0
            for (k, t, h) in g: self.load_half(k, t, h); n += 4
            check(n, stamp=(o.get("tsr") and r < 3))
            a("s_cbranch_scc1 %s" % done[r])
        lp = self.lab("qpoll")
        a("s_mov_b32 s%d, 0" % sCnt)
        a.label(lp)
        for k in range(2):
            poll(k == 0); check(0)
            a("s_cbranch_scc1 %s" % done[-1])
        a("s_add_u32 s%d, s%d, 1" % (sCnt, sCnt)); a("s_cmp_lt_u32 s%d, %d" % (sCnt, o["spin"])); a("s_cbranch_scc1 %s" % lp)
        a("s_mov_b32 s%d, 2" % sMode)
        a("s_branch %s" % done[-1])
        for r in range(len(rounds)):
            a.label(done[r])
            if r + 1 < len(rounds):
                pass
            a("s_mov_b32 s%d, %d" % (sT3, r + 1)); a("s_branch L_qsum")
        a.label(done[-1])
        a("s_mov_b32 s%d, %d" % (sT3, len(rounds)))
        a.label("L_qsum")
        if o.get("tss"):
            self.ts(); i = self.ts_slot(); a("s_mul_i32 s%d, s%d, 100" % (sTS + i, sT3))
        for u in range(4):
            for e in (0, 2):
                d = D + 4 * u + e
                a("v_add_f32 v%d, v%d, v%d" % (d, d, d + 16)); a("v_add_f32 v%d, v%d, v%d" % (d + 32, d + 32, d + 48))
        for u in range(4):
            for e in (0, 2):
                d = D + 4 * u + e
                a("v_add_f32 v%d, v%d, v%d" % (d, d, d + 32))
        a("v_lshlrev_b32 v%d, 2, v%d" % (vTmp, vLane))
        for u in range(4):
            a("v_cvt_pk_bf16_f32 v%d, v%d, v%d" % (D + 4 * u, D + 4 * u, D + 4 * u + 2))
            a("ds_write_b32 v%d, v%d offset:%d" % (vTmp, D + 4 * u, L_QB + 256 * u))
        if not o["local"]:
            a("s_and_b32 s%d, s%d, 2" % (sMode, sMode))
        a("v_mov_b32 v%d, s%d" % (vTmp + 1, sMode))
        a("ds_write_b32 v%d, v%d offset:%d" % (vTmp, vTmp + 1, L_QB + 1024))
        self.rounds = rounds
        if o.get("rem_before", False):
            for r in range(1, len(rounds)):
                l = self.lab("rb")
                a("s_cmp_gt_u32 s%d, %d" % (sT3, r)); a("s_cbranch_scc1 %s" % l)
                for (k, t, h) in rounds[r]: self.load_half(k, t, h)
                a.label(l)
            self.rounds = rounds[:1]
        a("s_waitcnt lgkmcnt(0)")

    def q_join(self):
        a = self.a
        L_QB = L_QP
        a("v_bfe_u32 v%d, v%d, 2, 2" % (vTmp, vLane)); a("v_lshlrev_b32 v%d, 4, v%d" % (vTmp, vTmp))
        a("v_lshrrev_b32 v%d, 4, v%d" % (vTmp + 1, vLane)); a("v_lshl_add_u32 v%d, v%d, 2, v%d" % (vTmp, vTmp + 1, vTmp))
        a("v_and_b32 v%d, 3, v%d" % (vTmp + 1, vLane)); a("v_add_u32 v%d, v%d, v%d" % (vTmp, vTmp, vTmp + 1))
        a("v_lshlrev_b32 v%d, 4, v%d" % (vTmp, vTmp)); a("v_mov_b32 v%d, 0" % (vTmp + 1))
        a("s_barrier")
        a("ds_read_b128 v[%d:%d], v%d offset:%d" % (vQ, vQ + 3, vTmp, L_QB))
        a("ds_read_b32 v%d, v%d offset:%d" % (vTmp + 2, vTmp + 1, L_QB + 1024))
        a("v_mov_b32 v%d, 0xff800000" % vM); a("v_mov_b32 v%d, 0" % vL)
        for i in range(32): a("v_mov_b32 v%d, 0" % (vO + i))
        a("s_waitcnt lgkmcnt(0)")
        a("v_readfirstlane_b32 s%d, v%d" % (sMode, vTmp + 2))
        a("s_cmp_eq_u32 s%d, 2" % sMode); a("s_cbranch_scc1 L_fail")
        lab = self.lab("nw0")
        a("s_cmp_lg_u32 s%d, 0" % sWave); a("s_cbranch_scc1 %s" % lab)
        for r in range(1, len(self.rounds)):
            l = self.lab("rb")
            a("s_cmp_gt_u32 s%d, %d" % (sT3, r)); a("s_cbranch_scc1 %s" % l)
            for (k, t, h) in self.rounds[r]: self.load_half(k, t, h)
            a.label(l)
        a.label(lab)

    def qwait(self, tag):
        idx = self.sq.index(tag)
        n = len(self.sq) - 1 - idx
        assert n <= 63
        self.a("s_waitcnt vmcnt(%d)" % n)

    def set_soff(self, t):
        a = self.a
        a("s_add_u32 s%d, s%d, %d" % (sOffA, sRot, 2 * t)); a("s_add_u32 s%d, s%d, %d" % (sOffB, sRot, 2 * t + 1))
        a("s_and_b32 s%d, s%d, 15" % (sOffA, sOffA)); a("s_and_b32 s%d, s%d, 15" % (sOffB, sOffB))
        a("s_lshl_b32 s%d, s%d, 12" % (sOffA, sOffA)); a("s_lshl_b32 s%d, s%d, 12" % (sOffB, sOffB))

    def tile(self, t, hook=None, qkhook=None):
        a = self.a
        st = t % self.NS
        aK = aKS[st]; vV = vVS[st]
        nt = self.o["ntflag"]
        tn = self.plan.get(t)
        refill = tn is not None
        if refill:
            assert tn % self.NS == st or tn - self.NS < t, (t, tn)
            assert tn - self.NS <= t
        nocomp = self.o.get("nocompute")
        if refill: self.set_soff(tn)
        for i in range(8):
            self.qwait(("K", t, i))
            if not nocomp:
                a("v_mfma_f32_16x16x32_bf16 v[%d:%d], a[%d:%d], v[%d:%d], 0" % (vS + 4 * i, vS + 4 * i + 3, aK + 4 * i, aK + 4 * i + 3, vQ, vQ + 3))
            if refill:
                so = sOffA if i < 4 else sOffB
                aN = aKS[tn % self.NS]
                a("buffer_load_dwordx4 a[%d:%d], v%d, s[%d:%d], s%d offen offset:%d %s" % (aN + 4 * i, aN + 4 * i + 3, vOffK, SRD_K, SRD_K + 3, so, (i & 3) * 1024, nt))
                self.sq.append(("K", tn, i))
        if qkhook: qkhook()
        if not nocomp: self.softmax_a()
        for p in range(4):
            self.qwait(("V", t, 2 * p + 1))
            if not nocomp:
                for j in range(8):
                    a("v_perm_b32 v%d, v%d, v%d, s%d" % (vS + 4 * j + p, vV + 4 * (2 * p + 1) + (j >> 1), vV + 4 * (2 * p) + (j >> 1), sSelHi if j & 1 else sSelLo))
            if refill:
                for i in (2 * p, 2 * p + 1):
                    so = sOffA if i < 4 else sOffB
                    vN = vVS[tn % self.NS]
                    a("buffer_load_dwordx4 v[%d:%d], v%d, s[%d:%d], s%d offen offset:%d %s" % (vN + 4 * i, vN + 4 * i + 3, vOffV, SRD_V, SRD_V + 3, so, (i & 3) * 1024, nt))
                    self.sq.append(("V", tn, i))
        if hook: hook()
        if not nocomp: self.softmax_b()

    def softmax_a(self):
        a = self.a
        for i in range(8): a("v_mov_b32_dpp v%d, v%d quad_perm:[0,0,0,0] row_mask:0xf bank_mask:0xf" % (vT + i, vS + 4 * i))
        for c in range(1, 4):
            for i in range(8):
                a("v_add_f32_dpp v%d, v%d, v%d quad_perm:[%d,%d,%d,%d] row_mask:0xf bank_mask:0xf" % (vT + i, vS + 4 * i + c, vT + i, c, c, c, c))
        for p in range(4): a("v_cvt_pk_bf16_f32 v%d, v%d, v%d" % (vP + p, vT + 2 * p, vT + 2 * p + 1))
        for p in range(4):
            a("v_lshlrev_b32 v%d, 16, v%d" % (vU + 2 * p, vP + p)); a("v_and_b32 v%d, 0xffff0000, v%d" % (vU + 2 * p + 1, vP + p))
        for p in range(4): a("v_pk_mul_f32 v[%d:%d], v[%d:%d], s[%d:%d]" % (vU + 2 * p, vU + 2 * p + 1, vU + 2 * p, vU + 2 * p + 1, sScale, sScale + 1))
        for p in range(4): a("v_cvt_pk_bf16_f32 v%d, v%d, v%d" % (vP + p, vU + 2 * p, vU + 2 * p + 1))
        for p in range(4):
            a("v_lshlrev_b32 v%d, 16, v%d" % (vT + 2 * p, vP + p)); a("v_and_b32 v%d, 0xffff0000, v%d" % (vT + 2 * p + 1, vP + p))
        t0, t1 = vTmp, vTmp + 1
        a("v_max3_f32 v%d, v%d, v%d, v%d" % (t0, vT, vT + 1, vT + 2)); a("v_max3_f32 v%d, v%d, v%d, v%d" % (t1, vT + 3, vT + 4, vT + 5))
        a("v_max3_f32 v%d, v%d, v%d, v%d" % (t0, t0, vT + 6, vT + 7)); a("v_max_f32 v%d, v%d, v%d" % (t0, t0, t1))
        self.allred_x16("v_max_f32", t0, t1); self.allred_x32("v_max_f32", t0, t1)
        a("v_max_f32 v%d, v%d, v%d" % (t0, t0, vM))
        a("v_sub_f32 v%d, v%d, v%d" % (vAl, vM, t0)); a("v_mul_f32 v%d, s%d, v%d" % (vAl, sLog2e, vAl))
        a("v_mov_b32 v%d, v%d" % (vM, t0))
        a("v_mul_f32 v%d, s%d, v%d" % (t1, sLog2e, t0))
        a("v_exp_f32 v%d, v%d" % (vAl, vAl))
        for i in range(8): a("v_fma_f32 v%d, v%d, s%d, -v%d" % (vU + i, vT + i, sLog2e, t1))
        for i in range(8): a("v_exp_f32 v%d, v%d" % (vU + i, vU + i))
        for p in range(4): a("v_cvt_pk_bf16_f32 v%d, v%d, v%d" % (vP + p, vU + 2 * p, vU + 2 * p + 1))
        a("v_pk_add_f32 v[%d:%d], v[%d:%d], v[%d:%d]" % (vU, vU + 1, vU, vU + 1, vU + 2, vU + 3))
        a("v_pk_add_f32 v[%d:%d], v[%d:%d], v[%d:%d]" % (vU + 4, vU + 5, vU + 4, vU + 5, vU + 6, vU + 7))
        a("v_pk_add_f32 v[%d:%d], v[%d:%d], v[%d:%d]" % (vU, vU + 1, vU, vU + 1, vU + 4, vU + 5))
        a("v_fma_f32 v%d, v%d, v%d, v%d" % (vL, vL, vAl, vU)); a("v_add_f32 v%d, v%d, v%d" % (vL, vL, vU + 1))
        for i in range(16):
            a("v_pk_mul_f32 v[%d:%d], v[%d:%d], v[%d:%d] op_sel_hi:[1,0]" % (vO + 2 * i, vO + 2 * i + 1, vO + 2 * i, vO + 2 * i + 1, vAl, vAl + 1))

    def softmax_b(self):
        a = self.a
        for j in range(8):
            a("v_mfma_f32_16x16x32_bf16 v[%d:%d], v[%d:%d], v[%d:%d], v[%d:%d]" % (vO + 4 * j, vO + 4 * j + 3, vS + 4 * j, vS + 4 * j + 3, vP, vP + 3, vO + 4 * j, vO + 4 * j + 3))

    def stream(self, weights_hook=None):
        self.sq = [(k, t, i) for t in range(self.NS) for k in "KV" for i in range(8)]
        plan = self.o.get("plan")
        if plan is None:
            plan = {3: [(0, 3), (1, 4), (3, 5), (5, 6), (6, 7)], 2: [(0, 2), (1, 3), (2, 4), (3, 5), (5, 6), (6, 7)]}[self.NS]
        self.plan = dict((int(x), int(y)) for x, y in plan)
        assert sorted(self.plan.values()) == list(range(self.NS, 8))
        last = [t for t, u in self.plan.items() if u == 7][0]
        for t in range(8):
            hook = None; qkhook = None
            if t == last and self.o.get("endbar"):
                hook = lambda: self.a("s_barrier")
            if t == 7: qkhook = weights_hook
            self.tile(t, hook, qkhook)
            if t == last: self.ts()

    def wg_combine(self):
        a = self.a
        t0, t1 = vTmp, vTmp + 1
        self.allred_x16("v_add_f32", vL, t0); self.allred_x32("v_add_f32", vL, t0)
        a("v_bfe_u32 v%d, v%d, 2, 2" % (t0, vLane)); a("v_lshlrev_b32 v%d, 9, v%d" % (t0, t0))
        a("v_lshrrev_b32 v%d, 4, v%d" % (t1, vLane)); a("v_lshl_add_u32 v%d, v%d, 7, v%d" % (t0, t1, t0))
        a("s_lshl_b32 s%d, s%d, 11" % (sT0, sWave)); a("v_add_u32 v%d, s%d, v%d" % (t0, sT0, t0))
        a("v_bfe_u32 v%d, v%d, 2, 2" % (t1, vLane)); a("v_lshlrev_b32 v%d, 4, v%d" % (t1, t1))
        a("s_lshl_b32 s%d, s%d, 2" % (sT0, sWave)); a("v_add_u32 v%d, s%d, v%d" % (t1, sT0, t1))
        a("s_mov_b32 s%d, 0x11111111" % sMsk); a("s_mov_b32 s%d, 0x11111111" % (sMsk + 1))
        a("s_mov_b64 exec, s[%d:%d]" % (sMsk, sMsk + 1))
        for j in range(8):
            a("ds_write_b128 v%d, v[%d:%d] offset:%d" % (t0, vO + 4 * j, vO + 4 * j + 3, L_CO + 16 * j))
        a("s_mov_b64 exec, 0x1111")
        a("ds_write_b32 v%d, v%d offset:%d" % (t1, vM, L_CML)); a("ds_write_b32 v%d, v%d offset:%d" % (t1, vL, L_CML + 64))
        a("s_mov_b64 exec, -1")
        a("s_waitcnt lgkmcnt(0)")
        a("s_barrier")
        lab = self.lab("nocomb")
        a("s_cmp_ge_u32 s%d, 2" % sWave); a("s_cbranch_scc1 %s" % lab)
        R = vG + 12
        a("v_lshlrev_b32 v%d, 4, v0" % t0)
        a("v_lshrrev_b32 v%d, 5, v0" % t1); a("v_lshlrev_b32 v%d, 4, v%d" % (t1, t1))
        a("ds_read_b128 v[%d:%d], v%d offset:%d" % (R, R + 3, t1, L_CML))
        a("ds_read_b128 v[%d:%d], v%d offset:%d" % (R + 4, R + 7, t1, L_CML + 64))
        for w in range(4):
            a("ds_read_b128 v[%d:%d], v%d offset:%d" % (R + 8 + 4 * w, R + 11 + 4 * w, t0, L_CO + 2048 * w))
        a("s_waitcnt lgkmcnt(4)")
        Mx = R + 24
        a("v_max3_f32 v%d, v%d, v%d, v%d" % (Mx, R, R + 1, R + 2)); a("v_max_f32 v%d, v%d, v%d" % (Mx, Mx, R + 3))
        for w in range(4):
            a("v_sub_f32 v%d, v%d, v%d" % (R + w, R + w, Mx))
        for w in range(4):
            a("v_mul_f32 v%d, s%d, v%d" % (R + w, sLog2e, R + w))
        for w in range(4):
            a("v_exp_f32 v%d, v%d" % (R + w, R + w))
        Ls = R + 25
        a("v_mul_f32 v%d, v%d, v%d" % (Ls, R, R + 4))
        for w in range(1, 4): a("v_fmac_f32 v%d, v%d, v%d" % (Ls, R + w, R + 4 + w))
        a("s_waitcnt lgkmcnt(0)")
        Oa = R + 26
        for e in range(4): a("v_mul_f32 v%d, v%d, v%d" % (Oa + e, R, R + 8 + e))
        for w in range(1, 4):
            for e in range(4): a("v_fmac_f32 v%d, v%d, v%d" % (Oa + e, R + w, R + 8 + 4 * w + e))
        G = R + 30
        self.tag4(G, [Oa, Oa + 1, Oa + 2, Oa + 3])
        self.tag4(G + 4, [Mx, Ls, Mx, Ls])
        a("s_lshl_b32 s%d, s%d, 11" % (sT0, sP)); a("s_add_u32 s%d, s%d, %d" % (sT0, sT0, WS_PO))
        a("s_lshl_b32 s%d, s%d, 7" % (sT1, sP)); a("s_add_u32 s%d, s%d, %d" % (sT1, sT1, WS_PML))
        def stores(fl):
            a("buffer_store_dwordx4 v[%d:%d], v%d, s[%d:%d], s%d offen %s" % (G, G + 3, t0, SRD_WS, SRD_WS + 3, sT0, fl))
            a("s_mov_b32 s%d, 1" % sMsk); a("s_mov_b32 s%d, 1" % (sMsk + 1)); a("s_mov_b64 exec, s[%d:%d]" % (sMsk, sMsk + 1))
            a("buffer_store_dwordx4 v[%d:%d], v%d, s[%d:%d], s%d offen %s" % (G + 4, G + 7, t1, SRD_WS, SRD_WS + 3, sT1, fl))
            a("s_mov_b64 exec, -1")
        self.by_mode(stores)
        a.label(lab)

    def by_mode(self, fn):
        a = self.a
        l1 = self.lab("m1"); l2 = self.lab("m2")
        a("s_cmp_eq_u32 s%d, 0" % sMode); a("s_cbranch_scc1 %s" % l1)
        fn(""); a("s_branch %s" % l2)
        a.label(l1); fn("sc1"); a.label(l2)

    def epilogue(self):
        a = self.a
        a.label("L_fail")
        a.label("L_done")
        a("s_mov_b64 exec, -1")
        if self.o["ts"]:
            self.ts()
            a("s_lshl_b32 s%d, s2, 2" % sT0); a("s_add_u32 s%d, s%d, s%d" % (sT0, sT0, sWave)); a("s_lshl_b32 s%d, s%d, 6" % (sT0, sT0))
            a("s_add_u32 s%d, s%d, %d" % (sT0, sT0, WS_TS))
            a("v_mov_b32 v%d, 0" % vTmp)
            for i in range(self.nts):
                a("v_writelane_b32 v%d, s%d, %d" % (vTmp, sTS + i, i))
            a("v_writelane_b32 v%d, s%d, 15" % (vTmp, sXcc))
            a("v_lshlrev_b32 v%d, 2, v%d" % (vTmp + 1, vLane))
            a("s_mov_b64 exec, 0xffff")
            a("buffer_store_dword v%d, v%d, s[%d:%d], s%d offen" % (vTmp, vTmp + 1, SRD_WS, SRD_WS + 3, sT0))
            if self.o.get("dbgts"):
                l = self.lab("nodbg")
                a("s_lshl_b32 s%d, s2, 2" % sT0); a("s_add_u32 s%d, s%d, s%d" % (sT0, sT0, sWave)); a("s_cmp_lg_u32 s%d, %d" % (sT0, self.o["dbgts"] - 1)); a("s_cbranch_scc1 %s" % l)
                self.make_srd(SRD_W3, sPDBG, 256)
                a("v_subrev_u32 v%d, s%d, v%d" % (vTmp, sTS, vTmp))
                a("buffer_store_dword v%d, v%d, s[%d:%d], 0 offen" % (vTmp, vTmp + 1, SRD_W3, SRD_W3 + 3))
                a.label(l)
        a("s_waitcnt vmcnt(0)")
        a.label("L_end")
        a("s_endpgm")

    def build(self):
        o = self.o
        self.prologue()
        a = self.a
        if o.get("noq"):
            self.issue_bulk(99)
            a("s_mov_b32 s%d, 0" % sMode); a("v_mov_b32 v%d, 0" % vTagW)
            self.ts(); self.ts()
        else:
            if o.get("prio0"):
                l = self.lab("pr"); a("s_cmp_lg_u32 s%d, 0" % sWave); a("s_cbranch_scc1 %s" % l); a("s_setprio 3"); a.label(l)
            a("s_cmp_lg_u32 s%d, 0" % sWave); a("s_cbranch_scc1 L_helper")
            self.issue_bulk(o.get("w0start", 0))
            self.q_pre()
            self.ln_x()
            self.q_slice()
            self.ts()
            self.q_wait()
            a("s_branch L_qjoin")
            a.label("L_helper")
            self.helper_startup()
            a.label("L_qjoin")
            self.q_join()
            self.ts()
        import tail
        tail.emit(self)
        self.epilogue()
        n = self.a.fix_hazards()
        head = ["; generated by gen.py (hand-written generator) ; hazard nops inserted: %d" % n,
                "; @launch grid=(256,1,1) block=(256,1,1) lds=%d" % LDS_SIZE,
                '.amdgcn_target "amdgcn-amd-amdhsa--gfx950"', ".text", ".globl %s" % NAME, ".p2align 8",
                ".type %s,@function" % NAME, "%s:" % NAME]
        tailtxt = ['.section .rodata,"a"', ".p2align 6", ".amdhsa_kernel %s" % NAME,
                   "  .amdhsa_next_free_vgpr 512", "  .amdhsa_next_free_sgpr 102", "  .amdhsa_accum_offset 256",
                   "  .amdhsa_group_segment_fixed_size 0", "  .amdhsa_kernarg_size 96", "  .amdhsa_user_sgpr_count 2",
                   "  .amdhsa_user_sgpr_kernarg_segment_ptr 1", "  .amdhsa_system_sgpr_workgroup_id_x 1",
                   ".end_amdhsa_kernel"]
        return "\n".join(head) + "\n" + self.a.text() + "\n".join(tailtxt) + "\n"

if __name__ == "__main__":
    import json
    opt = json.loads(sys.argv[1]) if len(sys.argv) > 1 else {}
    g = Gen(**opt)
    print(g.build())
```

```python
from gen import *

def poll_loop(g, name, issue, check, spin, local=False):
    a = g.a
    ok = g.lab(name + "ok")
    lf = g.o.get("localpoll", "nt")
    if local and lf != "sc1":
        lg = g.lab(name + "g"); lp = g.lab(name + "l")
        a("s_cmp_eq_u32 s%d, 0" % sMode); a("s_cbranch_scc1 %s" % lg)
        a("s_mov_b32 s%d, 0" % sCnt)
        a.label(lp)
        issue(lf)
        a("s_waitcnt vmcnt(0)")
        check()
        a("s_cbranch_scc1 %s" % ok)
        a("s_add_u32 s%d, s%d, 1" % (sCnt, sCnt)); a("s_cmp_lt_u32 s%d, %d" % (sCnt, 64)); a("s_cbranch_scc1 %s" % lp)
        a.label(lg)
    lp = g.lab(name)
    a("s_mov_b32 s%d, 0" % sCnt)
    a.label(lp)
    issue("sc1")
    a("s_waitcnt vmcnt(0)")
    check()
    a("s_cbranch_scc1 %s" % ok)
    a("s_add_u32 s%d, s%d, 1" % (sCnt, sCnt)); a("s_cmp_lt_u32 s%d, %d" % (sCnt, spin)); a("s_cbranch_scc1 %s" % lp)
    a("s_branch L_fail")
    a.label(ok)
    tsn = g.o.get("tsn") or []
    if ("cnt_" + name) in tsn:
        i = g.ts_slot(); g.tsnames.setdefault(i, []).append("cnt_" + name)
        a("s_add_u32 s%d, s%d, 1" % (sTS + i, sCnt))

def chk_acc(g, regs, t0, t1, t2):
    a = g.a
    first = True
    for d in regs:
        a("v_perm_b32 v%d, v%d, v%d, s%d" % (t0, d + 1, d, sChkA))
        a("v_perm_b32 v%d, v%d, v%d, s%d" % (t1, d + 3, d + 2, sChkB))
        if first:
            a("v_or_b32 v%d, v%d, v%d" % (t2, t0, t1)); a("v_xor_b32 v%d, v%d, v%d" % (t2, t2, vTagW)); first = False
        else:
            a("v_or_b32 v%d, v%d, v%d" % (t0, t0, t1)); a("v_xor_b32 v%d, v%d, v%d" % (t0, t0, vTagW)); a("v_or_b32 v%d, v%d, v%d" % (t2, t2, t0))
    a("v_cmp_ne_u32 vcc, 0, v%d" % t2)
    a("s_cmp_eq_u64 vcc, 0")

def weights_hook(g):
    a = g.a
    W = vVS[2] if g.NS == 3 else vG + 20
    for i in range(8):
        a("buffer_load_dwordx4 v[%d:%d], v%d, s[%d:%d], s%d offen offset:%d nt" % (W + 4 * i, W + 4 * i + 3, vG + 56, SRD_W1, SRD_W1 + 3, sT2 if i >= 4 else sT3, (i & 3) * 1024))
        g.sq.append(("W", 0, i))


sH1s = 4
sYP  = 8
sE   = 9
sHC  = 10
sYo  = 26
vOA = vG + 32

def weights_setup(g):
    a = g.a
    a("s_lshl_b32 s%d, s%d, 19" % (sT0, sX)); a("s_lshr_b32 s%d, s%d, 1" % (sT1, sJ)); a("s_lshl_b32 s%d, s%d, 15" % (sT1, sT1)); a("s_add_u32 s%d, s%d, s%d" % (sT0, sT0, sT1))
    a("s_and_b32 s%d, s%d, 1" % (sT1, sJ)); a("s_lshl_b32 s%d, s%d, 9" % (sT1, sT1)); a("s_add_u32 s%d, s%d, s%d" % (sT0, sT0, sT1))
    a("s_sub_u32 s%d, 0x8000, s%d" % (sT2, sT1))
    a("s_cmp_lt_u32 s%d, %d" % (sWave, 0 if g.o.get("nowo") else 2)); a("s_cselect_b32 s%d, s%d, 0" % (sT1, sT2))
    g.make_srd(SRD_W1, sPWO, 0, off_sreg=sT0)
    a("s_mov_b32 s%d, s%d" % (SRD_W1 + 2, sT1))
    a("v_lshrrev_b32 v%d, 4, v%d" % (vTmp, vLane)); a("v_lshlrev_b32 v%d, 13, v%d" % (vG + 56, vTmp))
    a("v_and_b32 v%d, 15, v%d" % (vTmp, vLane)); a("v_lshl_add_u32 v%d, v%d, 4, v%d" % (vG + 56, vTmp, vG + 56))
    a("s_and_b32 s%d, s%d, 1" % (sT0, sWave)); a("s_lshl_b32 s%d, s%d, 8" % (sT0, sT0)); a("v_add_u32 v%d, s%d, v%d" % (vG + 56, sT0, vG + 56))

def o_pre(g):
    a = g.a
    t0, t1 = vTmp, vTmp + 1
    a("v_lshrrev_b32 v%d, 3, v%d" % (t0, vLane))
    a("v_lshlrev_b32 v%d, 11, v%d" % (vOA, t0)); a("v_and_b32 v%d, 7, v%d" % (t1, vLane)); a("v_lshl_add_u32 v%d, v%d, 4, v%d" % (vOA, t1, vOA))
    a("v_lshlrev_b32 v%d, 7, v%d" % (vOA + 1, t0))
    a("v_lshrrev_b32 v%d, 4, v%d" % (t0, vLane)); a("v_lshlrev_b32 v%d, 4, v%d" % (vOA + 2, t0)); a("v_lshl_add_u32 v%d, v%d, 1, v%d" % (vOA + 2, t1, vOA + 2))
    a("s_and_b32 s%d, s%d, 1" % (sT0, sWave)); a("s_lshl_b32 s%d, s%d, 6" % (sT0, sT0)); a("v_add_u32 v%d, s%d, v%d" % (vOA + 2, sT0, vOA + 2))
    a("v_bfe_u32 v%d, v%d, 2, 1" % (t1, vLane)); a("v_lshlrev_b32 v%d, 6, v%d" % (t1, t1)); a("v_lshl_add_u32 v%d, v%d, 4, v%d" % (vOA + 3, t0, t1))
    a("v_and_b32 v%d, 15, v%d" % (t1, vLane)); a("v_lshlrev_b32 v%d, 12, v%d" % (vOA + 5, t0)); a("v_lshl_add_u32 v%d, v%d, 4, v%d" % (vOA + 5, t1, vOA + 5))
    a("v_lshlrev_b32 v%d, 2, v%d" % (vOA + 6, t0)); a("v_lshl_add_u32 v%d, v%d, 4, v%d" % (vOA + 6, t1, vOA + 6))
    a("v_or_b32 v%d, 0x07060500, v%d" % (vOA + 7, t0))
    a("v_lshlrev_b32 v%d, 6, v%d" % (vOA + 4, t1))
    a("v_bfe_u32 v%d, v%d, 5, 1" % (t1, vLane)); a("v_lshl_add_u32 v%d, v%d, 5, v%d" % (vOA + 4, t1, vOA + 4))
    a("v_bfe_u32 v%d, v%d, 4, 1" % (t1, vLane)); a("v_lshl_add_u32 v%d, v%d, 4, v%d" % (vOA + 4, t1, vOA + 4))
    a("s_and_b32 s%d, s%d, 1" % (sT0, sJ)); a("s_lshl_b32 s%d, s%d, 1" % (sT0, sT0)); a("s_and_b32 s%d, s%d, 1" % (sT1, sWave)); a("s_add_u32 s%d, s%d, s%d" % (sT0, sT0, sT1))
    a("s_lshl_b32 s%d, s%d, 10" % (sT0, sT0)); a("v_add_u32 v%d, s%d, v%d" % (vOA + 4, sT0, vOA + 4))
    a("s_lshr_b32 s%d, s%d, 1" % (sT3, sJ))
    a("s_lshl_b32 s%d, s%d, 4" % (sYP, sX)); a("s_add_u32 s%d, s%d, s%d" % (sYP, sYP, sT3)); a("s_lshl_b32 s%d, s%d, 12" % (sYP, sYP)); a("s_add_u32 s%d, s%d, %d" % (sYP, sYP, WS_YP))
    a("s_lshl_b32 s%d, s%d, 5" % (sT0, sX)); a("s_and_b32 s%d, s%d, 1" % (sT1, sWave)); a("s_lshl_b32 s%d, s%d, 4" % (sT1, sT1)); a("s_add_u32 s%d, s%d, s%d" % (sT0, sT0, sT1))
    a("s_lshl_b32 s%d, s%d, 11" % (sT1, sT0)); a("s_lshl_b32 s%d, s%d, 7" % (sT2, sT3)); a("s_add_u32 s%d, s%d, s%d" % (sT1, sT1, sT2))
    a("s_add_u32 s%d, s%d, %d" % (sH1s, sT1, WS_PO)); a("s_add_u32 s%d, s%d, %d" % (sH1s + 1, sH1s, 8 * 2048))
    a("s_lshl_b32 s%d, s%d, 7" % (sT2, sT0)); a("s_lshr_b32 s%d, s%d, 2" % (sT3, sT3)); a("s_lshl_b32 s%d, s%d, 4" % (sT3, sT3)); a("s_add_u32 s%d, s%d, s%d" % (sT2, sT2, sT3))
    a("s_add_u32 s%d, s%d, %d" % (sH1s + 2, sT2, WS_PML)); a("s_add_u32 s%d, s%d, %d" % (sH1s + 3, sH1s + 2, 8 * 128))
    a("s_lshr_b32 s%d, s%d, 1" % (sT0, sX)); a("s_and_b32 s%d, s%d, 1" % (sT1, sX)); a("s_cmp_eq_u32 s%d, 0" % sT1); a("s_cselect_b32 s%d, 28, 32" % sT1)
    a("s_mul_i32 s%d, s%d, s%d" % (sE, sT0, sT1)); a("s_add_u32 s%d, s%d, s%d" % (sE, sE, sJ))
    a("s_sub_u32 s%d, s%d, 28" % (sT1, sJ)); a("s_lshl_b32 s%d, s%d, 2" % (sT1, sT1)); a("s_add_u32 s%d, s%d, s%d" % (sT1, sT1, sWave)); a("s_and_b32 s%d, s%d, 15" % (sT1, sT1))
    a("s_lshl_b32 s%d, s%d, 8" % (sT1, sT1))
    a("s_lshl_b32 s%d, s%d, 16" % (sT0, sX)); a("s_add_u32 s%d, s%d, s%d" % (sT0, sT0, sT1))
    a("s_add_u32 s%d, s%d, %d" % (sHC, sT0, WS_YP))
    for u in range(1, 4): a("s_add_u32 s%d, s%d, %d" % (sHC + u, sHC, u * 4 * 4096))
    a("s_lshl_b32 s%d, s%d, 12" % (sT0, sX)); a("s_add_u32 s%d, s%d, s%d" % (sT0, sT0, sT1)); a("s_add_u32 s%d, s%d, %d" % (sYo, sT0, WS_Y))
    a("s_mov_b32 s%d, 4096" % sT2); a("s_mov_b32 s%d, 0" % sT3)

def pre_store(g):
    a = g.a
    Z = vT
    for e in range(4): a("v_mov_b32 v%d, 0" % (Z + e))
    a("s_cmp_lt_u32 s%d, 2" % sWave); a("s_cselect_b32 s%d, s%d, 0x7ffffff0" % (sT0, sYP))
    a("buffer_store_dwordx4 v[%d:%d], v%d, s[%d:%d], s%d offen" % (Z, Z + 3, vOA + 4, SRD_WS, SRD_WS + 3, sT0))
    a("s_mul_i32 s%d, s%d, 3072" % (sT0, sE)); a("s_mul_i32 s%d, s%d, 768" % (sT1, sWave)); a("s_add_u32 s%d, s%d, s%d" % (sT0, sT0, sT1)); a("s_add_u32 s%d, s%d, %d" % (sT0, sT0, WS_FP))
    a("s_bitcmp1_b32 s%d, 0" % sX); a("s_cselect_b32 s%d, 0x7ffffff0, s%d" % (sT0, sT0)); a("s_cmp_lt_u32 s%d, 28" % sJ); a("s_cselect_b32 s%d, s%d, 0x7ffffff0" % (sT0, sT0))
    a("v_lshlrev_b32 v%d, 4, v%d" % (vTmp, vLane))
    a("s_mov_b32 exec_hi, 0xffff")
    a("buffer_store_dwordx4 v[%d:%d], v%d, s[%d:%d], s%d offen" % (Z, Z + 3, vTmp, SRD_WS, SRD_WS + 3, sT0))
    a("s_mov_b64 exec, -1")
    return 2

def o_stage(g):
    a = g.a; o = g.o; spin = o["spin"]
    W = vVS[2]; WF = vVS[0]
    t0, t1, t2 = vTmp, vTmp + 1, vTmp + 2
    skip = g.lab("h1skip")
    a("s_cmp_ge_u32 s%d, 2" % sWave); a("s_cbranch_scc1 %s" % skip)
    a("s_waitcnt vmcnt(2)")
    for p in range(4):
        for j in range(8):
            a("v_perm_b32 v%d, v%d, v%d, s%d" % (WF + 4 * j + p, W + 4 * (2 * p + 1) + (j >> 1), W + 4 * (2 * p) + (j >> 1), sSelHi if j & 1 else sSelLo))
    g.ts("x_o_wo")
    D = vO
    def issue(fl):
        a("buffer_load_dwordx4 v[%d:%d], v%d, s[%d:%d], s%d offen %s" % (D, D + 3, vOA, SRD_WS, SRD_WS + 3, sH1s, fl))
        a("buffer_load_dwordx4 v[%d:%d], v%d, s[%d:%d], s%d offen %s" % (D + 4, D + 7, vOA, SRD_WS, SRD_WS + 3, sH1s + 1, fl))
        a("buffer_load_dwordx4 v[%d:%d], v%d, s[%d:%d], s%d offen %s" % (D + 8, D + 11, vOA + 1, SRD_WS, SRD_WS + 3, sH1s + 2, fl))
        a("buffer_load_dwordx4 v[%d:%d], v%d, s[%d:%d], s%d offen %s" % (D + 12, D + 15, vOA + 1, SRD_WS, SRD_WS + 3, sH1s + 3, fl))
    poll_loop(g, "h1", issue, lambda: chk_acc(g, [D, D + 4, D + 8, D + 12], t0, t1, t2), spin, local=True)
    g.ts("o_h1")
    Ma, La, Mb, Lb = D + 8, D + 9, D + 12, D + 13
    a("v_and_b32 v%d, 0xffffff00, v%d" % (Ma, Ma)); a("v_and_b32 v%d, 0xffffff00, v%d" % (Mb, Mb))
    MX = D + 10
    a("v_max_f32 v%d, v%d, v%d" % (MX, Ma, Mb))
    a("v_max_f32_dpp v%d, v%d, v%d row_ror:8 row_mask:0xf bank_mask:0xf" % (MX, MX, MX))
    g.allred_x16("v_max_f32", MX, t0); g.allred_x32("v_max_f32", MX, t0)
    a("v_sub_f32 v%d, v%d, v%d" % (Ma, Ma, MX)); a("v_sub_f32 v%d, v%d, v%d" % (Mb, Mb, MX))
    a("v_mul_f32 v%d, s%d, v%d" % (Ma, sLog2e, Ma)); a("v_mul_f32 v%d, s%d, v%d" % (Mb, sLog2e, Mb))
    a("v_exp_f32 v%d, v%d" % (Ma, Ma)); a("v_exp_f32 v%d, v%d" % (Mb, Mb))
    R = vO + 20
    a("v_mul_f32 v%d, v%d, v%d" % (R + 4, Ma, La))
    for e in range(4): a("v_mul_f32 v%d, v%d, v%d" % (R + e, Ma, D + e))
    a("v_fmac_f32 v%d, v%d, v%d" % (R + 4, Mb, Lb))
    for e in range(4): a("v_fmac_f32 v%d, v%d, v%d" % (R + e, Mb, D + 4 + e))
    a("v_add_f32_dpp v%d, v%d, v%d row_ror:8 row_mask:0xf bank_mask:0xf" % (R + 4, R + 4, R + 4))
    for e in range(4): a("v_add_f32_dpp v%d, v%d, v%d row_ror:8 row_mask:0xf bank_mask:0xf" % (R + e, R + e, R + e))
    a("v_mov_b32 v%d, v%d" % (t0, R + 4))
    a("v_permlane16_swap_b32 v%d, v%d" % (R, R + 1)); a("v_permlane16_swap_b32 v%d, v%d" % (R + 2, R + 3))
    a("v_permlane16_swap_b32 v%d, v%d" % (R + 4, t0))
    a("v_add_f32 v%d, v%d, v%d" % (R, R, R + 1)); a("v_add_f32 v%d, v%d, v%d" % (R + 2, R + 2, R + 3)); a("v_add_f32 v%d, v%d, v%d" % (R + 4, R + 4, t0))
    a("v_mov_b32 v%d, v%d" % (t0, R + 4))
    a("v_permlane32_swap_b32 v%d, v%d" % (R, R + 2)); a("v_permlane32_swap_b32 v%d, v%d" % (R + 4, t0))
    a("v_add_f32 v%d, v%d, v%d" % (R + 4, R + 4, t0)); a("v_add_f32 v%d, v%d, v%d" % (R, R, R + 2))
    a("v_rcp_f32 v%d, v%d" % (t0, R + 4))
    a("v_fma_f32 v%d, -v%d, v%d, 1.0" % (t1, R + 4, t0)); a("v_fma_f32 v%d, v%d, v%d, v%d" % (t0, t1, t0, t0))
    a("v_mul_f32 v%d, v%d, v%d" % (R, R, t0)); a("v_cvt_pk_bf16_f32 v%d, v%d, v%d" % (R, R, R))
    a("ds_write_b16 v%d, v%d offset:%d" % (vOA + 2, R, L_OA))
    a("s_mov_b32 s%d, 0" % sMsk); a("s_mov_b32 s%d, -1" % (sMsk + 1))
    a("s_waitcnt lgkmcnt(0)")
    g.ts("x_o_math")
    a("s_barrier")
    AF = vS
    a("ds_read_b128 v[%d:%d], v%d offset:%d" % (AF, AF + 3, vOA + 3, L_OA))
    a("s_waitcnt lgkmcnt(0)")
    YD = vO
    for j in range(8):
        a("v_mfma_f32_16x16x32_bf16 v[%d:%d], v[%d:%d], v[%d:%d], 0" % (YD + 4 * j, YD + 4 * j + 3, AF, AF + 3, WF + 4 * j, WF + 4 * j + 3))
    G = vS + 4
    for e in range(4): a("v_cndmask_b32 v%d, v%d, v%d, s[%d:%d]" % (G + e, YD + 4 * e, YD + 4 * (4 + e), sMsk, sMsk + 1))
    g.tag4(G + 4, [G, G + 1, G + 2, G + 3])
    g.by_mode(lambda fl: a("buffer_store_dwordx4 v[%d:%d], v%d, s[%d:%d], s%d offen %s" % (G + 4, G + 7, vOA + 4, SRD_WS, SRD_WS + 3, sYP, fl)))
    g.ts("o_yp")
    join = g.lab("ojoin")
    a("s_branch %s" % join)
    a.label(skip)
    a("s_barrier")
    a.label(join)
    a("s_barrier")

def h1c_role(g):
    a = g.a; o = g.o; spin = o["spin"]
    t0, t1, t2 = vTmp, vTmp + 1, vTmp + 2
    D = vO
    def issue2(fl):
        for u in range(4):
            a("buffer_load_dwordx4 v[%d:%d], v%d, s[%d:%d], s%d offen %s" % (D + 4 * u, D + 4 * u + 3, vOA + 5, SRD_WS, SRD_WS + 3, sHC + u, fl))
    g.ts("x_o_h1c0")
    poll_loop(g, "h1c", issue2, lambda: chk_acc(g, [D, D + 4, D + 8, D + 12], t0, t1, t2), spin, local=True)
    g.ts("o_h1c")
    for e in (0, 2):
        a("v_pk_add_f32 v[%d:%d], v[%d:%d], v[%d:%d]" % (D + e, D + e + 1, D + e, D + e + 1, D + 4 + e, D + 5 + e))
        a("v_pk_add_f32 v[%d:%d], v[%d:%d], v[%d:%d]" % (D + 8 + e, D + 9 + e, D + 8 + e, D + 9 + e, D + 12 + e, D + 13 + e))
    for e in (0, 2):
        a("v_pk_add_f32 v[%d:%d], v[%d:%d], v[%d:%d]" % (D + e, D + e + 1, D + e, D + e + 1, D + 8 + e, D + 9 + e))
    a("v_permlane16_swap_b32 v%d, v%d" % (D, D + 1)); a("v_permlane16_swap_b32 v%d, v%d" % (D + 2, D + 3))
    a("v_add_f32 v%d, v%d, v%d" % (D, D, D + 1)); a("v_add_f32 v%d, v%d, v%d" % (D + 2, D + 2, D + 3))
    a("v_permlane32_swap_b32 v%d, v%d" % (D, D + 2))
    a("v_add_f32 v%d, v%d, v%d" % (D, D, D + 2))
    a("v_perm_b32 v%d, v%d, v%d, v%d" % (D, D, vTagW, vOA + 7))
    a("buffer_store_dword v%d, v%d, s[%d:%d], s%d offen sc1" % (D, vOA + 6, SRD_WS, SRD_WS + 3, sYo))
    g.ts("o_y")

def final_role(g):
    a = g.a; o = g.o; spin = o["spin"]
    t0, t1, t2 = vTmp, vTmp + 1, vTmp + 2
    a("s_cmp_lg_u32 s%d, 0" % sWave); a("s_cbranch_scc1 L_done")
    XR = vT
    a("v_and_b32 v%d, 1, v%d" % (t0, vLane)); a("v_lshlrev_b32 v%d, 10, v%d" % (vT + 2, t0))
    a("s_lshl_b32 s%d, s%d, 3" % (sT0, sE))
    a("buffer_load_dwordx2 v[%d:%d], v%d, s[%d:%d], s%d offen" % (XR, XR + 1, vT + 2, SRD_X, SRD_X + 3, sT0))
    AY, AO3, AO4 = vT + 3, vT + 4, vT + 5
    a("v_bfe_u32 v%d, v%d, 1, 3" % (t1, vLane)); a("v_lshlrev_b32 v%d, 12, v%d" % (t1, t1)); a("v_lshl_add_u32 v%d, v%d, 4, v%d" % (AY, t0, t1))
    a("v_lshrrev_b32 v%d, 1, v%d" % (t1, vLane)); a("v_lshlrev_b32 v%d, 12, v%d" % (t1, t1)); a("v_lshl_add_u32 v%d, v%d, 4, v%d" % (AO3, t0, t1))
    a("s_mov_b32 s%d, 0" % sMsk); a("s_mov_b32 s%d, -1" % (sMsk + 1))
    a("v_add_u32 v%d, %d, v%d" % (AO4, 96 * 4096, AO3)); a("v_subrev_u32 v%d, %d, v%d" % (t1, 16 * 4096, AO3))
    a("v_cndmask_b32 v%d, v%d, v%d, s[%d:%d]" % (AO4, AO4, t1, sMsk, sMsk + 1))
    a("s_lshl_b32 s%d, s%d, 5" % (sT0, sE)); a("s_add_u32 s%d, s%d, %d" % (sH1s, sT0, WS_Y))
    a("s_add_u32 s%d, s%d, %d" % (sH1s + 1, sT0, WS_OP))
    a("s_add_u32 s%d, s%d, %d" % (sH1s + 2, sH1s + 1, 32 * 4096)); a("s_add_u32 s%d, s%d, %d" % (sH1s + 3, sH1s + 1, 64 * 4096))
    g.make_srd(SRD_W2, sPOUT, 2048)
    a("s_lshl_b32 s%d, s%d, 3" % (sYP, sE))
    D = vO + 4
    def issue3(fl):
        a("buffer_load_dwordx4 v[%d:%d], v%d, s[%d:%d], s%d offen sc1" % (D, D + 3, AY, SRD_WS, SRD_WS + 3, sH1s))
    poll_loop(g, "hy", issue3, lambda: chk_acc(g, [D], t0, t1, t2), spin)
    for sh in (8, 4, 2):
        for e in range(4): a("v_add_f32_dpp v%d, v%d, v%d row_ror:%d row_mask:0xf bank_mask:0xf" % (D + e, D + e, D + e, sh))
    H = vO + 12
    a("v_cvt_pk_bf16_f32 v%d, v%d, v%d" % (D + 4, D, D + 1)); a("v_cvt_pk_bf16_f32 v%d, v%d, v%d" % (D + 5, D + 2, D + 3))
    for p in range(2):
        a("v_lshlrev_b32 v%d, 16, v%d" % (D + 2 * p, D + 4 + p)); a("v_and_b32 v%d, 0xffff0000, v%d" % (D + 2 * p + 1, D + 4 + p))
        a("v_lshlrev_b32 v%d, 16, v%d" % (H + 2 * p, XR + p)); a("v_and_b32 v%d, 0xffff0000, v%d" % (H + 2 * p + 1, XR + p))
    for e in range(4): a("v_add_f32 v%d, v%d, v%d" % (H + e, H + e, D + e))
    a("v_cvt_pk_bf16_f32 v%d, v%d, v%d" % (D + 4, H, H + 1)); a("v_cvt_pk_bf16_f32 v%d, v%d, v%d" % (D + 5, H + 2, H + 3))
    for p in range(2):
        a("v_lshlrev_b32 v%d, 16, v%d" % (H + 2 * p, D + 4 + p)); a("v_and_b32 v%d, 0xffff0000, v%d" % (H + 2 * p + 1, D + 4 + p))
    HS, AOUT = vO + 10, vO + 11
    a("v_lshrrev_b32 v%d, 4, v%d" % (t0, vLane))
    a("v_cmp_eq_u32 vcc, 1, v%d" % t0); a("v_cndmask_b32 v%d, v%d, v%d, vcc" % (HS, H, H + 1))
    a("v_cmp_eq_u32 vcc, 2, v%d" % t0); a("v_cndmask_b32 v%d, v%d, v%d, vcc" % (HS, HS, H + 2))
    a("v_cmp_eq_u32 vcc, 3, v%d" % t0); a("v_cndmask_b32 v%d, v%d, v%d, vcc" % (HS, HS, H + 3))
    a("v_lshl_add_u32 v%d, v%d, 1, v%d" % (AOUT, t0, vT + 2))
    D = vO + 16
    def issue4(fl):
        for u in range(4):
            a("buffer_load_dwordx4 v[%d:%d], v%d, s[%d:%d], s%d offen sc1" % (D + 4 * u, D + 4 * u + 3, AO4 if u == 3 else AO3, SRD_WS, SRD_WS + 3, sH1s + 1 + (0 if u == 3 else u)))
    g.ts("x_o_hy")
    poll_loop(g, "h3", issue4, lambda: chk_acc(g, [D, D + 4, D + 8, D + 12], t0, t1, t2), spin)
    g.ts("o_h3")
    for e in range(4): a("v_cndmask_b32 v%d, v%d, 0, s[%d:%d]" % (D + 12 + e, D + 12 + e, sMsk, sMsk + 1))
    for e in (0, 2):
        a("v_pk_add_f32 v[%d:%d], v[%d:%d], v[%d:%d]" % (D + e, D + e + 1, D + e, D + e + 1, D + 4 + e, D + 5 + e))
        a("v_pk_add_f32 v[%d:%d], v[%d:%d], v[%d:%d]" % (D + 8 + e, D + 9 + e, D + 8 + e, D + 9 + e, D + 12 + e, D + 13 + e))
    for e in (0, 2):
        a("v_pk_add_f32 v[%d:%d], v[%d:%d], v[%d:%d]" % (D + e, D + e + 1, D + e, D + e + 1, D + 8 + e, D + 9 + e))
    a("v_permlane16_swap_b32 v%d, v%d" % (D, D + 1)); a("v_permlane16_swap_b32 v%d, v%d" % (D + 2, D + 3))
    a("v_add_f32 v%d, v%d, v%d" % (D, D, D + 1)); a("v_add_f32 v%d, v%d, v%d" % (D + 2, D + 2, D + 3))
    a("v_permlane32_swap_b32 v%d, v%d" % (D, D + 2))
    a("v_add_f32 v%d, v%d, v%d" % (D, D, D + 2))
    for sh in (8, 4, 2): a("v_add_f32_dpp v%d, v%d, v%d row_ror:%d row_mask:0xf bank_mask:0xf" % (D, D, D, sh))
    a("v_mov_b32 v%d, v%d" % (D + 1, HS))
    a("v_cvt_pk_bf16_f32 v%d, v%d, v%d" % (D, D, D)); a("v_lshlrev_b32 v%d, 16, v%d" % (D, D))
    a("v_add_f32 v%d, v%d, v%d" % (D, D, D + 1)); a("v_cvt_pk_bf16_f32 v%d, v%d, v%d" % (D, D, D))
    a("s_mov_b32 exec_lo, 0x00030003"); a("s_mov_b32 exec_hi, 0x00030003")
    a("buffer_store_short v%d, v%d, s[%d:%d], s%d offen" % (D, AOUT, SRD_W2, SRD_W2 + 3, sYP))
    a("s_cmp_lg_u32 s%d, 0" % sE); a("s_cbranch_scc1 L_done")
    a("s_mov_b64 exec, 1")
    a("v_mov_b32 v%d, s%d" % (t0, sEp1)); a("v_mov_b32 v%d, 0" % t1)
    a("buffer_store_dword v%d, v%d, s[%d:%d], 0 offen offset:%d" % (t0, t1, SRD_WS, SRD_WS + 3, WS_EPOCH))
    a("s_branch L_done")

def f_role(g):
    a = g.a; o = g.o; spin = o["spin"]
    t0, t1, t2, t3 = vTmp, vTmp + 1, vTmp + 2, vTmp + 3
    a("s_mov_b32 s%d, s%d" % (sSave, sE))
    a("s_and_b32 s%d, s%d, 3" % (sSave + 1, sSave))
    a("s_lshr_b32 s%d, s%d, 2" % (sT0, sSave)); a("s_lshl_b32 s%d, s%d, 7" % (sT0, sT0))
    a("s_mul_i32 s%d, s%d, %d" % (sT1, sSave + 1, 128 * 3584)); a("s_add_u32 s%d, s%d, s%d" % (sT0, sT0, sT1))
    g.make_srd(SRD_W1, sPG, 0, off_sreg=sT0); a("s_sub_u32 s%d, %d, s%d" % (SRD_W1 + 2, 512 * 3584, sT0))
    g.make_srd(SRD_W2, sPU, 0, off_sreg=sT0); a("s_sub_u32 s%d, %d, s%d" % (SRD_W2 + 2, 512 * 3584, sT0))
    a("s_lshl_b32 s%d, s%d, 14" % (sT0, sSave))
    g.make_srd(SRD_W3, sPD, 16384, off_sreg=sT0)
    a("v_lshrrev_b32 v%d, 3, v%d" % (t0, vLane)); a("s_lshl_b32 s%d, s%d, 5" % (sT0, sWave)); a("v_add_u32 v%d, s%d, v%d" % (t0, sT0, t0))
    a("s_movk_i32 s%d, 3584" % sT1); a("v_mul_lo_u32 v%d, v%d, s%d" % (t0, t0, sT1))
    a("v_and_b32 v%d, 7, v%d" % (t1, vLane)); a("v_lshl_add_u32 v%d, v%d, 4, v%d" % (t0, t1, t0))
    a("s_lshl_b32 s%d, s%d, 12" % (sT0, sWave))
    for mat, srd, img in ((0, SRD_W1, L_IMG0), (1, SRD_W2, L_IMG1)):
        for c in range(4):
            a("s_add_u32 m0, s%d, %d" % (sT0, img + c * 1024)); a("s_mov_b32 s%d, %d" % (sT1, c * 8 * 3584))
            a("buffer_load_dwordx4 v%d, s[%d:%d], s%d offen nt lds" % (t0, srd, srd + 3, sT1))
    DW = vVS[2]
    a("v_lshrrev_b32 v%d, 4, v%d" % (t1, vLane)); a("v_lshlrev_b32 v%d, 12, v%d" % (t1, t1))
    a("v_and_b32 v%d, 15, v%d" % (t2, vLane)); a("v_lshl_add_u32 v%d, v%d, 4, v%d" % (t1, t2, t1))
    a("s_lshl_b32 s%d, s%d, 8" % (sT0, sWave)); a("v_add_u32 v%d, s%d, v%d" % (t1, sT0, t1))
    for i in range(4):
        a("buffer_load_dwordx4 v[%d:%d], v%d, s[%d:%d], 0 offen offset:%d nt" % (DW + 4 * i, DW + 4 * i + 3, t1, SRD_W3, SRD_W3 + 3, i * 1024))
    g.ts("x_f_iss")
    if o.get("fptouch", False):
        a("s_and_b32 s%d, s%d, 0xfffffffc" % (sT0, sSave)); a("s_mul_i32 s%d, s%d, 3072" % (sT0, sT0))
        a("s_mul_i32 s%d, s%d, 768" % (sT1, sSave + 1)); a("s_add_u32 s%d, s%d, s%d" % (sT0, sT0, sT1)); a("s_add_u32 s%d, s%d, %d" % (sT0, sT0, WS_FP))
        a("v_lshrrev_b32 v%d, 3, v%d" % (t1, vLane)); a("v_min_u32 v%d, 3, v%d" % (t1, t1)); a("v_mul_u32_u24 v%d, 3072, v%d" % (t1, t1))
        a("v_and_b32 v%d, 7, v%d" % (t2, vLane)); a("v_min_u32 v%d, 5, v%d" % (t2, t2)); a("v_lshl_add_u32 v%d, v%d, 7, v%d" % (t1, t2, t1))
        a("buffer_load_dword v%d, v%d, s[%d:%d], s%d offen" % (vG + 54, t1, SRD_WS, SRD_WS + 3, sT0))
    XR = vT
    a("v_lshrrev_b32 v%d, 5, v%d" % (t1, vLane)); a("v_lshlrev_b32 v%d, 10, v%d" % (t1, t1)); a("v_and_b32 v%d, 31, v%d" % (t2, vLane)); a("v_lshl_add_u32 v%d, v%d, 3, v%d" % (t1, t2, t1))
    a("s_lshl_b32 s%d, s%d, 8" % (sT0, sSave + 1))
    a("buffer_load_dwordx2 v[%d:%d], v%d, s[%d:%d], s%d offen" % (XR, XR + 1, t1, SRD_X, SRD_X + 3, sT0))
    AY = vG
    a("v_lshrrev_b32 v%d, 5, v%d" % (t1, vLane)); a("v_lshlrev_b32 v%d, 4, v%d" % (t1, t1)); a("v_lshl_add_u32 v%d, v%d, 5, v%d" % (AY, t2, t1))
    a("s_lshl_b32 s%d, s%d, 10" % (sT0, sSave + 1)); a("v_add_u32 v%d, s%d, v%d" % (AY, sT0, AY))
    AP = vG + 5
    a("s_lshl_b32 s%d, s%d, 10" % (sT0, sWave)); a("v_lshl_add_u32 v%d, v%d, 4, s%d" % (AP, vLane, sT0))
    AL = vG + 6
    a("v_lshlrev_b32 v%d, 4, v%d" % (AL, vLane))
    TR = vG + 1
    a("v_lshrrev_b32 v%d, 4, v%d" % (t1, vLane)); a("v_bfe_u32 v%d, v%d, 2, 2" % (t2, vLane)); a("v_lshl_add_u32 v%d, v%d, 3, v%d" % (t2, t1, t2))
    a("v_lshlrev_b32 v%d, 7, v%d" % (t2, t2)); a("v_and_b32 v%d, 3, v%d" % (t3, vLane)); a("v_lshl_add_u32 v%d, v%d, 3, v%d" % (TR, t3, t2))
    a("s_lshl_b32 s%d, s%d, 5" % (sT0, sWave)); a("v_add_u32 v%d, s%d, v%d" % (TR, sT0, TR))
    AW = vG + 3; AH = vG + 2
    a("s_lshl_b32 s%d, s%d, 9" % (sT0, sWave))
    a("v_lshrrev_b32 v%d, 5, v%d" % (t2, vLane)); a("v_lshlrev_b32 v%d, 8, v%d" % (t2, t2)); a("v_and_b32 v%d, 31, v%d" % (t3, vLane)); a("v_lshl_add_u32 v%d, v%d, 3, v%d" % (AW, t3, t2))
    a("v_add_u32 v%d, s%d, v%d" % (AW, sT0, AW))
    a("v_bfe_u32 v%d, v%d, 2, 1" % (t2, vLane)); a("v_lshlrev_b32 v%d, 8, v%d" % (t2, t2)); a("v_lshl_add_u32 v%d, v%d, 4, v%d" % (AH, t1, t2))
    a("v_add_u32 v%d, s%d, v%d" % (AH, sT0, AH))
    AS = vG + 4
    a("v_and_b32 v%d, 15, v%d" % (AS, vLane)); a("v_lshlrev_b32 v%d, 6, v%d" % (AS, AS))
    a("v_bfe_u32 v%d, v%d, 5, 1" % (t2, vLane)); a("v_lshl_add_u32 v%d, v%d, 5, v%d" % (AS, t2, AS))
    a("v_bfe_u32 v%d, v%d, 4, 1" % (t2, vLane)); a("v_lshl_add_u32 v%d, v%d, 4, v%d" % (AS, t2, AS))
    a("s_lshl_b32 s%d, s%d, 10" % (sT0, sWave)); a("v_add_u32 v%d, s%d, v%d" % (AS, sT0, AS))
    AG = vG + 7
    a("v_lshrrev_b32 v%d, 4, v%d" % (t2, vLane)); a("v_min_u32 v%d, 2, v%d" % (t2, t2)); a("v_lshlrev_b32 v%d, 8, v%d" % (t2, t2))
    a("v_and_b32 v%d, 15, v%d" % (t3, vLane)); a("v_lshl_add_u32 v%d, v%d, 4, v%d" % (AG, t3, t2))
    a("s_waitcnt vmcnt(0)")
    a("s_barrier")
    BG = vVS[0]
    for mat, img in ((0, L_IMG0), (1, L_IMG1)):
        if mat: a("s_waitcnt lgkmcnt(4)")
        for t in range(4):
            b = BG + 16 * mat + 4 * t
            a("ds_read_b64_tr_b16 v[%d:%d], v%d offset:%d" % (b, b + 1, TR, img + t * 4096))
            a("ds_read_b64_tr_b16 v[%d:%d], v%d offset:%d" % (b + 2, b + 3, TR, img + t * 4096 + 512))
    DF = vVS[1]
    for j in range(8):
        for p in range(2):
            a("v_perm_b32 v%d, v%d, v%d, s%d" % (DF + 2 * j + p, DW + 4 * (2 * p + 1) + (j >> 1), DW + 4 * (2 * p) + (j >> 1), sSelHi if j & 1 else sSelLo))
    XF = vT + 2
    for p in range(2):
        a("v_lshlrev_b32 v%d, 16, v%d" % (XF + 2 * p, XR + p)); a("v_and_b32 v%d, 0xffff0000, v%d" % (XF + 2 * p + 1, XR + p))
    a("s_lshl_b32 s%d, s%d, 13" % (sT2, sWave)); a("s_add_u32 s%d, s%d, %d" % (sT2, sT2, WS_Y)); a("s_add_u32 s%d, s%d, 4096" % (sT3, sT2))
    a("s_waitcnt lgkmcnt(0)")
    g.ts("f_w")
    D = vO
    def issue(fl):
        a("buffer_load_dwordx4 v[%d:%d], v%d, s[%d:%d], s%d offen sc1" % (D, D + 3, AY, SRD_WS, SRD_WS + 3, sT2))
        a("buffer_load_dwordx4 v[%d:%d], v%d, s[%d:%d], s%d offen sc1" % (D + 4, D + 7, AY, SRD_WS, SRD_WS + 3, sT3))
    poll_loop(g, "h2", issue, lambda: chk_acc(g, [D, D + 4], t0, t1, t2), spin)
    g.ts("f_h2")
    for e in (0, 2): a("v_pk_add_f32 v[%d:%d], v[%d:%d], v[%d:%d]" % (D + e, D + e + 1, D + e, D + e + 1, D + 4 + e, D + 5 + e))
    a("ds_write_b128 v%d, v[%d:%d] offset:%d" % (AP, D, D + 3, L_CO))
    a("s_waitcnt lgkmcnt(0)")
    a("s_barrier")
    g.ts("x_f_b1")
    for w in range(4): a("ds_read_b128 v[%d:%d], v%d offset:%d" % (D + 4 * w, D + 4 * w + 3, AL, L_CO + 1024 * w))
    a("s_waitcnt lgkmcnt(2)")
    for e in (0, 2): a("v_pk_add_f32 v[%d:%d], v[%d:%d], v[%d:%d]" % (D + e, D + e + 1, D + e, D + e + 1, D + 4 + e, D + 5 + e))
    a("s_waitcnt lgkmcnt(0)")
    for e in (0, 2): a("v_pk_add_f32 v[%d:%d], v[%d:%d], v[%d:%d]" % (D + 8 + e, D + 9 + e, D + 8 + e, D + 9 + e, D + 12 + e, D + 13 + e))
    for e in (0, 2): a("v_pk_add_f32 v[%d:%d], v[%d:%d], v[%d:%d]" % (D + e, D + e + 1, D + e, D + e + 1, D + 8 + e, D + 9 + e))
    H = vO + 8
    a("v_cvt_pk_bf16_f32 v%d, v%d, v%d" % (D + 4, D, D + 1)); a("v_cvt_pk_bf16_f32 v%d, v%d, v%d" % (D + 5, D + 2, D + 3))
    for p in range(2):
        a("v_lshlrev_b32 v%d, 16, v%d" % (D + 2 * p, D + 4 + p)); a("v_and_b32 v%d, 0xffff0000, v%d" % (D + 2 * p + 1, D + 4 + p))
    for e in (0, 2): a("v_pk_add_f32 v[%d:%d], v[%d:%d], v[%d:%d]" % (H + e, H + e + 1, D + e, D + e + 1, XF + e, XF + e + 1))
    a("v_cvt_pk_bf16_f32 v%d, v%d, v%d" % (D + 4, H, H + 1)); a("v_cvt_pk_bf16_f32 v%d, v%d, v%d" % (D + 5, H + 2, H + 3))
    a("ds_write_b64 v%d, v[%d:%d] offset:%d" % (AW, D + 4, D + 5, L_HN))
    for p in range(2):
        a("v_lshlrev_b32 v%d, 16, v%d" % (H + 2 * p, D + 4 + p)); a("v_and_b32 v%d, 0xffff0000, v%d" % (H + 2 * p + 1, D + 4 + p))
    AF = vS
    a("s_waitcnt lgkmcnt(0)")
    for t in range(4): a("ds_read_b128 v[%d:%d], v%d offset:%d" % (AF + 4 * t, AF + 4 * t + 3, AH, L_HN + 64 * t))
    S1, S2 = vO + 12, vO + 13
    a("v_add_f32 v%d, v%d, v%d" % (S1, H, H + 1)); a("v_mul_f32 v%d, v%d, v%d" % (S2, H, H))
    a("v_add_f32 v%d, v%d, v%d" % (D + 2, H + 2, H + 3)); a("v_fmac_f32 v%d, v%d, v%d" % (S2, H + 1, H + 1))
    a("v_add_f32 v%d, v%d, v%d" % (S1, S1, D + 2)); a("v_fmac_f32 v%d, v%d, v%d" % (S2, H + 2, H + 2)); a("v_fmac_f32 v%d, v%d, v%d" % (S2, H + 3, H + 3))
    a("s_mov_b32 s%d, 0xff00ff00" % sMsk); a("s_mov_b32 s%d, 0xff00ff00" % (sMsk + 1))
    a("v_mov_b32 v%d, 0x3f803f80" % t0)
    a("s_waitcnt lgkmcnt(0)")
    for q in range(16): a("v_cndmask_b32 v%d, v%d, v%d, s[%d:%d]" % (AF + q, AF + q, t0, sMsk, sMsk + 1))
    GD, UD = vO, vO + 4
    for t in range(4):
        for mat, dd in ((0, GD), (1, UD)):
            b = BG + 16 * mat + 4 * t
            a("v_mfma_f32_16x16x32_bf16 v[%d:%d], v[%d:%d], v[%d:%d], %s" % (dd, dd + 3, AF + 4 * t, AF + 4 * t + 3, b, b + 3, "0" if t == 0 else "v[%d:%d]" % (dd, dd + 3)))
    for sh in (8, 4, 2, 1):
        a("v_add_f32_dpp v%d, v%d, v%d row_ror:%d row_mask:0xf bank_mask:0xf" % (S1, S1, S1, sh))
        a("v_add_f32_dpp v%d, v%d, v%d row_ror:%d row_mask:0xf bank_mask:0xf" % (S2, S2, S2, sh))
    a("v_mov_b32 v%d, v%d" % (t1, S1)); a("v_mov_b32 v%d, v%d" % (t2, S2))
    a("v_permlane16_swap_b32 v%d, v%d" % (S1, t1)); a("v_permlane16_swap_b32 v%d, v%d" % (S2, t2))
    a("v_add_f32 v%d, v%d, v%d" % (S1, S1, t1)); a("v_add_f32 v%d, v%d, v%d" % (S2, S2, t2))
    a("v_mov_b32 v%d, v%d" % (t1, S1)); a("v_mov_b32 v%d, v%d" % (t2, S2))
    a("v_permlane32_swap_b32 v%d, v%d" % (S1, t1)); a("v_permlane32_swap_b32 v%d, v%d" % (S2, t2))
    a("s_mov_b32 s%d, 0xffff0000" % sMsk); a("s_mov_b32 s%d, 0" % (sMsk + 1))
    G = vS
    a("v_cndmask_b32 v%d, v%d, v%d, s[%d:%d]" % (G + 2, S1, t1, sMsk, sMsk + 1)); a("v_cndmask_b32 v%d, v%d, v%d, s[%d:%d]" % (G + 3, S2, t2, sMsk, sMsk + 1))
    g.tag4(G + 4, [GD, UD, G + 2, G + 3])
    a("s_mul_i32 s%d, s%d, 3072" % (sT0, sSave)); a("s_mul_i32 s%d, s%d, 768" % (sT1, sWave)); a("s_add_u32 s%d, s%d, s%d" % (sT0, sT0, sT1))
    a("s_add_u32 s%d, s%d, %d" % (sT0, sT0, WS_FP))
    a("s_mov_b32 exec_hi, 0xffff")
    g.by_mode(lambda fl: a("buffer_store_dwordx4 v[%d:%d], v%d, s[%d:%d], s%d offen %s" % (G + 4, G + 7, AL, SRD_WS, SRD_WS + 3, sT0, fl)))
    a("s_mov_b64 exec, -1")
    g.ts("x_f_fp")
    a("s_and_b32 s%d, s%d, 0xfffffffc" % (sT0, sSave)); a("s_mul_i32 s%d, s%d, 3072" % (sT0, sT0))
    a("s_mul_i32 s%d, s%d, 768" % (sT1, sSave + 1)); a("s_add_u32 s%d, s%d, s%d" % (sT0, sT0, sT1)); a("s_add_u32 s%d, s%d, %d" % (sT0, sT0, WS_FP))
    for u in range(1, 4): a("s_add_u32 s%d, s%d, %d" % (sT0 + u, sT0, u * 3072))
    D = vO
    def issue2(fl):
        for u in range(4):
            a("buffer_load_dwordx4 v[%d:%d], v%d, s[%d:%d], s%d offen %s" % (D + 4 * u, D + 4 * u + 3, AG, SRD_WS, SRD_WS + 3, sT0 + u, fl))
    poll_loop(g, "hf", issue2, lambda: chk_acc(g, [D + 4 * u for u in range(4)], t0, t1, t2), spin, local=True)
    g.ts("x_f_hf")
    for e in (0, 2):
        a("v_pk_add_f32 v[%d:%d], v[%d:%d], v[%d:%d]" % (D + e, D + e + 1, D + e, D + e + 1, D + 4 + e, D + 5 + e))
        a("v_pk_add_f32 v[%d:%d], v[%d:%d], v[%d:%d]" % (D + 8 + e, D + 9 + e, D + 8 + e, D + 9 + e, D + 12 + e, D + 13 + e))
    for e in (0, 2): a("v_pk_add_f32 v[%d:%d], v[%d:%d], v[%d:%d]" % (D + e, D + e + 1, D + e, D + e + 1, D + 8 + e, D + 9 + e))
    CG, CU = D + 4, D + 5
    a("v_mov_b32 v%d, v%d" % (t0, D)); a("v_mov_b32 v%d, v%d" % (t1, D + 1))
    a("v_permlane32_swap_b32 v%d, v%d" % (t0, CG)); a("v_permlane32_swap_b32 v%d, v%d" % (t1, CU))
    MN, VR = D + 6, D + 7
    a("v_mul_f32 v%d, 0x3b000000, v%d" % (MN, D + 2)); a("v_mul_f32 v%d, 0x3b000000, v%d" % (VR, D + 3))
    a("v_fma_f32 v%d, -v%d, v%d, v%d" % (VR, MN, MN, VR))
    a("v_cvt_pk_bf16_f32 v%d, v%d, v%d" % (t0, MN, VR))
    a("v_lshlrev_b32 v%d, 16, v%d" % (MN, t0)); a("v_and_b32 v%d, 0xffff0000, v%d" % (VR, t0))
    a("v_add_f32 v%d, 0x3727c5ac, v%d" % (VR, VR))
    a("v_cvt_pk_bf16_f32 v%d, v%d, v%d" % (VR, VR, VR)); a("v_lshlrev_b32 v%d, 16, v%d" % (VR, VR))
    a("v_sqrt_f32 v%d, v%d" % (VR, VR))
    a("v_fma_f32 v%d, -v%d, v%d, v%d" % (D, MN, CG, D)); a("v_fma_f32 v%d, -v%d, v%d, v%d" % (D + 1, MN, CU, D + 1))
    a("v_cvt_pk_bf16_f32 v%d, v%d, v%d" % (VR, VR, VR)); a("v_lshlrev_b32 v%d, 16, v%d" % (VR, VR))
    a("v_rcp_f32 v%d, v%d" % (VR, VR))
    a("v_mul_f32 v%d, v%d, v%d" % (D, D, VR)); a("v_mul_f32 v%d, v%d, v%d" % (D + 1, D + 1, VR))
    a("v_cvt_pk_bf16_f32 v%d, v%d, v%d" % (t0, D, D + 1))
    a("v_lshlrev_b32 v%d, 16, v%d" % (D, t0)); a("v_and_b32 v%d, 0xffff0000, v%d" % (D + 1, t0))
    a("v_mul_f32 v%d, s%d, v%d" % (t0, sLog2e, D)); a("v_exp_f32 v%d, -v%d" % (t0, t0)); a("v_add_f32 v%d, 1.0, v%d" % (t0, t0)); a("v_rcp_f32 v%d, v%d" % (t0, t0))
    a("v_mul_f32 v%d, v%d, v%d" % (D, D, t0))
    a("v_cvt_pk_bf16_f32 v%d, v%d, v%d" % (t0, D, D)); a("v_lshlrev_b32 v%d, 16, v%d" % (D, t0))
    a("v_mul_f32 v%d, v%d, v%d" % (D, D, D + 1))
    a("v_cvt_pk_bf16_f32 v%d, v%d, v%d" % (D, D, D))
    a("s_lshl_b32 s%d, s%d, 6" % (sT0, sWave)); a("v_lshl_add_u32 v%d, v%d, 1, s%d" % (t0, vLane, sT0))
    a("s_mov_b32 exec_hi, 0")
    a("ds_write_b16 v%d, v%d offset:%d" % (t0, D, L_GU))
    a("s_mov_b64 exec, -1")
    a("v_bfe_u32 v%d, v%d, 2, 1" % (t0, vLane)); a("v_lshlrev_b32 v%d, 5, v%d" % (t0, t0))
    a("v_lshrrev_b32 v%d, 4, v%d" % (t1, vLane)); a("v_lshl_add_u32 v%d, v%d, 3, v%d" % (t0, t1, t0)); a("v_add_u32 v%d, s%d, v%d" % (t0, sT0, t0))
    AC = vS
    a("s_waitcnt lgkmcnt(0)")
    a("ds_read_b64 v[%d:%d], v%d offset:%d" % (AC, AC + 1, t0, L_GU))
    a("s_mov_b32 s%d, 0" % sMsk); a("s_mov_b32 s%d, -1" % (sMsk + 1))
    a("s_lshl_b32 s%d, s%d, 12" % (sT0, sSave)); a("s_add_u32 s%d, s%d, %d" % (sT0, sT0, WS_OP))
    a("s_waitcnt lgkmcnt(0)")
    g.ts("x_f_act")
    YD = vO
    for j in range(8):
        a("v_mfma_f32_16x16x16_bf16 v[%d:%d], v[%d:%d], v[%d:%d], 0" % (YD + 4 * j, YD + 4 * j + 3, AC, AC + 1, DF + 2 * j, DF + 2 * j + 1))
    G = vS + 4
    for e in range(4): a("v_cndmask_b32 v%d, v%d, v%d, s[%d:%d]" % (G + e, YD + 4 * e, YD + 4 * (4 + e), sMsk, sMsk + 1))
    g.tag4(G + 4, [G, G + 1, G + 2, G + 3])
    a("buffer_store_dwordx4 v[%d:%d], v%d, s[%d:%d], s%d offen sc1" % (G + 4, G + 7, AS, SRD_WS, SRD_WS + 3, sT0))
    g.ts("f_op")
    a("s_branch L_done")

def emit(g):
    a = g.a
    weights_setup(g)
    g.comb_pre()
    o_pre(g)
    nextra = 0
    if g.o.get("prestore", False):
        nextra = pre_store(g)
        a("s_mov_b32 s%d, 4096" % sT2); a("s_mov_b32 s%d, 0" % sT3)
    g.stream(weights_hook=lambda: weights_hook(g), touch_hook=None, nextra=nextra)
    g.ts("stream")
    a.label("L_tail0")
    g.wg_combine()
    g.ts("comb")
    if g.o.get("tsn") and "x_ack" in g.o["tsn"]:
        a("s_waitcnt vmcnt(0)"); g.ts("x_ack")
    if g.o.get("stop") == "p": return
    o_stage(g)
    l = g.lab("noh1c")
    a("s_cmp_lt_u32 s%d, 28" % sJ); a("s_cbranch_scc1 %s" % l)
    h1c_role(g)
    a.label(l)
    a("s_bitcmp1_b32 s%d, 0" % sX); a("s_cbranch_scc1 L_final")
    a("s_cmp_lt_u32 s%d, 28" % sJ); a("s_cbranch_scc0 L_done")
    n0 = g.nts
    f_role(g)
    n1 = g.nts
    g.nts = n0
    a.label("L_final")
    final_role(g)
    g.nts = max(g.nts, n1)
```

```python
import sys
sys.path.insert(0, "gen")
from asmlib import Asm

NAME = "sequential_preLN__gqa_block_cached__swiglu_ffn__decode_kernel"

WS_EPOCH = 0x0
WS_Q     = 0x1A0000
WS_PO    = 0x10000
WS_PML   = 0x90000
WS_YP    = 0xA0000
WS_Y     = 0x120000
WS_OP    = 0x130000
WS_QA    = 0x1E0000
WS_FP    = 0x220000
WS_DBG   = 0x300000
WS_TS    = 0x400000
WS_SIZE  = 0x10000000

L_IMG0 = 0x0000
L_IMG1 = 0x4000
L_XN   = 0x8000
L_QP   = 0xA000
L_CO   = 0xB800
L_CML  = 0xD800
L_OA   = 0xD900
L_HST  = 0xDA00
L_HN   = 0xDB00
L_GU   = 0xE400
LDS_SIZE = 0xF000

sPX, sPK, sPV, sPWQ, sPWO, sPBX, sPG, sPU, sPD, sPOUT, sPDBG, sPWS = [4 + 2 * i for i in range(12)]
SRD_K, SRD_V, SRD_WS, SRD_W1, SRD_W2, SRD_W3, SRD_X = 28, 32, 36, 40, 44, 48, 52
sX, sJ, sWave, sB, sTag, sXcc, sSelLo, sSelHi = 56, 57, 58, 59, 60, 61, 62, 63
sTSel = 64
sChkA, sChkB = 68, 69
sScale = 70
sLog2e, sCnt = 72, 73
sOffA, sOffB = 74, 75
sRot, sMode = 76, 77
sT0, sT1, sT2, sT3 = 78, 79, 80, 81
sSave = 82
sMsk = 84
sEp1 = 86
sP = 87
sPO, sPML = 14, 15
sTS = 88
vTid, vLane, vOffK, vOffV = 0, 1, 2, 3
vQ = 4
vM, vL, vAl = 8, 9, 10
vTmp = 12
vO = 16
vS = 48
vVS = [80, 112, 144]
vT = 176
vU = 184
vP = 192
vTagW = 196
vG = 198
vCA = vG + 44
aKS = [0, 32, 64]

def sr(n, k=1): return "s%d" % n if k == 1 else "s[%d:%d]" % (n, n + k - 1)
def vr(n, k=1): return "v%d" % n if k == 1 else "v[%d:%d]" % (n, n + k - 1)
def ar(n, k=1): return "a%d" % n if k == 1 else "a[%d:%d]" % (n, n + k - 1)

class Gen:
    def __init__(self, **opt):
        self.o = dict(stop_after=None, ts=False, dbg=None, rotw=1, rotx=4, rotj=0, ntflag="nt", spin=3000,
                      local=True, sched=None, prefetch_code=True)
        self.o.update(opt)
        self.a = Asm()
        self.nts = 0
        self.sTagW = sTag
        self.uid = 0
        self.vq = []
        self.NS = self.o.get("NS", 3)
        self.bulk = [(k, t, h) for t in range(self.NS) for k in "KV" for h in range(2)]
        self.bi = 0
    def lab(self, p):
        self.uid += 1
        return "L_%s_%d" % (p, self.uid)
    def ts(self, name=None):
        if not self.o["ts"]: return
        tsn = self.o.get("tsn")
        if tsn is not None and name not in tsn and name not in ("start", "end"): return
        if tsn is None and name is not None and name.startswith("x_"): return
        self.tsnames = getattr(self, "tsnames", {}); self.tsnames.setdefault(self.nts, []).append(name)
        a = self.a
        i = self.nts; self.nts += 1
        assert i < 12
        a("s_memrealtime s[102-2]" if False else "s_memrealtime s[%d:%d]" % (100, 101))
        a("s_waitcnt lgkmcnt(0)")
        a("s_mov_b32 s%d, s100" % (sTS + i))

    def ts_slot(self):
        if not self.o["ts"]: return None
        i = self.nts; self.nts += 1
        return i
    def ts_at(self, i, val=None):
        if i is None: return
        a = self.a
        if val is not None:
            a("s_mov_b32 s%d, %d" % (sTS + i, val)); return
        a("s_memrealtime s[100:101]"); a("s_waitcnt lgkmcnt(0)"); a("s_mov_b32 s%d, s100" % (sTS + i))

    def vm(self, tag, n=1): self.vq += [tag] * n
    def vwait(self, tag):
        idx = max(i for i, t in enumerate(self.vq) if t == tag)
        self.a("s_waitcnt vmcnt(%d)" % (len(self.vq) - 1 - idx))
    def issue_bulk(self, n):
        for _ in range(n):
            if self.bi < len(self.bulk):
                k, t, h = self.bulk[self.bi]; self.bi += 1
                self.load_half(k, t, h); self.vm("bulk", 4)

    def make_srd(self, srd, ptr, size, off_sreg=None, off_imm=None):
        a = self.a
        if off_sreg is None and off_imm is None:
            a("s_mov_b32 s%d, s%d" % (srd, ptr)); a("s_mov_b32 s%d, s%d" % (srd + 1, ptr + 1))
        elif off_sreg is not None:
            a("s_add_u32 s%d, s%d, s%d" % (srd, ptr, off_sreg)); a("s_addc_u32 s%d, s%d, 0" % (srd + 1, ptr + 1))
        else:
            a("s_add_u32 s%d, s%d, %d" % (srd, ptr, off_imm)); a("s_addc_u32 s%d, s%d, 0" % (srd + 1, ptr + 1))
        a("s_mov_b32 s%d, %s" % (srd + 2, size if isinstance(size, str) else "0x%x" % size))
        a("s_mov_b32 s%d, 0x20000" % (srd + 3))

    def tag4(self, dst, src):
        for k in range(4):
            self.a("v_perm_b32 v%d, v%d, v%d, s%d" % (dst + k, src[k], vTagW, sTSel + k))
    def chk4(self, d, t0, t1):
        a = self.a
        a("v_perm_b32 v%d, v%d, v%d, s%d" % (t0, d + 1, d, sChkA))
        a("v_perm_b32 v%d, v%d, v%d, s%d" % (t1, d + 3, d + 2, sChkB))
        a("v_or_b32 v%d, v%d, v%d" % (t0, t0, t1))
        a("v_cmp_eq_u32 vcc, v%d, v%d" % (t0, vTagW))

    def allred_row16(self, op, r, t=None):
        for sh in (8, 4, 2, 1):
            self.a("%s_dpp v%d, v%d, v%d row_ror:%d row_mask:0xf bank_mask:0xf" % (op, r, r, r, sh))
    def allred_x16(self, op, r, t):
        a = self.a
        a("v_mov_b32 v%d, v%d" % (t, r)); a("v_permlane16_swap_b32 v%d, v%d" % (r, t)); a("%s v%d, v%d, v%d" % (op, r, r, t))
    def allred_x32(self, op, r, t):
        a = self.a
        a("v_mov_b32 v%d, v%d" % (t, r)); a("v_permlane32_swap_b32 v%d, v%d" % (r, t)); a("%s v%d, v%d, v%d" % (op, r, r, t))

    def prologue(self):
        a = self.a; o = self.o
        a("s_cmp_ge_u32 s2, 256"); a("s_cbranch_scc1 L_end")
        for q in range(o.get("jumps", 0)):
            a("s_branch L_jmp%d" % q); a.raw(".fill %d, 4, 0xbf800000" % (o.get("jgap", 1024) // 4)); a.label("L_jmp%d" % q)
        a("s_load_dwordx16 s[4:19], s[0:1], 0")
        a("s_load_dwordx8 s[20:27], s[0:1], 64")
        if o.get("prefetch_code"):
            a("s_getpc_b64 s[28:29]")
            a.label("L_pc")
            a("v_lshlrev_b32 v%d, 7, v0" % vTmp)
            a("v_min_u32 v%d, L_end-L_pc, v%d" % (vTmp, vTmp))
            a("global_load_dword v%d, v%d, s[28:29]" % (vG + 57, vTmp))
        if o["ts"]:
            for i in range(12): a("s_mov_b32 s%d, 0" % (sTS + i))
        self.ts("start")
        a("v_and_b32 v%d, 63, v0" % vLane)
        a("v_lshrrev_b32 v%d, 6, v0" % vTmp)
        a("s_and_b32 s%d, s2, 7" % sX)
        a("v_readfirstlane_b32 s%d, v%d" % (sWave, vTmp))
        a("s_lshr_b32 s%d, s2, 3" % sJ)
        a("s_lshr_b32 s%d, s%d, 4" % (sB, sJ))
        a("s_lshl_b32 s%d, s%d, 5" % (sP, sX)); a("s_add_u32 s%d, s%d, s%d" % (sP, sP, sJ))
        a("v_bfe_u32 v%d, v%d, 2, 2" % (vTmp, vLane)); a("v_lshlrev_b32 v%d, 8, v%d" % (vOffK, vTmp))
        a("v_lshrrev_b32 v%d, 4, v%d" % (vTmp, vLane)); a("v_lshl_add_u32 v%d, v%d, 6, v%d" % (vOffK, vTmp, vOffK))
        a("v_and_b32 v%d, 3, v%d" % (vTmp, vLane)); a("v_lshl_add_u32 v%d, v%d, 4, v%d" % (vOffK, vTmp, vOffK))
        a("v_lshlrev_b32 v%d, 4, v%d" % (vOffV, vLane))
        a("s_lshl_b32 s%d, s%d, 16" % (sT0, sWave))
        a("v_add_u32 v%d, s%d, v%d" % (vOffK, sT0, vOffK)); a("v_add_u32 v%d, s%d, v%d" % (vOffV, sT0, vOffV))
        a("v_lshrrev_b32 v%d, 5, v%d" % (vTmp, vLane)); a("v_and_b32 v%d, 31, v%d" % (vTmp + 1, vLane))
        a("v_lshlrev_b32 v%d, 10, v%d" % (vG, vTmp)); a("v_lshl_add_u32 v%d, v%d, 4, v%d" % (vG, vTmp + 1, vG))
        a("v_lshrrev_b32 v%d, 3, v%d" % (vTmp, vLane)); a("v_lshlrev_b32 v%d, 13, v%d" % (vG + 1, vTmp))
        a("v_and_b32 v%d, 7, v%d" % (vTmp, vLane)); a("v_lshl_add_u32 v%d, v%d, 4, v%d" % (vG + 1, vTmp, vG + 1))
        a("s_mul_i32 s%d, s%d, %d" % (sRot, sWave, o["rotw"])); a("s_mul_i32 s%d, s%d, %d" % (sT1, sX, o["rotx"]))
        a("s_add_u32 s%d, s%d, s%d" % (sRot, sRot, sT1)); a("s_mul_i32 s%d, s%d, %d" % (sT1, sJ, o["rotj"]))
        a("s_add_u32 s%d, s%d, s%d" % (sRot, sRot, sT1)); a("s_and_b32 s%d, s%d, 15" % (sRot, sRot))
        a("s_lshl_b32 s%d, s%d, 3" % (sT1, sB)); a("s_add_u32 s%d, s%d, s%d" % (sT1, sT1, sX)); a("s_lshl_b32 s%d, s%d, 4" % (sT1, sT1))
        a("s_and_b32 s%d, s%d, 15" % (sT2, sJ)); a("s_add_u32 s%d, s%d, s%d" % (sT1, sT1, sT2)); a("s_lshl_b32 s%d, s%d, 18" % (sT1, sT1))
        a("s_lshl_b32 s%d, s%d, 10" % (sT2, sX)); a("s_and_b32 s%d, s%d, 7" % (sT3, sJ)); a("s_lshl_b32 s%d, s%d, 7" % (sT3, sT3))
        a("s_add_u32 s%d, s%d, s%d" % (sT2, sT2, sT3)); a("s_lshr_b32 s%d, s%d, 3" % (sT3, sJ)); a("s_lshl_b32 s%d, s%d, 20" % (sT3, sT3))
        a("s_add_u32 s%d, s%d, s%d" % (sT2, sT2, sT3))
        a("s_waitcnt lgkmcnt(0)")
        self.make_srd(SRD_X, sPX, 2048)
        self.make_srd(SRD_W1, sPWQ, "s%d" % sT3 if False else 0x400000, off_sreg=sT2)
        a("s_sub_u32 s%d, 0x400000, s%d" % (SRD_W1 + 2, sT2))
        self.make_srd(SRD_K, sPK, 0x40000, off_sreg=sT1)
        self.make_srd(SRD_WS, sPWS, WS_SIZE)
        a("s_load_dword s%d, s[%d:%d], 0x%x" % (sTag, sPWS, sPWS + 1, WS_EPOCH))
        lab = self.lab("w0")
        a("s_cmp_lg_u32 s%d, 0" % sWave); a("s_cbranch_scc1 %s" % lab)
        a("buffer_load_dwordx4 v[%d:%d], v%d, s[%d:%d], 0 offen" % (vG + 4, vG + 7, vG, SRD_X, SRD_X + 3))
        a("buffer_load_dwordx4 v[%d:%d], v%d, s[%d:%d], 0 offen offset:512" % (vG + 8, vG + 11, vG, SRD_X, SRD_X + 3))
        self.vm("x", 2)
        for c in range(16):
            a("s_mov_b32 m0, %d" % (L_IMG0 + c * 1024))
            a("s_mov_b32 s%d, %d" % (sOffA, c * 8 * 8192))
            a("buffer_load_dwordx4 v%d, s[%d:%d], s%d offen nt lds" % (vG + 1, SRD_W1, SRD_W1 + 3, sOffA))
        self.vm("wq", 16)
        if o.get("touch", True):
            a("s_lshl_b32 s%d, s%d, 15" % (sT2, sX)); a("s_lshl_b32 s%d, s%d, 12" % (sT3, sB)); a("s_add_u32 s%d, s%d, s%d" % (sT2, sT2, sT3))
            a("s_add_u32 s%d, s%d, %d" % (sT2, sT2, WS_QA))
            a("v_and_b32 v%d, 31, v%d" % (vTmp, vLane)); a("v_lshlrev_b32 v%d, 7, v%d" % (vTmp, vTmp))
            a("v_lshrrev_b32 v%d, 5, v%d" % (vTmp + 1, vLane)); a("v_lshl_add_u32 v%d, v%d, 13, v%d" % (vTmp, vTmp + 1, vTmp))
            a("buffer_load_dword v%d, v%d, s[%d:%d], s%d offen %s" % (vG + 56, vTmp, SRD_WS, SRD_WS + 3, sT2, o.get("touchflag", "sc1")))
            a("s_add_u32 s%d, s%d, 16384" % (sT2, sT2))
            a("buffer_load_dword v%d, v%d, s[%d:%d], s%d offen %s" % (vG + 57, vTmp, SRD_WS, SRD_WS + 3, sT2, o.get("touchflag", "sc1")))
            self.vm("touch", 2)
        a.label(lab)
        self.make_srd(SRD_V, sPV, 0x40000, off_sreg=sT1)
        a("s_barrier")
        a("s_mov_b32 s%d, 0x05040100" % sSelLo); a("s_mov_b32 s%d, 0x07060302" % sSelHi)
        for k in range(4): a("s_mov_b32 s%d, 0x%08x" % (sTSel + k, 0x07060500 + k))
        a("s_mov_b32 s%d, 0x0c0c0400" % sChkA); a("s_mov_b32 s%d, 0x04000c0c" % sChkB)
        a("s_mov_b32 s%d, 0x3db504f3" % sScale); a("s_mov_b32 s%d, 0x3db504f3" % (sScale + 1)); a("s_mov_b32 s%d, 0x3fb8aa3b" % sLog2e)
        a("s_getreg_b32 s%d, hwreg(HW_REG_XCC_ID, 0, 4)" % sXcc)

    def soff_half(self, t, half, dst):
        a = self.a
        a("s_add_u32 s%d, s%d, %d" % (dst, sRot, 2 * t + half))
        a("s_and_b32 s%d, s%d, 15" % (dst, dst)); a("s_lshl_b32 s%d, s%d, 12" % (dst, dst))

    def load_half(self, kind, t, half, dyn=False):
        a = self.a
        so = sOffA if half == 0 else sOffB
        if not dyn: self.soff_half(t, half, so)
        setsel = t % self.NS
        for i in range(4):
            slot = 4 * half + i
            if kind == "K":
                dst = ar(aKS[setsel] + 4 * slot, 4); voff = vOffK; srd = SRD_K
            else:
                dst = vr(vVS[setsel] + 4 * slot, 4); voff = vOffV; srd = SRD_V
            a("buffer_load_dwordx4 %s, v%d, s[%d:%d], s%d offen offset:%d %s" % (dst, voff, srd, srd + 3, so, i * 1024, self.o["ntflag"]))

    def tag_consts(self):
        a = self.a
        a("s_waitcnt lgkmcnt(0)")
        a("s_and_b32 s%d, s%d, 0xff" % (sT0, sTag))
        a("s_add_u32 s%d, s%d, 0x35" % (sT1, sT0)); a("s_and_b32 s%d, s%d, 0xff" % (sT1, sT1)); a("s_lshl_b32 s%d, s%d, 8" % (sT1, sT1))
        a("s_add_u32 s%d, s%d, 0x6a" % (sT2, sT0)); a("s_and_b32 s%d, s%d, 0xff" % (sT2, sT2)); a("s_lshl_b32 s%d, s%d, 16" % (sT2, sT2))
        a("s_add_u32 s%d, s%d, 0xc1" % (sT3, sT0)); a("s_lshl_b32 s%d, s%d, 24" % (sT3, sT3))
        a("s_or_b32 s%d, s%d, s%d" % (sT0, sT0, sT1)); a("s_or_b32 s%d, s%d, s%d" % (sT2, sT2, sT3)); a("s_or_b32 s%d, s%d, s%d" % (sT0, sT0, sT2))
        a("s_add_u32 s%d, s%d, 1" % (sEp1, sTag))
        a("s_mov_b32 s%d, s%d" % (self.sTagW, sT0))
        a("v_mov_b32 v%d, s%d" % (vTagW, sT0))

    def helper_startup(self):
        a = self.a; o = self.o
        W = o.get("win", 10)
        n = 0
        for (k, t, h) in self.bulk:
            if n + 4 > W: a("s_waitcnt vmcnt(%d)" % max(W - 4, 0))
            self.load_half(k, t, h); n += 4
        self.tag_consts()

    def ln_x(self):
        a = self.a
        X = vG + 4; F = vO
        t0, t1 = vTmp, vTmp + 1
        self.vwait("x")
        if self.o.get("tsq"): self.ts()
        for i in range(8):
            a("v_lshlrev_b32 v%d, 16, v%d" % (F + 2 * i, X + i))
            a("v_and_b32 v%d, 0xffff0000, v%d" % (F + 2 * i + 1, X + i))
        S = vO + 16
        a("v_pk_add_f32 v[%d:%d], v[%d:%d], v[%d:%d]" % (S, S + 1, F, F + 1, F + 2, F + 3))
        a("v_pk_add_f32 v[%d:%d], v[%d:%d], v[%d:%d]" % (S + 2, S + 3, F + 4, F + 5, F + 6, F + 7))
        for i in (4, 6):
            a("v_pk_add_f32 v[%d:%d], v[%d:%d], v[%d:%d]" % (S, S + 1, S, S + 1, F + 2 * i, F + 2 * i + 1))
            a("v_pk_add_f32 v[%d:%d], v[%d:%d], v[%d:%d]" % (S + 2, S + 3, S + 2, S + 3, F + 2 * i + 2, F + 2 * i + 3))
        a("v_pk_add_f32 v[%d:%d], v[%d:%d], v[%d:%d]" % (S, S + 1, S, S + 1, S + 2, S + 3))
        a("v_add_f32 v%d, v%d, v%d" % (S, S, S + 1))
        self.allred_row16("v_add_f32", S); self.allred_x16("v_add_f32", S, t0)
        a("v_mul_f32 v%d, 0x3b000000, v%d" % (S, S))
        MEAN = S; D = vO + 20
        a("v_mov_b32 v%d, v%d" % (S + 1, S))
        for i in range(8):
            a("v_pk_add_f32 v[%d:%d], v[%d:%d], v[%d:%d] neg_lo:[0,1] neg_hi:[0,1]" % (D + 2 * i, D + 2 * i + 1, F + 2 * i, F + 2 * i + 1, S, S + 1))
        Q = vO + 36
        a("v_pk_mul_f32 v[%d:%d], v[%d:%d], v[%d:%d]" % (Q, Q + 1, D, D + 1, D, D + 1))
        a("v_pk_mul_f32 v[%d:%d], v[%d:%d], v[%d:%d]" % (Q + 2, Q + 3, D + 2, D + 3, D + 2, D + 3))
        for i in range(2, 8):
            q = Q + 2 * (i & 1)
            a("v_pk_fma_f32 v[%d:%d], v[%d:%d], v[%d:%d], v[%d:%d]" % (q, q + 1, D + 2 * i, D + 2 * i + 1, D + 2 * i, D + 2 * i + 1, q, q + 1))
        a("v_pk_add_f32 v[%d:%d], v[%d:%d], v[%d:%d]" % (Q, Q + 1, Q, Q + 1, Q + 2, Q + 3))
        a("v_add_f32 v%d, v%d, v%d" % (Q, Q, Q + 1))
        self.allred_row16("v_add_f32", Q); self.allred_x16("v_add_f32", Q, t0)
        lab = self.lab("lo")
        a("s_cmp_lt_u32 s%d, 16" % sJ); a("s_cbranch_scc1 %s" % lab)
        for i in range(8): a("v_mov_b32 v%d, v%d" % (F + i, F + 8 + i))
        a.label(lab)
        a("v_mul_f32 v%d, 0x3b000000, v%d" % (Q, Q))
        a("v_cvt_pk_bf16_f32 v%d, v%d, v%d" % (t0, MEAN, Q))
        a("v_lshlrev_b32 v%d, 16, v%d" % (S, t0))
        a("v_and_b32 v%d, 0xffff0000, v%d" % (Q, t0))
        a("v_add_f32 v%d, 0x3727c5ac, v%d" % (Q, Q))
        a("v_mov_b32 v%d, v%d" % (S + 1, S))
        a("v_cvt_pk_bf16_f32 v%d, v%d, v%d" % (Q, Q, Q)); a("v_lshlrev_b32 v%d, 16, v%d" % (Q, Q))
        for i in range(4):
            a("v_pk_add_f32 v[%d:%d], v[%d:%d], v[%d:%d] neg_lo:[0,1] neg_hi:[0,1]" % (D + 2 * i, D + 2 * i + 1, F + 2 * i, F + 2 * i + 1, S, S + 1))
        a("v_sqrt_f32 v%d, v%d" % (Q, Q))
        for i in range(4):
            a("v_cvt_pk_bf16_f32 v%d, v%d, v%d" % (X + i, D + 2 * i, D + 2 * i + 1))
        a("v_cvt_pk_bf16_f32 v%d, v%d, v%d" % (Q, Q, Q)); a("v_lshlrev_b32 v%d, 16, v%d" % (Q, Q))
        a("v_rcp_f32 v%d, v%d" % (Q + 2, Q)); a("v_mov_b32 v%d, v%d" % (Q + 1, Q))
        for i in range(4):
            a("v_lshlrev_b32 v%d, 16, v%d" % (D + 2 * i, X + i)); a("v_and_b32 v%d, 0xffff0000, v%d" % (D + 2 * i + 1, X + i))
        a("v_mov_b32 v%d, v%d" % (Q + 3, Q + 2))
        for i in range(4):
            a("v_pk_mul_f32 v[%d:%d], v[%d:%d], v[%d:%d]" % (F + 2 * i, F + 2 * i + 1, D + 2 * i, D + 2 * i + 1, Q + 2, Q + 3))
        for i in range(4):
            a("v_pk_fma_f32 v[%d:%d], v[%d:%d], v[%d:%d], v[%d:%d] neg_lo:[1,0,0] neg_hi:[1,0,0]" % (D + 2 * i, D + 2 * i + 1, F + 2 * i, F + 2 * i + 1, Q, Q + 1, D + 2 * i, D + 2 * i + 1))
        for i in range(4):
            a("v_pk_fma_f32 v[%d:%d], v[%d:%d], v[%d:%d], v[%d:%d]" % (F + 2 * i, F + 2 * i + 1, D + 2 * i, D + 2 * i + 1, Q + 2, Q + 3, F + 2 * i, F + 2 * i + 1))
        for i in range(4):
            a("v_cvt_pk_bf16_f32 v%d, v%d, v%d" % (X + i, F + 2 * i, F + 2 * i + 1))

    def q_slice(self):
        a = self.a
        X = vG + 4
        AF = vG + 12; BF = vO; DQ = vG + 28
        a("ds_write_b128 v%d, v[%d:%d]" % (vG + 52, X, X + 3))
        a("s_waitcnt lgkmcnt(0)")
        for t in range(4):
            a("ds_read_b128 v[%d:%d], v%d offset:%d" % (AF + 4 * t, AF + 4 * t + 3, vG + 53, 64 * t))
        if self.o.get("tsq"): self.ts()
        self.vwait("wq")
        if self.o.get("tsq"): self.ts()
        for nt in range(4):
            a("s_waitcnt lgkmcnt(%d)" % (0 if nt == 0 else 4))
            for t in range(4):
                b = BF + 16 * nt + 4 * t
                a("ds_read_b64_tr_b16 v[%d:%d], v%d offset:%d" % (b, b + 1, vG + 54, L_IMG0 + t * 4096 + nt * 32))
                a("ds_read_b64_tr_b16 v[%d:%d], v%d offset:%d" % (b + 2, b + 3, vG + 54, L_IMG0 + t * 4096 + nt * 32 + 512))
            if nt >= 1:
                a("s_waitcnt lgkmcnt(8)")
                self._q_mfma(nt - 1, AF, BF, DQ)
        a("s_waitcnt lgkmcnt(0)")
        self._q_mfma(3, AF, BF, DQ)
        G = vG + 44
        for nt in range(4):
            g = vO + 4 * nt
            a("v_mov_b32_dpp v%d, v%d quad_perm:[0,0,2,2] row_mask:0xf bank_mask:0xf" % (g, DQ + 4 * nt))
            a("v_mov_b32_dpp v%d, v%d quad_perm:[1,1,3,3] row_mask:0xf bank_mask:0xf" % (g + 2, DQ + 4 * nt))
            a("v_mov_b32 v%d, v%d" % (g + 1, vTagW)); a("v_mov_b32 v%d, s%d" % (g + 3, sT3))
        a("s_mov_b32 exec_lo, 0x55555555"); a("s_mov_b32 exec_hi, 0")
        for nt in range(4):
            g = vO + 4 * nt
            a("buffer_store_dwordx4 v[%d:%d], v%d, s[%d:%d], s%d offen offset:%d" % (g, g + 3, vG + 55, SRD_WS, SRD_WS + 3, sT1, nt * 128))
        for nt in range(4):
            g = vO + 4 * nt
            a("buffer_store_dwordx4 v[%d:%d], v%d, s[%d:%d], s%d offen offset:%d sc1" % (g, g + 3, vG + 55, SRD_WS, SRD_WS + 3, sT0, nt * 128))
        self.vm("pub", 8)
        a("s_mov_b64 exec, -1")

    def _q_mfma(self, nt, AF, BF, DQ):
        for t in range(4):
            b = BF + 16 * nt + 4 * t
            self.a("v_mfma_f32_16x16x32_bf16 v[%d:%d], v[%d:%d], v[%d:%d], %s" % (DQ + 4 * nt, DQ + 4 * nt + 3, AF + 4 * t, AF + 4 * t + 3, b, b + 3, "0" if t == 0 else "v[%d:%d]" % (DQ + 4 * nt, DQ + 4 * nt + 3)))

    def q_pre(self):
        a = self.a
        a("v_add_u32 v%d, %d, v%d" % (vG + 52, L_XN, vG))
        a("v_bfe_u32 v%d, v%d, 2, 1" % (vTmp + 1, vLane)); a("v_lshlrev_b32 v%d, 10, v%d" % (vTmp + 1, vTmp + 1))
        a("v_lshrrev_b32 v%d, 4, v%d" % (vTmp + 2, vLane)); a("v_lshl_add_u32 v%d, v%d, 4, v%d" % (vTmp + 1, vTmp + 2, vTmp + 1))
        a("s_bfe_u32 s%d, s%d, 0x10003" % (sT1, sJ)); a("s_lshl_b32 s%d, s%d, 8" % (sT1, sT1)); a("s_add_u32 s%d, s%d, %d" % (sT1, sT1, L_XN))
        a("v_add_u32 v%d, s%d, v%d" % (vG + 53, sT1, vTmp + 1))
        a("v_bfe_u32 v%d, v%d, 2, 2" % (vTmp + 3, vLane)); a("v_lshl_add_u32 v%d, v%d, 3, v%d" % (vTmp + 3, vTmp + 2, vTmp + 3))
        a("v_lshlrev_b32 v%d, 7, v%d" % (vTmp + 3, vTmp + 3)); a("v_and_b32 v%d, 3, v%d" % (vTmp + 2, vLane))
        a("v_lshl_add_u32 v%d, v%d, 3, v%d" % (vG + 54, vTmp + 2, vTmp + 3))
        a("v_lshrrev_b32 v%d, 4, v%d" % (vTmp, vLane)); a("v_lshlrev_b32 v%d, 12, v%d" % (vTmp, vTmp))
        a("v_and_b32 v%d, 15, v%d" % (vTmp + 1, vLane)); a("v_lshl_add_u32 v%d, v%d, 3, v%d" % (vG + 55, vTmp + 1, vTmp))
        self.tag_consts()
        a("s_lshr_b32 s%d, s%d, 3" % (sT0, sJ)); a("s_lshl_b32 s%d, s%d, 2" % (sT2, sX)); a("s_add_u32 s%d, s%d, s%d" % (sT0, sT0, sT2))
        a("s_lshl_b32 s%d, s%d, 13" % (sT0, sT0)); a("s_and_b32 s%d, s%d, 7" % (sT2, sJ)); a("s_lshl_b32 s%d, s%d, 9" % (sT2, sT2))
        a("s_add_u32 s%d, s%d, s%d" % (sT0, sT0, sT2)); a("s_add_u32 s%d, s%d, %d" % (sT0, sT0, WS_Q))
        a("s_add_u32 s%d, s%d, %d" % (sT1, sT0, WS_QA - WS_Q))
        a("s_and_b32 s%d, s%d, 0xfffffff0" % (sT3, self.sTagW)); a("s_or_b32 s%d, s%d, s%d" % (sT3, sT3, sXcc))

    def q_wait(self):
        a = self.a; o = self.o
        QA = vG + 3; D = vO
        L_QB = L_QP
        a("v_lshlrev_b32 v%d, 4, v%d" % (QA, vLane))
        a("s_lshl_b32 s%d, s%d, 15" % (sT0, sX)); a("s_lshl_b32 s%d, s%d, 12" % (sT1, sB)); a("s_add_u32 s%d, s%d, s%d" % (sT0, sT0, sT1))
        a("s_add_u32 s%d, s%d, %d" % (sSave, sT0, WS_Q))
        a("s_add_u32 s%d, s%d, %d" % (sSave + 1, sT0, WS_QA))
        a("v_mov_b32 v%d, s%d" % (vG + 2, sT3))
        rem = self.bulk[self.bi:]
        pre = o.get("w0pre", 2); sizes = o.get("rounds", [2, 2, 2, 2, 2])
        for (k, t, h) in rem[:pre]: self.load_half(k, t, h)
        if o.get("waitpub", True): a("s_waitcnt vmcnt(%d)" % (4 + 4 * pre))
        rem = rem[pre:]
        rounds = []
        for n in sizes:
            if rem: rounds.append(rem[:n]); rem = rem[n:]
        if rem: rounds.append(rem)
        def poll(local):
            base = sSave + 1 if local else sSave
            for kg in range(4):
                a("s_add_u32 s%d, s%d, %d" % (sT2, base, kg * 8192))
                for u in range(4):
                    d = D + 16 * kg + 4 * u
                    a("buffer_load_dwordx4 v[%d:%d], v%d, s[%d:%d], s%d offen offset:%d %s" % (d, d + 3, QA, SRD_WS, SRD_WS + 3, sT2, u * 1024, (o.get("localpoll", "nt") if local else "sc1")))
        def check(n, stamp=False):
            a("s_waitcnt vmcnt(%d)" % n)
            if stamp: self.ts()
            t0, t1, t2, t3 = vTmp, vTmp + 1, vTmp + 2, vTmp + 3
            a("v_xor_b32 v%d, v%d, v%d" % (t0, D + 1, vTagW)); a("v_xor_b32 v%d, v%d, v%d" % (t1, D + 3, vG + 2))
            for q in range(1, 16):
                a("v_xor_b32 v%d, v%d, v%d" % (t2, D + 4 * q + 1, vTagW)); a("v_xor_b32 v%d, v%d, v%d" % (t3, D + 4 * q + 3, vG + 2))
                a("v_or_b32 v%d, v%d, v%d" % (t0, t0, t2)); a("v_or_b32 v%d, v%d, v%d" % (t1, t1, t3))
            a("v_lshrrev_b32 v%d, 4, v%d" % (t2, t1)); a("v_or_b32 v%d, v%d, v%d" % (t0, t0, t2))
            a("v_cmp_eq_u32 vcc, 0, v%d" % t1); a("s_cmp_eq_u64 vcc, -1"); a("s_cselect_b32 s%d, 1, 0" % sMode)
            a("v_cmp_eq_u32 vcc, 0, v%d" % t0); a("s_cmp_eq_u64 vcc, -1")
        done = [self.lab("qok") for _ in range(len(rounds) + 1)]
        for r, g in enumerate(rounds):
            poll(True)
            n = 0
            for (k, t, h) in g: self.load_half(k, t, h); n += 4
            check(n, stamp=(o.get("tsr") and r < 3))
            a("s_cbranch_scc1 %s" % done[r])
        lp = self.lab("qpoll")
        a("s_mov_b32 s%d, 0" % sCnt)
        a.label(lp)
        for k in range(2):
            poll(k == 0); check(0)
            a("s_cbranch_scc1 %s" % done[-1])
        a("s_add_u32 s%d, s%d, 1" % (sCnt, sCnt)); a("s_cmp_lt_u32 s%d, %d" % (sCnt, o["spin"])); a("s_cbranch_scc1 %s" % lp)
        a("s_mov_b32 s%d, 2" % sMode)
        a("s_branch %s" % done[-1])
        for r in range(len(rounds)):
            a.label(done[r])
            if r + 1 < len(rounds):
                pass
            a("s_mov_b32 s%d, %d" % (sT3, r + 1)); a("s_branch L_qsum")
        a.label(done[-1])
        a("s_mov_b32 s%d, %d" % (sT3, len(rounds)))
        a.label("L_qsum")
        if o.get("tss"):
            self.ts(); i = self.ts_slot(); a("s_mul_i32 s%d, s%d, 100" % (sTS + i, sT3))
        for u in range(4):
            for e in (0, 2):
                d = D + 4 * u + e
                a("v_add_f32 v%d, v%d, v%d" % (d, d, d + 16)); a("v_add_f32 v%d, v%d, v%d" % (d + 32, d + 32, d + 48))
        for u in range(4):
            for e in (0, 2):
                d = D + 4 * u + e
                a("v_add_f32 v%d, v%d, v%d" % (d, d, d + 32))
        a("v_lshlrev_b32 v%d, 2, v%d" % (vTmp, vLane))
        for u in range(4):
            a("v_cvt_pk_bf16_f32 v%d, v%d, v%d" % (D + 4 * u, D + 4 * u, D + 4 * u + 2))
            a("ds_write_b32 v%d, v%d offset:%d" % (vTmp, D + 4 * u, L_QB + 256 * u))
        if not o["local"]:
            a("s_and_b32 s%d, s%d, 2" % (sMode, sMode))
        a("v_mov_b32 v%d, s%d" % (vTmp + 1, sMode))
        a("ds_write_b32 v%d, v%d offset:%d" % (vTmp, vTmp + 1, L_QB + 1024))
        self.rounds = rounds
        if o.get("rem_before", False):
            for r in range(1, len(rounds)):
                l = self.lab("rb")
                a("s_cmp_gt_u32 s%d, %d" % (sT3, r)); a("s_cbranch_scc1 %s" % l)
                for (k, t, h) in rounds[r]: self.load_half(k, t, h)
                a.label(l)
            self.rounds = rounds[:1]
        a("s_waitcnt lgkmcnt(0)")

    def q_join(self):
        a = self.a
        L_QB = L_QP
        a("v_bfe_u32 v%d, v%d, 2, 2" % (vTmp, vLane)); a("v_lshlrev_b32 v%d, 4, v%d" % (vTmp, vTmp))
        a("v_lshrrev_b32 v%d, 4, v%d" % (vTmp + 1, vLane)); a("v_lshl_add_u32 v%d, v%d, 2, v%d" % (vTmp, vTmp + 1, vTmp))
        a("v_and_b32 v%d, 3, v%d" % (vTmp + 1, vLane)); a("v_add_u32 v%d, v%d, v%d" % (vTmp, vTmp, vTmp + 1))
        a("v_lshlrev_b32 v%d, 4, v%d" % (vTmp, vTmp)); a("v_mov_b32 v%d, 0" % (vTmp + 1))
        a("s_barrier")
        a("ds_read_b128 v[%d:%d], v%d offset:%d" % (vQ, vQ + 3, vTmp, L_QB))
        a("ds_read_b32 v%d, v%d offset:%d" % (vTmp + 2, vTmp + 1, L_QB + 1024))
        a("v_mov_b32 v%d, 0xff800000" % vM); a("v_mov_b32 v%d, 0" % vL)
        for i in range(32): a("v_mov_b32 v%d, 0" % (vO + i))
        a("s_waitcnt lgkmcnt(0)")
        a("v_readfirstlane_b32 s%d, v%d" % (sMode, vTmp + 2))
        a("s_cmp_eq_u32 s%d, 2" % sMode); a("s_cbranch_scc1 L_fail")
        lab = self.lab("nw0")
        a("s_cmp_lg_u32 s%d, 0" % sWave); a("s_cbranch_scc1 %s" % lab)
        for r in range(1, len(self.rounds)):
            l = self.lab("rb")
            a("s_cmp_gt_u32 s%d, %d" % (sT3, r)); a("s_cbranch_scc1 %s" % l)
            for (k, t, h) in self.rounds[r]: self.load_half(k, t, h)
            a.label(l)
        a.label(lab)

    def qwait(self, tag):
        idx = self.sq.index(tag)
        n = len(self.sq) - 1 - idx
        assert n <= 63
        self.a("s_waitcnt vmcnt(%d)" % n)

    def set_soff(self, t):
        a = self.a
        a("s_add_u32 s%d, s%d, %d" % (sOffA, sRot, 2 * t)); a("s_add_u32 s%d, s%d, %d" % (sOffB, sRot, 2 * t + 1))
        a("s_and_b32 s%d, s%d, 15" % (sOffA, sOffA)); a("s_and_b32 s%d, s%d, 15" % (sOffB, sOffB))
        a("s_lshl_b32 s%d, s%d, 12" % (sOffA, sOffA)); a("s_lshl_b32 s%d, s%d, 12" % (sOffB, sOffB))

    def tile(self, t, hook=None, qkhook=None):
        a = self.a
        st = t % self.NS
        aK = aKS[st]; vV = vVS[st]
        nt = self.o["ntflag"]
        tn = self.plan.get(t)
        refill = tn is not None
        if refill:
            assert tn % self.NS == st or tn - self.NS < t, (t, tn)
            assert tn - self.NS <= t
        nocomp = self.o.get("nocompute")
        if refill: self.set_soff(tn)
        for i in range(8):
            self.qwait(("K", t, i))
            if not nocomp:
                a("v_mfma_f32_16x16x32_bf16 v[%d:%d], a[%d:%d], v[%d:%d], 0" % (vS + 4 * i, vS + 4 * i + 3, aK + 4 * i, aK + 4 * i + 3, vQ, vQ + 3))
            if refill:
                so = sOffA if i < 4 else sOffB
                aN = aKS[tn % self.NS]
                a("buffer_load_dwordx4 a[%d:%d], v%d, s[%d:%d], s%d offen offset:%d %s" % (aN + 4 * i, aN + 4 * i + 3, vOffK, SRD_K, SRD_K + 3, so, (i & 3) * 1024, nt))
                self.sq.append(("K", tn, i))
        if qkhook: qkhook()
        if not nocomp: self.softmax_a(wgmax=(t == 7))
        for p in range(4):
            self.qwait(("V", t, 2 * p + 1))
            if not nocomp:
                for j in range(8):
                    a("v_perm_b32 v%d, v%d, v%d, s%d" % (vS + 4 * j + p, vV + 4 * (2 * p + 1) + (j >> 1), vV + 4 * (2 * p) + (j >> 1), sSelHi if j & 1 else sSelLo))
            if refill:
                for i in (2 * p, 2 * p + 1):
                    so = sOffA if i < 4 else sOffB
                    vN = vVS[tn % self.NS]
                    a("buffer_load_dwordx4 v[%d:%d], v%d, s[%d:%d], s%d offen offset:%d %s" % (vN + 4 * i, vN + 4 * i + 3, vOffV, SRD_V, SRD_V + 3, so, (i & 3) * 1024, nt))
                    self.sq.append(("V", tn, i))
        if hook: hook()
        if not nocomp: self.softmax_b()

    def softmax_a(self, wgmax=False):
        a = self.a
        for i in range(8): a("v_mov_b32_dpp v%d, v%d quad_perm:[0,0,0,0] row_mask:0xf bank_mask:0xf" % (vT + i, vS + 4 * i))
        for c in range(1, 4):
            for i in range(8):
                a("v_add_f32_dpp v%d, v%d, v%d quad_perm:[%d,%d,%d,%d] row_mask:0xf bank_mask:0xf" % (vT + i, vS + 4 * i + c, vT + i, c, c, c, c))
        for p in range(4): a("v_cvt_pk_bf16_f32 v%d, v%d, v%d" % (vP + p, vT + 2 * p, vT + 2 * p + 1))
        for p in range(4):
            a("v_lshlrev_b32 v%d, 16, v%d" % (vU + 2 * p, vP + p)); a("v_and_b32 v%d, 0xffff0000, v%d" % (vU + 2 * p + 1, vP + p))
        for p in range(4): a("v_pk_mul_f32 v[%d:%d], v[%d:%d], s[%d:%d]" % (vU + 2 * p, vU + 2 * p + 1, vU + 2 * p, vU + 2 * p + 1, sScale, sScale + 1))
        for p in range(4): a("v_cvt_pk_bf16_f32 v%d, v%d, v%d" % (vP + p, vU + 2 * p, vU + 2 * p + 1))
        for p in range(4):
            a("v_lshlrev_b32 v%d, 16, v%d" % (vT + 2 * p, vP + p)); a("v_and_b32 v%d, 0xffff0000, v%d" % (vT + 2 * p + 1, vP + p))
        t0, t1 = vTmp, vTmp + 1
        a("v_max3_f32 v%d, v%d, v%d, v%d" % (t0, vT, vT + 1, vT + 2)); a("v_max3_f32 v%d, v%d, v%d, v%d" % (t1, vT + 3, vT + 4, vT + 5))
        a("v_max3_f32 v%d, v%d, v%d, v%d" % (t0, t0, vT + 6, vT + 7)); a("v_max_f32 v%d, v%d, v%d" % (t0, t0, t1))
        self.allred_x16("v_max_f32", t0, t1); self.allred_x32("v_max_f32", t0, t1)
        a("v_max_f32 v%d, v%d, v%d" % (t0, t0, vM))
        if wgmax:
            a("s_mov_b64 exec, 0x1111")
            a("ds_write_b32 v%d, v%d offset:%d" % (vCA + 1, t0, L_CML))
            a("s_mov_b64 exec, -1")
            a("s_waitcnt lgkmcnt(0)")
            a("s_barrier")
            a("ds_read_b128 v[%d:%d], v%d offset:%d" % (vU, vU + 3, vCA + 2, L_CML))
            a("s_waitcnt lgkmcnt(0)")
            a("v_max3_f32 v%d, v%d, v%d, v%d" % (t0, vU, vU + 1, vU + 2)); a("v_max_f32 v%d, v%d, v%d" % (t0, t0, vU + 3))
        a("v_sub_f32 v%d, v%d, v%d" % (vAl, vM, t0)); a("v_mul_f32 v%d, s%d, v%d" % (vAl, sLog2e, vAl))
        a("v_mov_b32 v%d, v%d" % (vM, t0))
        a("v_mul_f32 v%d, s%d, v%d" % (t1, sLog2e, t0))
        a("v_exp_f32 v%d, v%d" % (vAl, vAl))
        for i in range(8): a("v_fma_f32 v%d, v%d, s%d, -v%d" % (vU + i, vT + i, sLog2e, t1))
        for i in range(8): a("v_exp_f32 v%d, v%d" % (vU + i, vU + i))
        for p in range(4): a("v_cvt_pk_bf16_f32 v%d, v%d, v%d" % (vP + p, vU + 2 * p, vU + 2 * p + 1))
        a("v_pk_add_f32 v[%d:%d], v[%d:%d], v[%d:%d]" % (vU, vU + 1, vU, vU + 1, vU + 2, vU + 3))
        a("v_pk_add_f32 v[%d:%d], v[%d:%d], v[%d:%d]" % (vU + 4, vU + 5, vU + 4, vU + 5, vU + 6, vU + 7))
        a("v_pk_add_f32 v[%d:%d], v[%d:%d], v[%d:%d]" % (vU, vU + 1, vU, vU + 1, vU + 4, vU + 5))
        a("v_fma_f32 v%d, v%d, v%d, v%d" % (vL, vL, vAl, vU)); a("v_add_f32 v%d, v%d, v%d" % (vL, vL, vU + 1))
        for i in range(16):
            a("v_pk_mul_f32 v[%d:%d], v[%d:%d], v[%d:%d] op_sel_hi:[1,0]" % (vO + 2 * i, vO + 2 * i + 1, vO + 2 * i, vO + 2 * i + 1, vAl, vAl + 1))
        if wgmax:
            self.allred_x16("v_add_f32", vL, t0); self.allred_x32("v_add_f32", vL, t0)
            a("s_mov_b64 exec, 0x1111")
            a("ds_write_b32 v%d, v%d offset:%d" % (vCA + 1, vL, L_CML + 64))
            a("s_mov_b64 exec, -1")

    def softmax_b(self):
        a = self.a
        for j in range(8):
            a("v_mfma_f32_16x16x32_bf16 v[%d:%d], v[%d:%d], v[%d:%d], v[%d:%d]" % (vO + 4 * j, vO + 4 * j + 3, vS + 4 * j, vS + 4 * j + 3, vP, vP + 3, vO + 4 * j, vO + 4 * j + 3))

    def stream(self, weights_hook=None, touch_hook=None, nextra=0):
        self.sq = [(k, t, i) for t in range(self.NS) for k in "KV" for i in range(8)] + [("X", 0, i) for i in range(nextra)]
        plan = self.o.get("plan")
        if plan is None:
            plan = {3: [(0, 3), (1, 4), (3, 5), (5, 6), (6, 7)], 2: [(0, 2), (1, 3), (2, 4), (3, 5), (5, 6), (6, 7)]}[self.NS]
        self.plan = dict((int(x), int(y)) for x, y in plan)
        assert sorted(self.plan.values()) == list(range(self.NS, 8))
        last = [t for t, u in self.plan.items() if u == 7][0]
        for t in range(8):
            hook = None; qkhook = None
            if t == last and self.o.get("endbar"):
                hook = lambda: self.a("s_barrier")
            if t == 7: qkhook = weights_hook
            if t == self.o.get("touch_tile", 5) and touch_hook: qkhook = touch_hook
            if t in self.o.get("tilebar", []): self.a("s_barrier")
            self.tile(t, hook, qkhook)
            if t == last: self.ts("lastrefill")

    def comb_pre(self):
        a = self.a
        t0, t1 = vTmp, vTmp + 1
        a("v_bfe_u32 v%d, v%d, 2, 2" % (t0, vLane)); a("v_lshlrev_b32 v%d, 9, v%d" % (vCA, t0))
        a("v_lshrrev_b32 v%d, 4, v%d" % (t1, vLane)); a("v_lshl_add_u32 v%d, v%d, 7, v%d" % (vCA, t1, vCA))
        a("s_lshl_b32 s%d, s%d, 11" % (sT0, sWave)); a("v_add_u32 v%d, s%d, v%d" % (vCA, sT0, vCA))
        a("v_lshlrev_b32 v%d, 4, v%d" % (vCA + 2, t0))
        a("s_lshl_b32 s%d, s%d, 2" % (sT0, sWave)); a("v_add_u32 v%d, s%d, v%d" % (vCA + 1, sT0, vCA + 2))
        a("v_lshlrev_b32 v%d, 4, v0" % (vCA + 3))
        a("v_lshrrev_b32 v%d, 5, v0" % t1); a("v_lshlrev_b32 v%d, 4, v%d" % (vCA + 4, t1))
        a("s_lshl_b32 s%d, s%d, 11" % (sPO, sP)); a("s_add_u32 s%d, s%d, %d" % (sPO, sPO, WS_PO))
        a("s_lshl_b32 s%d, s%d, 7" % (sPML, sP)); a("s_add_u32 s%d, s%d, %d" % (sPML, sPML, WS_PML))

    def wg_combine(self):
        a = self.a
        a("s_mov_b32 s%d, 0x11111111" % sMsk); a("s_mov_b32 s%d, 0x11111111" % (sMsk + 1))
        a("s_mov_b64 exec, s[%d:%d]" % (sMsk, sMsk + 1))
        for j in range(8):
            a("ds_write_b128 v%d, v[%d:%d] offset:%d" % (vCA, vO + 4 * j, vO + 4 * j + 3, L_CO + 16 * j))
        a("s_mov_b64 exec, -1")
        a("s_waitcnt lgkmcnt(0)")
        a("s_barrier")
        lab = self.lab("nocomb")
        a("s_cmp_ge_u32 s%d, 2" % sWave); a("s_cbranch_scc1 %s" % lab)
        R = vVS[0]
        for w in range(4):
            a("ds_read_b128 v[%d:%d], v%d offset:%d" % (R + 4 * w, R + 3 + 4 * w, vCA + 3, L_CO + 2048 * w))
        a("ds_read_b128 v[%d:%d], v%d offset:%d" % (R + 16, R + 19, vCA + 4, L_CML))
        a("ds_read_b128 v[%d:%d], v%d offset:%d" % (R + 20, R + 23, vCA + 4, L_CML + 64))
        a("s_waitcnt lgkmcnt(4)")
        for e in (0, 2): a("v_pk_add_f32 v[%d:%d], v[%d:%d], v[%d:%d]" % (R + e, R + e + 1, R + e, R + e + 1, R + 4 + e, R + 5 + e))
        a("s_waitcnt lgkmcnt(2)")
        for e in (0, 2): a("v_pk_add_f32 v[%d:%d], v[%d:%d], v[%d:%d]" % (R + 8 + e, R + 9 + e, R + 8 + e, R + 9 + e, R + 12 + e, R + 13 + e))
        for e in (0, 2): a("v_pk_add_f32 v[%d:%d], v[%d:%d], v[%d:%d]" % (R + e, R + e + 1, R + e, R + e + 1, R + 8 + e, R + 9 + e))
        G = R + 24
        self.tag4(G, [R, R + 1, R + 2, R + 3])
        a("s_waitcnt lgkmcnt(0)")
        Mx, Ls = R + 16, R + 20
        a("v_max3_f32 v%d, v%d, v%d, v%d" % (Mx, Mx, Mx + 1, Mx + 2)); a("v_pk_add_f32 v[%d:%d], v[%d:%d], v[%d:%d]" % (Ls, Ls + 1, Ls, Ls + 1, Ls + 2, Ls + 3))
        a("v_max_f32 v%d, v%d, v%d" % (Mx, Mx, Mx + 3)); a("v_add_f32 v%d, v%d, v%d" % (Ls, Ls, Ls + 1))
        self.tag4(G + 4, [Mx, Ls, Mx, Ls])
        def stores(fl):
            a("buffer_store_dwordx4 v[%d:%d], v%d, s[%d:%d], s%d offen %s" % (G, G + 3, vCA + 3, SRD_WS, SRD_WS + 3, sPO, fl))
            a("s_mov_b32 s%d, 1" % sMsk); a("s_mov_b32 s%d, 1" % (sMsk + 1)); a("s_mov_b64 exec, s[%d:%d]" % (sMsk, sMsk + 1))
            a("buffer_store_dwordx4 v[%d:%d], v%d, s[%d:%d], s%d offen %s" % (G + 4, G + 7, vCA + 4, SRD_WS, SRD_WS + 3, sPML, fl))
            a("s_mov_b64 exec, -1")
        self.by_mode(stores)
        a.label(lab)

    def by_mode(self, fn):
        a = self.a
        l1 = self.lab("m1"); l2 = self.lab("m2")
        a("s_cmp_eq_u32 s%d, 0" % sMode); a("s_cbranch_scc1 %s" % l1)
        fn(""); a("s_branch %s" % l2)
        a.label(l1); fn("sc1"); a.label(l2)

    def epilogue(self):
        a = self.a
        a.label("L_fail")
        a.label("L_done")
        a("s_mov_b64 exec, -1")
        if self.o["ts"]:
            self.ts("end")
            a("s_lshl_b32 s%d, s2, 2" % sT0); a("s_add_u32 s%d, s%d, s%d" % (sT0, sT0, sWave)); a("s_lshl_b32 s%d, s%d, 6" % (sT0, sT0))
            a("s_add_u32 s%d, s%d, %d" % (sT0, sT0, WS_TS))
            a("v_mov_b32 v%d, 0" % vTmp)
            for i in range(self.nts):
                a("v_writelane_b32 v%d, s%d, %d" % (vTmp, sTS + i, i))
            a("v_writelane_b32 v%d, s%d, 15" % (vTmp, sXcc))
            a("v_lshlrev_b32 v%d, 2, v%d" % (vTmp + 1, vLane))
            a("s_mov_b64 exec, 0xffff")
            a("buffer_store_dword v%d, v%d, s[%d:%d], s%d offen" % (vTmp, vTmp + 1, SRD_WS, SRD_WS + 3, sT0))
            if self.o.get("dbgts"):
                l = self.lab("nodbg")
                a("s_lshl_b32 s%d, s2, 2" % sT0); a("s_add_u32 s%d, s%d, s%d" % (sT0, sT0, sWave)); a("s_cmp_lg_u32 s%d, %d" % (sT0, self.o["dbgts"] - 1)); a("s_cbranch_scc1 %s" % l)
                self.make_srd(SRD_W3, sPDBG, 256)
                a("v_subrev_u32 v%d, s%d, v%d" % (vTmp, sTS, vTmp))
                a("buffer_store_dword v%d, v%d, s[%d:%d], 0 offen" % (vTmp, vTmp + 1, SRD_W3, SRD_W3 + 3))
                a.label(l)
        a("s_waitcnt vmcnt(0)")
        a.label("L_end")
        a("s_endpgm")

    def build(self):
        o = self.o
        self.prologue()
        a = self.a
        if o.get("noq"):
            self.issue_bulk(99)
            a("s_mov_b32 s%d, 0" % sMode); a("v_mov_b32 v%d, 0" % vTagW)
            self.ts(); self.ts()
        else:
            if o.get("prio0"):
                l = self.lab("pr"); a("s_cmp_lg_u32 s%d, 0" % sWave); a("s_cbranch_scc1 %s" % l); a("s_setprio 3"); a.label(l)
            a("s_cmp_lg_u32 s%d, 0" % sWave); a("s_cbranch_scc1 L_helper")
            self.issue_bulk(o.get("w0start", 0))
            self.q_pre()
            self.ln_x()
            self.q_slice()
            self.ts("qpub")
            self.q_wait()
            a("s_branch L_qjoin")
            a.label("L_helper")
            self.helper_startup()
            a.label("L_qjoin")
            self.q_join()
            self.ts("qjoin")
        import tail
        tail.emit(self)
        self.epilogue()
        n = self.a.fix_hazards()
        head = ["; generated by gen.py (hand-written generator) ; hazard nops inserted: %d" % n,
                "; @launch grid=(256,1,1) block=(256,1,1) lds=%d" % LDS_SIZE,
                '.amdgcn_target "amdgcn-amd-amdhsa--gfx950"', ".text", ".globl %s" % NAME, ".p2align 8",
                ".type %s,@function" % NAME, "%s:" % NAME]
        tailtxt = ['.section .rodata,"a"', ".p2align 6", ".amdhsa_kernel %s" % NAME,
                   "  .amdhsa_next_free_vgpr 512", "  .amdhsa_next_free_sgpr 102", "  .amdhsa_accum_offset 256",
                   "  .amdhsa_group_segment_fixed_size 0", "  .amdhsa_kernarg_size 96", "  .amdhsa_user_sgpr_count 2",
                   "  .amdhsa_user_sgpr_kernarg_segment_ptr 1", "  .amdhsa_system_sgpr_workgroup_id_x 1",
                   ".end_amdhsa_kernel"]
        return "\n".join(head) + "\n" + self.a.text() + "\n".join(tailtxt) + "\n"

if __name__ == "__main__":
    import json
    opt = json.loads(sys.argv[1]) if len(sys.argv) > 1 else {}
    g = Gen(**opt)
    print(g.build())
```

```python
import sys
sys.path.insert(0, "gen")
from asmlib import Asm

NAME = "sequential_preLN__gqa_block_cached__swiglu_ffn__decode_kernel"

WS_EPOCH = 0x0
WS_Q     = 0x1A0000
WS_PO    = 0x10000
WS_PML   = 0x90000
WS_YP    = 0xA0000
WS_Y     = 0x120000
WS_OP    = 0x130000
WS_QA    = 0x1E0000
WS_FP    = 0x220000
WS_DBG   = 0x300000
WS_TS    = 0x400000
WS_SIZE  = 0x10000000

L_IMG0 = 0x0000
L_IMG1 = 0x4000
L_XN   = 0x8000
L_QP   = 0xA000
L_CO   = 0xB800
L_CML  = 0xD800
L_OA   = 0xD900
L_HST  = 0xDA00
L_HN   = 0xDB00
L_GU   = 0xE400
LDS_SIZE = 0xF000

sPX, sPK, sPV, sPWQ, sPWO, sPBX, sPG, sPU, sPD, sPOUT, sPDBG, sPWS = [4 + 2 * i for i in range(12)]
SRD_K, SRD_V, SRD_WS, SRD_W1, SRD_W2, SRD_W3, SRD_X = 28, 32, 36, 40, 44, 48, 52
sX, sJ, sWave, sB, sTag, sXcc, sSelLo, sSelHi = 56, 57, 58, 59, 60, 61, 62, 63
sTSel = 64
sChkA, sChkB = 68, 69
sScale = 70
sLog2e, sCnt = 72, 73
sOffA, sOffB = 74, 75
sRot, sMode = 76, 77
sT0, sT1, sT2, sT3 = 78, 79, 80, 81
sSave = 82
sMsk = 84
sEp1 = 86
sP = 87
sPO, sPML = 14, 15
sTS = 88
vTid, vLane, vOffK, vOffV = 0, 1, 2, 3
vQ = 4
vM, vL, vAl = 8, 9, 10
vTmp = 12
vO = 16
vS = 48
vVS = [80, 112, 144]
vT = 176
vU = 184
vP = 192
vTagW = 196
vG = 198
vCA = vG + 44
aKS = [0, 32, 64]

def sr(n, k=1): return "s%d" % n if k == 1 else "s[%d:%d]" % (n, n + k - 1)
def vr(n, k=1): return "v%d" % n if k == 1 else "v[%d:%d]" % (n, n + k - 1)
def ar(n, k=1): return "a%d" % n if k == 1 else "a[%d:%d]" % (n, n + k - 1)

class Gen:
    def __init__(self, **opt):
        self.o = dict(stop_after=None, ts=False, dbg=None, rotw=1, rotx=4, rotj=0, ntflag="nt", spin=3000,
                      local=True, sched=None, prefetch_code=True)
        self.o.update(opt)
        self.a = Asm()
        self.nts = 0
        self.sTagW = sTag
        self.uid = 0
        self.vq = []
        self.NS = self.o.get("NS", 3)
        self.bulk = [(k, t, h) for t in range(self.NS) for k in "KV" for h in range(2)]
        self.bi = 0
    def lab(self, p):
        self.uid += 1
        return "L_%s_%d" % (p, self.uid)
    def ts(self, name=None):
        if not self.o["ts"]: return
        tsn = self.o.get("tsn")
        if tsn is not None and name not in tsn and name not in ("start", "end"): return
        if tsn is None and name is not None and name.startswith("x_"): return
        self.tsnames = getattr(self, "tsnames", {}); self.tsnames.setdefault(self.nts, []).append(name)
        a = self.a
        i = self.nts; self.nts += 1
        assert i < 12
        a("s_memrealtime s[102-2]" if False else "s_memrealtime s[%d:%d]" % (100, 101))
        a("s_waitcnt lgkmcnt(0)")
        a("s_mov_b32 s%d, s100" % (sTS + i))

    def ts_slot(self):
        if not self.o["ts"]: return None
        i = self.nts; self.nts += 1
        return i
    def ts_at(self, i, val=None):
        if i is None: return
        a = self.a
        if val is not None:
            a("s_mov_b32 s%d, %d" % (sTS + i, val)); return
        a("s_memrealtime s[100:101]"); a("s_waitcnt lgkmcnt(0)"); a("s_mov_b32 s%d, s100" % (sTS + i))

    def vm(self, tag, n=1): self.vq += [tag] * n
    def vwait(self, tag):
        idx = max(i for i, t in enumerate(self.vq) if t == tag)
        self.a("s_waitcnt vmcnt(%d)" % (len(self.vq) - 1 - idx))
    def issue_bulk(self, n):
        for _ in range(n):
            if self.bi < len(self.bulk):
                k, t, h = self.bulk[self.bi]; self.bi += 1
                self.load_half(k, t, h); self.vm("bulk", 4)

    def make_srd(self, srd, ptr, size, off_sreg=None, off_imm=None):
        a = self.a
        if off_sreg is None and off_imm is None:
            a("s_mov_b32 s%d, s%d" % (srd, ptr)); a("s_mov_b32 s%d, s%d" % (srd + 1, ptr + 1))
        elif off_sreg is not None:
            a("s_add_u32 s%d, s%d, s%d" % (srd, ptr, off_sreg)); a("s_addc_u32 s%d, s%d, 0" % (srd + 1, ptr + 1))
        else:
            a("s_add_u32 s%d, s%d, %d" % (srd, ptr, off_imm)); a("s_addc_u32 s%d, s%d, 0" % (srd + 1, ptr + 1))
        a("s_mov_b32 s%d, %s" % (srd + 2, size if isinstance(size, str) else "0x%x" % size))
        a("s_mov_b32 s%d, 0x20000" % (srd + 3))

    def tag4(self, dst, src):
        for k in range(4):
            self.a("v_perm_b32 v%d, v%d, v%d, s%d" % (dst + k, src[k], vTagW, sTSel + k))
    def chk4(self, d, t0, t1):
        a = self.a
        a("v_perm_b32 v%d, v%d, v%d, s%d" % (t0, d + 1, d, sChkA))
        a("v_perm_b32 v%d, v%d, v%d, s%d" % (t1, d + 3, d + 2, sChkB))
        a("v_or_b32 v%d, v%d, v%d" % (t0, t0, t1))
        a("v_cmp_eq_u32 vcc, v%d, v%d" % (t0, vTagW))

    def allred_row16(self, op, r, t=None):
        for sh in (8, 4, 2, 1):
            self.a("%s_dpp v%d, v%d, v%d row_ror:%d row_mask:0xf bank_mask:0xf" % (op, r, r, r, sh))
    def allred_x16(self, op, r, t):
        a = self.a
        a("v_mov_b32 v%d, v%d" % (t, r)); a("v_permlane16_swap_b32 v%d, v%d" % (r, t)); a("%s v%d, v%d, v%d" % (op, r, r, t))
    def allred_x32(self, op, r, t):
        a = self.a
        a("v_mov_b32 v%d, v%d" % (t, r)); a("v_permlane32_swap_b32 v%d, v%d" % (r, t)); a("%s v%d, v%d, v%d" % (op, r, r, t))

    def prologue(self):
        a = self.a; o = self.o
        a("s_cmp_ge_u32 s2, 256"); a("s_cbranch_scc1 L_end")
        for q in range(o.get("jumps", 0)):
            a("s_branch L_jmp%d" % q); a.raw(".fill %d, 4, 0xbf800000" % (o.get("jgap", 1024) // 4)); a.label("L_jmp%d" % q)
        a("s_load_dwordx16 s[4:19], s[0:1], 0")
        a("s_load_dwordx8 s[20:27], s[0:1], 64")
        if o.get("prefetch_code"):
            a("s_getpc_b64 s[28:29]")
            a.label("L_pc")
            a("v_lshlrev_b32 v%d, 7, v0" % vTmp)
            a("v_min_u32 v%d, L_end-L_pc, v%d" % (vTmp, vTmp))
            a("global_load_dword v%d, v%d, s[28:29]" % (vG + 57, vTmp))
        if o["ts"]:
            for i in range(12): a("s_mov_b32 s%d, 0" % (sTS + i))
        self.ts("start")
        a("v_and_b32 v%d, 63, v0" % vLane)
        a("v_lshrrev_b32 v%d, 6, v0" % vTmp)
        a("s_and_b32 s%d, s2, 7" % sX)
        a("v_readfirstlane_b32 s%d, v%d" % (sWave, vTmp))
        a("s_lshr_b32 s%d, s2, 3" % sJ)
        a("s_lshr_b32 s%d, s%d, 4" % (sB, sJ))
        a("s_lshl_b32 s%d, s%d, 5" % (sP, sX)); a("s_add_u32 s%d, s%d, s%d" % (sP, sP, sJ))
        a("v_bfe_u32 v%d, v%d, 2, 2" % (vTmp, vLane)); a("v_lshlrev_b32 v%d, 8, v%d" % (vOffK, vTmp))
        a("v_lshrrev_b32 v%d, 4, v%d" % (vTmp, vLane)); a("v_lshl_add_u32 v%d, v%d, 6, v%d" % (vOffK, vTmp, vOffK))
        a("v_and_b32 v%d, 3, v%d" % (vTmp, vLane)); a("v_lshl_add_u32 v%d, v%d, 4, v%d" % (vOffK, vTmp, vOffK))
        a("v_lshlrev_b32 v%d, 4, v%d" % (vOffV, vLane))
        a("s_lshl_b32 s%d, s%d, 16" % (sT0, sWave))
        a("v_add_u32 v%d, s%d, v%d" % (vOffK, sT0, vOffK)); a("v_add_u32 v%d, s%d, v%d" % (vOffV, sT0, vOffV))
        a("v_lshrrev_b32 v%d, 5, v%d" % (vTmp, vLane)); a("v_and_b32 v%d, 31, v%d" % (vTmp + 1, vLane))
        a("v_lshlrev_b32 v%d, 10, v%d" % (vG, vTmp)); a("v_lshl_add_u32 v%d, v%d, 4, v%d" % (vG, vTmp + 1, vG))
        a("v_lshrrev_b32 v%d, 3, v%d" % (vTmp, vLane)); a("v_lshlrev_b32 v%d, 13, v%d" % (vG + 1, vTmp))
        a("v_and_b32 v%d, 7, v%d" % (vTmp, vLane)); a("v_lshl_add_u32 v%d, v%d, 4, v%d" % (vG + 1, vTmp, vG + 1))
        a("s_mul_i32 s%d, s%d, %d" % (sRot, sWave, o["rotw"])); a("s_mul_i32 s%d, s%d, %d" % (sT1, sX, o["rotx"]))
        a("s_add_u32 s%d, s%d, s%d" % (sRot, sRot, sT1)); a("s_mul_i32 s%d, s%d, %d" % (sT1, sJ, o["rotj"]))
        a("s_add_u32 s%d, s%d, s%d" % (sRot, sRot, sT1)); a("s_and_b32 s%d, s%d, 15" % (sRot, sRot))
        a("s_lshl_b32 s%d, s%d, 3" % (sT1, sB)); a("s_add_u32 s%d, s%d, s%d" % (sT1, sT1, sX)); a("s_lshl_b32 s%d, s%d, 4" % (sT1, sT1))
        a("s_and_b32 s%d, s%d, 15" % (sT2, sJ)); a("s_add_u32 s%d, s%d, s%d" % (sT1, sT1, sT2)); a("s_lshl_b32 s%d, s%d, 18" % (sT1, sT1))
        a("s_lshl_b32 s%d, s%d, 10" % (sT2, sX)); a("s_and_b32 s%d, s%d, 7" % (sT3, sJ)); a("s_lshl_b32 s%d, s%d, 7" % (sT3, sT3))
        a("s_add_u32 s%d, s%d, s%d" % (sT2, sT2, sT3)); a("s_lshr_b32 s%d, s%d, 3" % (sT3, sJ)); a("s_lshl_b32 s%d, s%d, 20" % (sT3, sT3))
        a("s_add_u32 s%d, s%d, s%d" % (sT2, sT2, sT3))
        a("s_waitcnt lgkmcnt(0)")
        self.make_srd(SRD_K, sPK, 0x40000, off_sreg=sT1)
        lab = self.lab("w0"); lab2 = self.lab("w0j")
        a("s_cmp_eq_u32 s%d, 0" % sWave); a("s_cbranch_scc1 %s" % lab)
        self.early = o.get("early", 2)
        for (k, t, h) in self.bulk[:self.early]: self.load_half(k, t, h)
        if o.get("tlbtouch", True):
            a("s_lshl_b32 s%d, s%d, 19" % (sT2, sX)); a("s_lshr_b32 s%d, s%d, 1" % (sT3, sJ)); a("s_lshl_b32 s%d, s%d, 15" % (sT3, sT3)); a("s_add_u32 s%d, s%d, s%d" % (sT2, sT2, sT3))
            self.make_srd(SRD_W2, sPWO, 0x400000)
            self.make_srd(SRD_W3, sPOUT, 2048)
            a("v_mov_b32 v%d, 0" % vTmp)
            a("s_mov_b64 exec, 1")
            a("buffer_load_dword v%d, v%d, s[%d:%d], s%d offen nt" % (vG + 56, vTmp, SRD_W2, SRD_W2 + 3, sT2))
            a("buffer_load_dword v%d, v%d, s[%d:%d], 0 offen nt" % (vG + 57, vTmp, SRD_W3, SRD_W3 + 3))
            a("s_mov_b64 exec, -1")
            self.helper_extra = 2
        else:
            self.helper_extra = 0
        self.make_srd(SRD_X, sPX, 2048)
        self.make_srd(SRD_WS, sPWS, WS_SIZE)
        a("s_branch %s" % lab2)
        a.label(lab)
        self.make_srd(SRD_X, sPX, 2048)
        a("buffer_load_dwordx4 v[%d:%d], v%d, s[%d:%d], 0 offen" % (vG + 4, vG + 7, vG, SRD_X, SRD_X + 3))
        a("buffer_load_dwordx4 v[%d:%d], v%d, s[%d:%d], 0 offen offset:512" % (vG + 8, vG + 11, vG, SRD_X, SRD_X + 3))
        self.vm("x", 2)
        self.make_srd(SRD_W1, sPWQ, 0x400000, off_sreg=sT2)
        a("s_sub_u32 s%d, 0x400000, s%d" % (SRD_W1 + 2, sT2))
        for c in range(0 if o.get("nowq") else 16):
            a("s_mov_b32 m0, %d" % (L_IMG0 + c * 1024))
            a("s_mov_b32 s%d, %d" % (sOffA, c * 8 * 8192))
            a("buffer_load_dwordx4 v%d, s[%d:%d], s%d offen nt lds" % (vG + 1, SRD_W1, SRD_W1 + 3, sOffA))
        self.vm("wq", 16)
        self.make_srd(SRD_WS, sPWS, WS_SIZE)
        if o.get("touch", True):
            a("s_lshl_b32 s%d, s%d, 15" % (sT2, sX)); a("s_lshl_b32 s%d, s%d, 12" % (sT3, sB)); a("s_add_u32 s%d, s%d, s%d" % (sT2, sT2, sT3))
            a("s_add_u32 s%d, s%d, %d" % (sT2, sT2, WS_QA))
            a("v_and_b32 v%d, 31, v%d" % (vTmp, vLane)); a("v_lshlrev_b32 v%d, 7, v%d" % (vTmp, vTmp))
            a("v_lshrrev_b32 v%d, 5, v%d" % (vTmp + 1, vLane)); a("v_lshl_add_u32 v%d, v%d, 13, v%d" % (vTmp, vTmp + 1, vTmp))
            a("buffer_load_dword v%d, v%d, s[%d:%d], s%d offen %s" % (vG + 56, vTmp, SRD_WS, SRD_WS + 3, sT2, o.get("touchflag", "sc1")))
            a("s_add_u32 s%d, s%d, 16384" % (sT2, sT2))
            a("buffer_load_dword v%d, v%d, s[%d:%d], s%d offen %s" % (vG + 57, vTmp, SRD_WS, SRD_WS + 3, sT2, o.get("touchflag", "sc1")))
            self.vm("touch", 2)
        a.label(lab2)
        a("s_load_dword s%d, s[%d:%d], 0x%x" % (sTag, sPWS, sPWS + 1, WS_EPOCH))
        self.make_srd(SRD_V, sPV, 0x40000, off_sreg=sT1)
        if o.get("probar", False): a("s_barrier")
        a("s_mov_b32 s%d, 0x05040100" % sSelLo); a("s_mov_b32 s%d, 0x07060302" % sSelHi)
        for k in range(4): a("s_mov_b32 s%d, 0x%08x" % (sTSel + k, 0x07060500 + k))
        a("s_mov_b32 s%d, 0x0c0c0400" % sChkA); a("s_mov_b32 s%d, 0x04000c0c" % sChkB)
        a("s_mov_b32 s%d, 0x3db504f3" % sScale); a("s_mov_b32 s%d, 0x3db504f3" % (sScale + 1)); a("s_mov_b32 s%d, 0x3fb8aa3b" % sLog2e)
        a("s_getreg_b32 s%d, hwreg(HW_REG_XCC_ID, 0, 4)" % sXcc)

    def soff_half(self, t, half, dst):
        a = self.a
        a("s_add_u32 s%d, s%d, %d" % (dst, sRot, 2 * t + half))
        a("s_and_b32 s%d, s%d, 15" % (dst, dst)); a("s_lshl_b32 s%d, s%d, 12" % (dst, dst))

    def load_half(self, kind, t, half, dyn=False):
        a = self.a
        so = sOffA if half == 0 else sOffB
        if not dyn: self.soff_half(t, half, so)
        setsel = t % self.NS
        for i in range(4):
            slot = 4 * half + i
            if kind == "K":
                dst = ar(aKS[setsel] + 4 * slot, 4); voff = vOffK; srd = SRD_K
            else:
                dst = vr(vVS[setsel] + 4 * slot, 4); voff = vOffV; srd = SRD_V
            a("buffer_load_dwordx4 %s, v%d, s[%d:%d], s%d offen offset:%d %s" % (dst, voff, srd, srd + 3, so, i * 1024, self.o["ntflag"]))

    def tag_consts(self):
        a = self.a
        a("s_waitcnt lgkmcnt(0)")
        a("s_and_b32 s%d, s%d, 0xff" % (sT0, sTag))
        a("s_add_u32 s%d, s%d, 0x35" % (sT1, sT0)); a("s_and_b32 s%d, s%d, 0xff" % (sT1, sT1)); a("s_lshl_b32 s%d, s%d, 8" % (sT1, sT1))
        a("s_add_u32 s%d, s%d, 0x6a" % (sT2, sT0)); a("s_and_b32 s%d, s%d, 0xff" % (sT2, sT2)); a("s_lshl_b32 s%d, s%d, 16" % (sT2, sT2))
        a("s_add_u32 s%d, s%d, 0xc1" % (sT3, sT0)); a("s_lshl_b32 s%d, s%d, 24" % (sT3, sT3))
        a("s_or_b32 s%d, s%d, s%d" % (sT0, sT0, sT1)); a("s_or_b32 s%d, s%d, s%d" % (sT2, sT2, sT3)); a("s_or_b32 s%d, s%d, s%d" % (sT0, sT0, sT2))
        a("s_add_u32 s%d, s%d, 1" % (sEp1, sTag))
        a("s_mov_b32 s%d, s%d" % (self.sTagW, sT0))
        a("v_mov_b32 v%d, s%d" % (vTagW, sT0))

    def helper_startup(self):
        a = self.a; o = self.o
        W = o.get("win", 10)
        n = 4 * self.early + self.helper_extra
        for (k, t, h) in self.bulk[self.early:]:
            if n + 4 > W: a("s_waitcnt vmcnt(%d)" % max(W - 4, 0))
            self.load_half(k, t, h); n += 4
        self.tag_consts()

    def ln_x(self):
        a = self.a
        X = vG + 4; F = vO
        t0, t1 = vTmp, vTmp + 1
        self.vwait("x")
        if self.o.get("tsq"): self.ts()
        for i in range(8):
            a("v_lshlrev_b32 v%d, 16, v%d" % (F + 2 * i, X + i))
            a("v_and_b32 v%d, 0xffff0000, v%d" % (F + 2 * i + 1, X + i))
        S = vO + 16
        a("v_pk_add_f32 v[%d:%d], v[%d:%d], v[%d:%d]" % (S, S + 1, F, F + 1, F + 2, F + 3))
        a("v_pk_add_f32 v[%d:%d], v[%d:%d], v[%d:%d]" % (S + 2, S + 3, F + 4, F + 5, F + 6, F + 7))
        for i in (4, 6):
            a("v_pk_add_f32 v[%d:%d], v[%d:%d], v[%d:%d]" % (S, S + 1, S, S + 1, F + 2 * i, F + 2 * i + 1))
            a("v_pk_add_f32 v[%d:%d], v[%d:%d], v[%d:%d]" % (S + 2, S + 3, S + 2, S + 3, F + 2 * i + 2, F + 2 * i + 3))
        a("v_pk_add_f32 v[%d:%d], v[%d:%d], v[%d:%d]" % (S, S + 1, S, S + 1, S + 2, S + 3))
        a("v_add_f32 v%d, v%d, v%d" % (S, S, S + 1))
        self.allred_row16("v_add_f32", S); self.allred_x16("v_add_f32", S, t0)
        a("v_mul_f32 v%d, 0x3b000000, v%d" % (S, S))
        MEAN = S; D = vO + 20
        a("v_mov_b32 v%d, v%d" % (S + 1, S))
        for i in range(8):
            a("v_pk_add_f32 v[%d:%d], v[%d:%d], v[%d:%d] neg_lo:[0,1] neg_hi:[0,1]" % (D + 2 * i, D + 2 * i + 1, F + 2 * i, F + 2 * i + 1, S, S + 1))
        Q = vO + 36
        a("v_pk_mul_f32 v[%d:%d], v[%d:%d], v[%d:%d]" % (Q, Q + 1, D, D + 1, D, D + 1))
        a("v_pk_mul_f32 v[%d:%d], v[%d:%d], v[%d:%d]" % (Q + 2, Q + 3, D + 2, D + 3, D + 2, D + 3))
        for i in range(2, 8):
            q = Q + 2 * (i & 1)
            a("v_pk_fma_f32 v[%d:%d], v[%d:%d], v[%d:%d], v[%d:%d]" % (q, q + 1, D + 2 * i, D + 2 * i + 1, D + 2 * i, D + 2 * i + 1, q, q + 1))
        a("v_pk_add_f32 v[%d:%d], v[%d:%d], v[%d:%d]" % (Q, Q + 1, Q, Q + 1, Q + 2, Q + 3))
        a("v_add_f32 v%d, v%d, v%d" % (Q, Q, Q + 1))
        self.allred_row16("v_add_f32", Q); self.allred_x16("v_add_f32", Q, t0)
        lab = self.lab("lo")
        a("s_cmp_lt_u32 s%d, 16" % sJ); a("s_cbranch_scc1 %s" % lab)
        for i in range(8): a("v_mov_b32 v%d, v%d" % (F + i, F + 8 + i))
        a.label(lab)
        a("v_mul_f32 v%d, 0x3b000000, v%d" % (Q, Q))
        a("v_cvt_pk_bf16_f32 v%d, v%d, v%d" % (t0, MEAN, Q))
        a("v_lshlrev_b32 v%d, 16, v%d" % (S, t0))
        a("v_and_b32 v%d, 0xffff0000, v%d" % (Q, t0))
        a("v_add_f32 v%d, 0x3727c5ac, v%d" % (Q, Q))
        a("v_mov_b32 v%d, v%d" % (S + 1, S))
        a("v_cvt_pk_bf16_f32 v%d, v%d, v%d" % (Q, Q, Q)); a("v_lshlrev_b32 v%d, 16, v%d" % (Q, Q))
        for i in range(4):
            a("v_pk_add_f32 v[%d:%d], v[%d:%d], v[%d:%d] neg_lo:[0,1] neg_hi:[0,1]" % (D + 2 * i, D + 2 * i + 1, F + 2 * i, F + 2 * i + 1, S, S + 1))
        a("v_sqrt_f32 v%d, v%d" % (Q, Q))
        for i in range(4):
            a("v_cvt_pk_bf16_f32 v%d, v%d, v%d" % (X + i, D + 2 * i, D + 2 * i + 1))
        a("v_cvt_pk_bf16_f32 v%d, v%d, v%d" % (Q, Q, Q)); a("v_lshlrev_b32 v%d, 16, v%d" % (Q, Q))
        a("v_rcp_f32 v%d, v%d" % (Q + 2, Q)); a("v_mov_b32 v%d, v%d" % (Q + 1, Q))
        for i in range(4):
            a("v_lshlrev_b32 v%d, 16, v%d" % (D + 2 * i, X + i)); a("v_and_b32 v%d, 0xffff0000, v%d" % (D + 2 * i + 1, X + i))
        a("v_mov_b32 v%d, v%d" % (Q + 3, Q + 2))
        for i in range(4):
            a("v_pk_mul_f32 v[%d:%d], v[%d:%d], v[%d:%d]" % (F + 2 * i, F + 2 * i + 1, D + 2 * i, D + 2 * i + 1, Q + 2, Q + 3))
        for i in range(4):
            a("v_pk_fma_f32 v[%d:%d], v[%d:%d], v[%d:%d], v[%d:%d] neg_lo:[1,0,0] neg_hi:[1,0,0]" % (D + 2 * i, D + 2 * i + 1, F + 2 * i, F + 2 * i + 1, Q, Q + 1, D + 2 * i, D + 2 * i + 1))
        for i in range(4):
            a("v_pk_fma_f32 v[%d:%d], v[%d:%d], v[%d:%d], v[%d:%d]" % (F + 2 * i, F + 2 * i + 1, D + 2 * i, D + 2 * i + 1, Q + 2, Q + 3, F + 2 * i, F + 2 * i + 1))
        for i in range(4):
            a("v_cvt_pk_bf16_f32 v%d, v%d, v%d" % (X + i, F + 2 * i, F + 2 * i + 1))

    def q_slice(self):
        a = self.a
        X = vG + 4
        AF = vG + 12; BF = vO; DQ = vG + 28
        a("ds_write_b128 v%d, v[%d:%d]" % (vG + 52, X, X + 3))
        a("s_waitcnt lgkmcnt(0)")
        for t in range(4):
            a("ds_read_b128 v[%d:%d], v%d offset:%d" % (AF + 4 * t, AF + 4 * t + 3, vG + 53, 64 * t))
        if self.o.get("tsq"): self.ts()
        self.vwait("wq")
        if self.o.get("tsq"): self.ts()
        for nt in range(4):
            a("s_waitcnt lgkmcnt(%d)" % (0 if nt == 0 else 4))
            for t in range(4):
                b = BF + 16 * nt + 4 * t
                a("ds_read_b64_tr_b16 v[%d:%d], v%d offset:%d" % (b, b + 1, vG + 54, L_IMG0 + t * 4096 + nt * 32))
                a("ds_read_b64_tr_b16 v[%d:%d], v%d offset:%d" % (b + 2, b + 3, vG + 54, L_IMG0 + t * 4096 + nt * 32 + 512))
            if nt >= 1:
                a("s_waitcnt lgkmcnt(8)")
                self._q_mfma(nt - 1, AF, BF, DQ)
        a("s_waitcnt lgkmcnt(0)")
        self._q_mfma(3, AF, BF, DQ)
        G = vG + 44
        for nt in range(4):
            g = vO + 4 * nt
            a("v_mov_b32_dpp v%d, v%d quad_perm:[0,0,2,2] row_mask:0xf bank_mask:0xf" % (g, DQ + 4 * nt))
            a("v_mov_b32_dpp v%d, v%d quad_perm:[1,1,3,3] row_mask:0xf bank_mask:0xf" % (g + 2, DQ + 4 * nt))
            a("v_mov_b32 v%d, v%d" % (g + 1, vTagW)); a("v_mov_b32 v%d, s%d" % (g + 3, sT3))
        a("s_mov_b32 exec_lo, 0x55555555"); a("s_mov_b32 exec_hi, 0")
        for nt in range(4):
            g = vO + 4 * nt
            a("buffer_store_dwordx4 v[%d:%d], v%d, s[%d:%d], s%d offen offset:%d" % (g, g + 3, vG + 55, SRD_WS, SRD_WS + 3, sT1, nt * 128))
        for nt in range(4):
            g = vO + 4 * nt
            a("buffer_store_dwordx4 v[%d:%d], v%d, s[%d:%d], s%d offen offset:%d sc1" % (g, g + 3, vG + 55, SRD_WS, SRD_WS + 3, sT0, nt * 128))
        self.vm("pub", 8)
        a("s_mov_b64 exec, -1")

    def _q_mfma(self, nt, AF, BF, DQ):
        for t in range(4):
            b = BF + 16 * nt + 4 * t
            self.a("v_mfma_f32_16x16x32_bf16 v[%d:%d], v[%d:%d], v[%d:%d], %s" % (DQ + 4 * nt, DQ + 4 * nt + 3, AF + 4 * t, AF + 4 * t + 3, b, b + 3, "0" if t == 0 else "v[%d:%d]" % (DQ + 4 * nt, DQ + 4 * nt + 3)))

    def q_pre(self):
        a = self.a
        a("v_add_u32 v%d, %d, v%d" % (vG + 52, L_XN, vG))
        a("v_bfe_u32 v%d, v%d, 2, 1" % (vTmp + 1, vLane)); a("v_lshlrev_b32 v%d, 10, v%d" % (vTmp + 1, vTmp + 1))
        a("v_lshrrev_b32 v%d, 4, v%d" % (vTmp + 2, vLane)); a("v_lshl_add_u32 v%d, v%d, 4, v%d" % (vTmp + 1, vTmp + 2, vTmp + 1))
        a("s_bfe_u32 s%d, s%d, 0x10003" % (sT1, sJ)); a("s_lshl_b32 s%d, s%d, 8" % (sT1, sT1)); a("s_add_u32 s%d, s%d, %d" % (sT1, sT1, L_XN))
        a("v_add_u32 v%d, s%d, v%d" % (vG + 53, sT1, vTmp + 1))
        a("v_bfe_u32 v%d, v%d, 2, 2" % (vTmp + 3, vLane)); a("v_lshl_add_u32 v%d, v%d, 3, v%d" % (vTmp + 3, vTmp + 2, vTmp + 3))
        a("v_lshlrev_b32 v%d, 7, v%d" % (vTmp + 3, vTmp + 3)); a("v_and_b32 v%d, 3, v%d" % (vTmp + 2, vLane))
        a("v_lshl_add_u32 v%d, v%d, 3, v%d" % (vG + 54, vTmp + 2, vTmp + 3))
        a("v_lshrrev_b32 v%d, 4, v%d" % (vTmp, vLane)); a("v_lshlrev_b32 v%d, 12, v%d" % (vTmp, vTmp))
        a("v_and_b32 v%d, 15, v%d" % (vTmp + 1, vLane)); a("v_lshl_add_u32 v%d, v%d, 3, v%d" % (vG + 55, vTmp + 1, vTmp))
        self.tag_consts()
        a("s_lshr_b32 s%d, s%d, 3" % (sT0, sJ)); a("s_lshl_b32 s%d, s%d, 2" % (sT2, sX)); a("s_add_u32 s%d, s%d, s%d" % (sT0, sT0, sT2))
        a("s_lshl_b32 s%d, s%d, 13" % (sT0, sT0)); a("s_and_b32 s%d, s%d, 7" % (sT2, sJ)); a("s_lshl_b32 s%d, s%d, 9" % (sT2, sT2))
        a("s_add_u32 s%d, s%d, s%d" % (sT0, sT0, sT2)); a("s_add_u32 s%d, s%d, %d" % (sT0, sT0, WS_Q))
        a("s_add_u32 s%d, s%d, %d" % (sT1, sT0, WS_QA - WS_Q))
        a("s_and_b32 s%d, s%d, 0xfffffff0" % (sT3, self.sTagW)); a("s_or_b32 s%d, s%d, s%d" % (sT3, sT3, sXcc))

    def q_wait(self):
        a = self.a; o = self.o
        QA = vG + 3; D = vO
        L_QB = L_QP
        a("v_lshlrev_b32 v%d, 4, v%d" % (QA, vLane))
        a("s_lshl_b32 s%d, s%d, 15" % (sT0, sX)); a("s_lshl_b32 s%d, s%d, 12" % (sT1, sB)); a("s_add_u32 s%d, s%d, s%d" % (sT0, sT0, sT1))
        a("s_add_u32 s%d, s%d, %d" % (sSave, sT0, WS_Q))
        a("s_add_u32 s%d, s%d, %d" % (sSave + 1, sT0, WS_QA))
        a("v_mov_b32 v%d, s%d" % (vG + 2, sT3))
        rem = self.bulk[self.bi:]
        pre = o.get("w0pre", 2); sizes = o.get("rounds", [2, 2, 2, 2, 2])
        for (k, t, h) in rem[:pre]: self.load_half(k, t, h)
        if o.get("waitpub", True): a("s_waitcnt vmcnt(%d)" % (4 + 4 * pre))
        rem = rem[pre:]
        rounds = []
        for n in sizes:
            if rem: rounds.append(rem[:n]); rem = rem[n:]
        if rem: rounds.append(rem)
        def poll(local):
            base = sSave + 1 if local else sSave
            for kg in range(4):
                a("s_add_u32 s%d, s%d, %d" % (sT2, base, kg * 8192))
                for u in range(4):
                    d = D + 16 * kg + 4 * u
                    a("buffer_load_dwordx4 v[%d:%d], v%d, s[%d:%d], s%d offen offset:%d %s" % (d, d + 3, QA, SRD_WS, SRD_WS + 3, sT2, u * 1024, (o.get("localpoll", "nt") if local else "sc1")))
        def check(n, stamp=False):
            a("s_waitcnt vmcnt(%d)" % n)
            if stamp: self.ts()
            t0, t1, t2, t3 = vTmp, vTmp + 1, vTmp + 2, vTmp + 3
            a("v_xor_b32 v%d, v%d, v%d" % (t0, D + 1, vTagW)); a("v_xor_b32 v%d, v%d, v%d" % (t1, D + 3, vG + 2))
            for q in range(1, 16):
                a("v_xor_b32 v%d, v%d, v%d" % (t2, D + 4 * q + 1, vTagW)); a("v_xor_b32 v%d, v%d, v%d" % (t3, D + 4 * q + 3, vG + 2))
                a("v_or_b32 v%d, v%d, v%d" % (t0, t0, t2)); a("v_or_b32 v%d, v%d, v%d" % (t1, t1, t3))
            a("v_lshrrev_b32 v%d, 4, v%d" % (t2, t1)); a("v_or_b32 v%d, v%d, v%d" % (t0, t0, t2))
            a("v_cmp_eq_u32 vcc, 0, v%d" % t1); a("s_cmp_eq_u64 vcc, -1"); a("s_cselect_b32 s%d, 1, 0" % sMode)
            a("v_cmp_eq_u32 vcc, 0, v%d" % t0); a("s_cmp_eq_u64 vcc, -1")
        done = [self.lab("qok") for _ in range(len(rounds) + 1)]
        for r, g in enumerate(rounds):
            poll(True)
            n = 0
            for (k, t, h) in g: self.load_half(k, t, h); n += 4
            check(n, stamp=(o.get("tsr") and r < 3))
            a("s_cbranch_scc1 %s" % done[r])
        lp = self.lab("qpoll")
        a("s_mov_b32 s%d, 0" % sCnt)
        a.label(lp)
        for k in range(2):
            poll(k == 0); check(0)
            a("s_cbranch_scc1 %s" % done[-1])
        a("s_add_u32 s%d, s%d, 1" % (sCnt, sCnt)); a("s_cmp_lt_u32 s%d, %d" % (sCnt, o["spin"])); a("s_cbranch_scc1 %s" % lp)
        a("s_mov_b32 s%d, 2" % sMode)
        a("s_branch %s" % done[-1])
        for r in range(len(rounds)):
            a.label(done[r])
            if r + 1 < len(rounds):
                pass
            a("s_mov_b32 s%d, %d" % (sT3, r + 1)); a("s_branch L_qsum")
        a.label(done[-1])
        a("s_mov_b32 s%d, %d" % (sT3, len(rounds)))
        a.label("L_qsum")
        if o.get("tss"):
            self.ts(); i = self.ts_slot(); a("s_mul_i32 s%d, s%d, 100" % (sTS + i, sT3))
        for u in range(4):
            for e in (0, 2):
                d = D + 4 * u + e
                a("v_add_f32 v%d, v%d, v%d" % (d, d, d + 16)); a("v_add_f32 v%d, v%d, v%d" % (d + 32, d + 32, d + 48))
        for u in range(4):
            for e in (0, 2):
                d = D + 4 * u + e
                a("v_add_f32 v%d, v%d, v%d" % (d, d, d + 32))
        a("v_lshlrev_b32 v%d, 2, v%d" % (vTmp, vLane))
        for u in range(4):
            a("v_cvt_pk_bf16_f32 v%d, v%d, v%d" % (D + 4 * u, D + 4 * u, D + 4 * u + 2))
            a("ds_write_b32 v%d, v%d offset:%d" % (vTmp, D + 4 * u, L_QB + 256 * u))
        if not o["local"]:
            a("s_and_b32 s%d, s%d, 2" % (sMode, sMode))
        a("v_mov_b32 v%d, s%d" % (vTmp + 1, sMode))
        a("ds_write_b32 v%d, v%d offset:%d" % (vTmp, vTmp + 1, L_QB + 1024))
        self.rounds = rounds
        if o.get("rem_before", False):
            for r in range(1, len(rounds)):
                l = self.lab("rb")
                a("s_cmp_gt_u32 s%d, %d" % (sT3, r)); a("s_cbranch_scc1 %s" % l)
                for (k, t, h) in rounds[r]: self.load_half(k, t, h)
                a.label(l)
            self.rounds = rounds[:1]
        a("s_waitcnt lgkmcnt(0)")

    def q_join(self):
        a = self.a
        L_QB = L_QP
        a("v_bfe_u32 v%d, v%d, 2, 2" % (vTmp, vLane)); a("v_lshlrev_b32 v%d, 4, v%d" % (vTmp, vTmp))
        a("v_lshrrev_b32 v%d, 4, v%d" % (vTmp + 1, vLane)); a("v_lshl_add_u32 v%d, v%d, 2, v%d" % (vTmp, vTmp + 1, vTmp))
        a("v_and_b32 v%d, 3, v%d" % (vTmp + 1, vLane)); a("v_add_u32 v%d, v%d, v%d" % (vTmp, vTmp, vTmp + 1))
        a("v_lshlrev_b32 v%d, 4, v%d" % (vTmp, vTmp)); a("v_mov_b32 v%d, 0" % (vTmp + 1))
        a("s_barrier")
        a("ds_read_b128 v[%d:%d], v%d offset:%d" % (vQ, vQ + 3, vTmp, L_QB))
        a("ds_read_b32 v%d, v%d offset:%d" % (vTmp + 2, vTmp + 1, L_QB + 1024))
        a("v_mov_b32 v%d, 0xff800000" % vM); a("v_mov_b32 v%d, 0" % vL)
        for i in range(32): a("v_mov_b32 v%d, 0" % (vO + i))
        a("s_waitcnt lgkmcnt(0)")
        a("v_readfirstlane_b32 s%d, v%d" % (sMode, vTmp + 2))
        a("s_cmp_eq_u32 s%d, 2" % sMode); a("s_cbranch_scc1 L_fail")
        lab = self.lab("nw0")
        a("s_cmp_lg_u32 s%d, 0" % sWave); a("s_cbranch_scc1 %s" % lab)
        for r in range(1, len(self.rounds)):
            l = self.lab("rb")
            a("s_cmp_gt_u32 s%d, %d" % (sT3, r)); a("s_cbranch_scc1 %s" % l)
            for (k, t, h) in self.rounds[r]: self.load_half(k, t, h)
            a.label(l)
        a.label(lab)

    def qwait(self, tag):
        idx = self.sq.index(tag)
        n = len(self.sq) - 1 - idx
        assert n <= 63
        self.a("s_waitcnt vmcnt(%d)" % n)

    def set_soff(self, t):
        a = self.a
        a("s_add_u32 s%d, s%d, %d" % (sOffA, sRot, 2 * t)); a("s_add_u32 s%d, s%d, %d" % (sOffB, sRot, 2 * t + 1))
        a("s_and_b32 s%d, s%d, 15" % (sOffA, sOffA)); a("s_and_b32 s%d, s%d, 15" % (sOffB, sOffB))
        a("s_lshl_b32 s%d, s%d, 12" % (sOffA, sOffA)); a("s_lshl_b32 s%d, s%d, 12" % (sOffB, sOffB))

    def tile(self, t, hook=None, qkhook=None):
        a = self.a
        st = t % self.NS
        aK = aKS[st]; vV = vVS[st]
        nt = self.o["ntflag"]
        tn = self.plan.get(t)
        refill = tn is not None
        if refill:
            assert tn % self.NS == st or tn - self.NS < t, (t, tn)
            assert tn - self.NS <= t
        nocomp = self.o.get("nocompute")
        if refill: self.set_soff(tn)
        for i in range(8):
            self.qwait(("K", t, i))
            if not nocomp:
                a("v_mfma_f32_16x16x32_bf16 v[%d:%d], a[%d:%d], v[%d:%d], 0" % (vS + 4 * i, vS + 4 * i + 3, aK + 4 * i, aK + 4 * i + 3, vQ, vQ + 3))
            if refill:
                so = sOffA if i < 4 else sOffB
                aN = aKS[tn % self.NS]
                a("buffer_load_dwordx4 a[%d:%d], v%d, s[%d:%d], s%d offen offset:%d %s" % (aN + 4 * i, aN + 4 * i + 3, vOffK, SRD_K, SRD_K + 3, so, (i & 3) * 1024, nt))
                self.sq.append(("K", tn, i))
        if qkhook: qkhook()
        if not nocomp: self.softmax_a(wgmax=(t == 7))
        for p in range(4):
            self.qwait(("V", t, 2 * p + 1))
            if not nocomp:
                for j in range(8):
                    a("v_perm_b32 v%d, v%d, v%d, s%d" % (vS + 4 * j + p, vV + 4 * (2 * p + 1) + (j >> 1), vV + 4 * (2 * p) + (j >> 1), sSelHi if j & 1 else sSelLo))
            if refill:
                for i in (2 * p, 2 * p + 1):
                    so = sOffA if i < 4 else sOffB
                    vN = vVS[tn % self.NS]
                    a("buffer_load_dwordx4 v[%d:%d], v%d, s[%d:%d], s%d offen offset:%d %s" % (vN + 4 * i, vN + 4 * i + 3, vOffV, SRD_V, SRD_V + 3, so, (i & 3) * 1024, nt))
                    self.sq.append(("V", tn, i))
        if hook: hook()
        if not nocomp: self.softmax_b()

    def softmax_a(self, wgmax=False):
        a = self.a
        for i in range(8): a("v_mov_b32_dpp v%d, v%d quad_perm:[0,0,0,0] row_mask:0xf bank_mask:0xf" % (vT + i, vS + 4 * i))
        for c in range(1, 4):
            for i in range(8):
                a("v_add_f32_dpp v%d, v%d, v%d quad_perm:[%d,%d,%d,%d] row_mask:0xf bank_mask:0xf" % (vT + i, vS + 4 * i + c, vT + i, c, c, c, c))
        for p in range(4): a("v_cvt_pk_bf16_f32 v%d, v%d, v%d" % (vP + p, vT + 2 * p, vT + 2 * p + 1))
        for p in range(4):
            a("v_lshlrev_b32 v%d, 16, v%d" % (vU + 2 * p, vP + p)); a("v_and_b32 v%d, 0xffff0000, v%d" % (vU + 2 * p + 1, vP + p))
        for p in range(4): a("v_pk_mul_f32 v[%d:%d], v[%d:%d], s[%d:%d]" % (vU + 2 * p, vU + 2 * p + 1, vU + 2 * p, vU + 2 * p + 1, sScale, sScale + 1))
        for p in range(4): a("v_cvt_pk_bf16_f32 v%d, v%d, v%d" % (vP + p, vU + 2 * p, vU + 2 * p + 1))
        for p in range(4):
            a("v_lshlrev_b32 v%d, 16, v%d" % (vT + 2 * p, vP + p)); a("v_and_b32 v%d, 0xffff0000, v%d" % (vT + 2 * p + 1, vP + p))
        t0, t1 = vTmp, vTmp + 1
        a("v_max3_f32 v%d, v%d, v%d, v%d" % (t0, vT, vT + 1, vT + 2)); a("v_max3_f32 v%d, v%d, v%d, v%d" % (t1, vT + 3, vT + 4, vT + 5))
        a("v_max3_f32 v%d, v%d, v%d, v%d" % (t0, t0, vT + 6, vT + 7)); a("v_max_f32 v%d, v%d, v%d" % (t0, t0, t1))
        self.allred_x16("v_max_f32", t0, t1); self.allred_x32("v_max_f32", t0, t1)
        a("v_max_f32 v%d, v%d, v%d" % (t0, t0, vM))
        if wgmax:
            a("s_mov_b64 exec, 0x1111")
            a("ds_write_b32 v%d, v%d offset:%d" % (vCA + 1, t0, L_CML))
            a("s_mov_b64 exec, -1")
            a("s_waitcnt lgkmcnt(0)")
            a("s_barrier")
            a("ds_read_b128 v[%d:%d], v%d offset:%d" % (vU, vU + 3, vCA + 2, L_CML))
            a("s_waitcnt lgkmcnt(0)")
            a("v_max3_f32 v%d, v%d, v%d, v%d" % (t0, vU, vU + 1, vU + 2)); a("v_max_f32 v%d, v%d, v%d" % (t0, t0, vU + 3))
        a("v_sub_f32 v%d, v%d, v%d" % (vAl, vM, t0)); a("v_mul_f32 v%d, s%d, v%d" % (vAl, sLog2e, vAl))
        a("v_mov_b32 v%d, v%d" % (vM, t0))
        a("v_mul_f32 v%d, s%d, v%d" % (t1, sLog2e, t0))
        a("v_exp_f32 v%d, v%d" % (vAl, vAl))
        for i in range(8): a("v_fma_f32 v%d, v%d, s%d, -v%d" % (vU + i, vT + i, sLog2e, t1))
        for i in range(8): a("v_exp_f32 v%d, v%d" % (vU + i, vU + i))
        for p in range(4): a("v_cvt_pk_bf16_f32 v%d, v%d, v%d" % (vP + p, vU + 2 * p, vU + 2 * p + 1))
        a("v_pk_add_f32 v[%d:%d], v[%d:%d], v[%d:%d]" % (vU, vU + 1, vU, vU + 1, vU + 2, vU + 3))
        a("v_pk_add_f32 v[%d:%d], v[%d:%d], v[%d:%d]" % (vU + 4, vU + 5, vU + 4, vU + 5, vU + 6, vU + 7))
        a("v_pk_add_f32 v[%d:%d], v[%d:%d], v[%d:%d]" % (vU, vU + 1, vU, vU + 1, vU + 4, vU + 5))
        a("v_fma_f32 v%d, v%d, v%d, v%d" % (vL, vL, vAl, vU)); a("v_add_f32 v%d, v%d, v%d" % (vL, vL, vU + 1))
        for i in range(16):
            a("v_pk_mul_f32 v[%d:%d], v[%d:%d], v[%d:%d] op_sel_hi:[1,0]" % (vO + 2 * i, vO + 2 * i + 1, vO + 2 * i, vO + 2 * i + 1, vAl, vAl + 1))
        if wgmax:
            self.allred_x16("v_add_f32", vL, t0); self.allred_x32("v_add_f32", vL, t0)
            a("s_mov_b64 exec, 0x1111")
            a("ds_write_b32 v%d, v%d offset:%d" % (vCA + 1, vL, L_CML + 64))
            a("s_mov_b64 exec, -1")

    def softmax_b(self):
        a = self.a
        for j in range(8):
            a("v_mfma_f32_16x16x32_bf16 v[%d:%d], v[%d:%d], v[%d:%d], v[%d:%d]" % (vO + 4 * j, vO + 4 * j + 3, vS + 4 * j, vS + 4 * j + 3, vP, vP + 3, vO + 4 * j, vO + 4 * j + 3))

    def stream(self, weights_hook=None, touch_hook=None, nextra=0):
        o = self.o
        if o.get("plan_even") is not None:
            l1 = self.lab("sodd"); l2 = self.lab("sjoin")
            self.a("s_bitcmp1_b32 s%d, 0" % sX); self.a("s_cbranch_scc1 %s" % l1)
            self._stream(o["plan_even"], weights_hook, touch_hook, nextra, o.get("thr_even", 0))
            self.a("s_branch %s" % l2)
            self.a.label(l1)
            n = self.nts
            self._stream(o.get("plan"), weights_hook, touch_hook, nextra, 0)
            self.a.label(l2)
        else:
            self._stream(o.get("plan"), weights_hook, touch_hook, nextra, 0)

    def _stream(self, plan, weights_hook, touch_hook, nextra, thr):
        self.sq = [(k, t, i) for t in range(self.NS) for k in "KV" for i in range(8)] + [("X", 0, i) for i in range(nextra)]
        self.thr = thr
        if plan is None:
            plan = {3: [(0, 3), (1, 4), (3, 5), (5, 6), (6, 7)], 2: [(0, 2), (1, 3), (2, 4), (3, 5), (5, 6), (6, 7)]}[self.NS]
        self.plan = dict((int(x), int(y)) for x, y in plan)
        assert sorted(self.plan.values()) == list(range(self.NS, 8))
        last = [t for t, u in self.plan.items() if u == 7][0]
        for t in range(8):
            hook = None; qkhook = None
            if t == last and self.o.get("endbar"):
                hook = lambda: self.a("s_barrier")
            if t == 7: qkhook = weights_hook
            if t == self.o.get("touch_tile", 5) and touch_hook: qkhook = touch_hook
            if t in self.o.get("tilebar", []): self.a("s_barrier")
            self.tile(t, hook, qkhook)

    def comb_pre(self):
        a = self.a
        t0, t1 = vTmp, vTmp + 1
        a("v_bfe_u32 v%d, v%d, 2, 2" % (t0, vLane)); a("v_lshlrev_b32 v%d, 9, v%d" % (vCA, t0))
        a("v_lshrrev_b32 v%d, 4, v%d" % (t1, vLane)); a("v_lshl_add_u32 v%d, v%d, 7, v%d" % (vCA, t1, vCA))
        a("s_lshl_b32 s%d, s%d, 11" % (sT0, sWave)); a("v_add_u32 v%d, s%d, v%d" % (vCA, sT0, vCA))
        a("v_lshlrev_b32 v%d, 4, v%d" % (vCA + 2, t0))
        a("s_lshl_b32 s%d, s%d, 2" % (sT0, sWave)); a("v_add_u32 v%d, s%d, v%d" % (vCA + 1, sT0, vCA + 2))
        a("v_lshlrev_b32 v%d, 4, v0" % (vCA + 3))
        a("v_lshrrev_b32 v%d, 5, v0" % t1); a("v_lshlrev_b32 v%d, 4, v%d" % (vCA + 4, t1))
        a("s_lshl_b32 s%d, s%d, 11" % (sPO, sP)); a("s_add_u32 s%d, s%d, %d" % (sPO, sPO, WS_PO))
        a("s_lshl_b32 s%d, s%d, 7" % (sPML, sP)); a("s_add_u32 s%d, s%d, %d" % (sPML, sPML, WS_PML))

    def wg_combine(self):
        a = self.a
        a("s_mov_b32 s%d, 0x11111111" % sMsk); a("s_mov_b32 s%d, 0x11111111" % (sMsk + 1))
        a("s_mov_b64 exec, s[%d:%d]" % (sMsk, sMsk + 1))
        for j in range(8):
            a("ds_write_b128 v%d, v[%d:%d] offset:%d" % (vCA, vO + 4 * j, vO + 4 * j + 3, L_CO + 16 * j))
        a("s_mov_b64 exec, -1")
        a("s_waitcnt lgkmcnt(0)")
        a("s_barrier")
        lab = self.lab("nocomb")
        a("s_cmp_ge_u32 s%d, 2" % sWave); a("s_cbranch_scc1 %s" % lab)
        R = vVS[0]
        for w in range(4):
            a("ds_read_b128 v[%d:%d], v%d offset:%d" % (R + 4 * w, R + 3 + 4 * w, vCA + 3, L_CO + 2048 * w))
        a("ds_read_b128 v[%d:%d], v%d offset:%d" % (R + 16, R + 19, vCA + 4, L_CML))
        a("ds_read_b128 v[%d:%d], v%d offset:%d" % (R + 20, R + 23, vCA + 4, L_CML + 64))
        a("s_waitcnt lgkmcnt(4)")
        for e in (0, 2): a("v_pk_add_f32 v[%d:%d], v[%d:%d], v[%d:%d]" % (R + e, R + e + 1, R + e, R + e + 1, R + 4 + e, R + 5 + e))
        a("s_waitcnt lgkmcnt(2)")
        for e in (0, 2): a("v_pk_add_f32 v[%d:%d], v[%d:%d], v[%d:%d]" % (R + 8 + e, R + 9 + e, R + 8 + e, R + 9 + e, R + 12 + e, R + 13 + e))
        for e in (0, 2): a("v_pk_add_f32 v[%d:%d], v[%d:%d], v[%d:%d]" % (R + e, R + e + 1, R + e, R + e + 1, R + 8 + e, R + 9 + e))
        G = R + 24
        self.tag4(G, [R, R + 1, R + 2, R + 3])
        a("s_waitcnt lgkmcnt(0)")
        Mx, Ls = R + 16, R + 20
        a("v_max3_f32 v%d, v%d, v%d, v%d" % (Mx, Mx, Mx + 1, Mx + 2)); a("v_pk_add_f32 v[%d:%d], v[%d:%d], v[%d:%d]" % (Ls, Ls + 1, Ls, Ls + 1, Ls + 2, Ls + 3))
        a("v_max_f32 v%d, v%d, v%d" % (Mx, Mx, Mx + 3)); a("v_add_f32 v%d, v%d, v%d" % (Ls, Ls, Ls + 1))
        self.tag4(G + 4, [Mx, Ls, Mx, Ls])
        def stores(fl):
            a("buffer_store_dwordx4 v[%d:%d], v%d, s[%d:%d], s%d offen %s" % (G, G + 3, vCA + 3, SRD_WS, SRD_WS + 3, sPO, fl))
            a("s_mov_b32 s%d, 1" % sMsk); a("s_mov_b32 s%d, 1" % (sMsk + 1)); a("s_mov_b64 exec, s[%d:%d]" % (sMsk, sMsk + 1))
            a("buffer_store_dwordx4 v[%d:%d], v%d, s[%d:%d], s%d offen %s" % (G + 4, G + 7, vCA + 4, SRD_WS, SRD_WS + 3, sPML, fl))
            a("s_mov_b64 exec, -1")
        self.by_mode(stores)
        a.label(lab)

    def by_mode(self, fn):
        a = self.a
        l1 = self.lab("m1"); l2 = self.lab("m2")
        a("s_cmp_eq_u32 s%d, 0" % sMode); a("s_cbranch_scc1 %s" % l1)
        fn(""); a("s_branch %s" % l2)
        a.label(l1); fn("sc1"); a.label(l2)

    def epilogue(self):
        a = self.a
        a.label("L_fail")
        a.label("L_done")
        a("s_mov_b64 exec, -1")
        if self.o["ts"]:
            self.ts("end")
            a("s_lshl_b32 s%d, s2, 2" % sT0); a("s_add_u32 s%d, s%d, s%d" % (sT0, sT0, sWave)); a("s_lshl_b32 s%d, s%d, 6" % (sT0, sT0))
            a("s_add_u32 s%d, s%d, %d" % (sT0, sT0, WS_TS))
            a("v_mov_b32 v%d, 0" % vTmp)
            for i in range(self.nts):
                a("v_writelane_b32 v%d, s%d, %d" % (vTmp, sTS + i, i))
            a("v_writelane_b32 v%d, s%d, 15" % (vTmp, sXcc))
            a("v_lshlrev_b32 v%d, 2, v%d" % (vTmp + 1, vLane))
            a("s_mov_b64 exec, 0xffff")
            a("buffer_store_dword v%d, v%d, s[%d:%d], s%d offen" % (vTmp, vTmp + 1, SRD_WS, SRD_WS + 3, sT0))
            if self.o.get("dbgts"):
                l = self.lab("nodbg")
                a("s_lshl_b32 s%d, s2, 2" % sT0); a("s_add_u32 s%d, s%d, s%d" % (sT0, sT0, sWave)); a("s_cmp_lg_u32 s%d, %d" % (sT0, self.o["dbgts"] - 1)); a("s_cbranch_scc1 %s" % l)
                self.make_srd(SRD_W3, sPDBG, 256)
                a("v_subrev_u32 v%d, s%d, v%d" % (vTmp, sTS, vTmp))
                a("buffer_store_dword v%d, v%d, s[%d:%d], 0 offen" % (vTmp, vTmp + 1, SRD_W3, SRD_W3 + 3))
                a.label(l)
        a("s_waitcnt vmcnt(0)")
        a.label("L_end")
        a("s_endpgm")

    def build(self):
        o = self.o
        self.prologue()
        a = self.a
        if o.get("noq"):
            l = self.lab("nq"); l2 = self.lab("nq2")
            a("s_cmp_lg_u32 s%d, 0" % sWave); a("s_cbranch_scc1 %s" % l)
            for (k, t, h) in self.bulk[:self.early]: self.load_half(k, t, h)
            a.label(l)
            for (k, t, h) in self.bulk[self.early:]: self.load_half(k, t, h)
            a("s_mov_b32 s%d, 0" % sMode); a("v_mov_b32 v%d, 0" % vTagW)
            self.ts(); self.ts()
        else:
            if o.get("prio0"):
                l = self.lab("pr"); a("s_cmp_lg_u32 s%d, 0" % sWave); a("s_cbranch_scc1 %s" % l); a("s_setprio 3"); a.label(l)
            a("s_cmp_lg_u32 s%d, 0" % sWave); a("s_cbranch_scc1 L_helper")
            self.issue_bulk(o.get("w0start", 0))
            self.q_pre()
            self.ln_x()
            self.q_slice()
            self.ts("qpub")
            self.q_wait()
            a("s_branch L_qjoin")
            a.label("L_helper")
            self.helper_startup()
            a.label("L_qjoin")
            self.q_join()
            self.ts("qjoin")
        import tail
        tail.emit(self)
        self.epilogue()
        n = self.a.fix_hazards()
        head = ["; generated by gen.py (hand-written generator) ; hazard nops inserted: %d" % n,
                "; @launch grid=(256,1,1) block=(256,1,1) lds=%d" % LDS_SIZE,
                '.amdgcn_target "amdgcn-amd-amdhsa--gfx950"', ".text", ".globl %s" % NAME, ".p2align 8",
                ".type %s,@function" % NAME, "%s:" % NAME]
        tailtxt = ['.section .rodata,"a"', ".p2align 6", ".amdhsa_kernel %s" % NAME,
                   "  .amdhsa_next_free_vgpr 512", "  .amdhsa_next_free_sgpr 102", "  .amdhsa_accum_offset 256",
                   "  .amdhsa_group_segment_fixed_size 0", "  .amdhsa_kernarg_size 96", "  .amdhsa_user_sgpr_count 2",
                   "  .amdhsa_user_sgpr_kernarg_segment_ptr 1", "  .amdhsa_system_sgpr_workgroup_id_x 1",
                   ".end_amdhsa_kernel"]
        return "\n".join(head) + "\n" + self.a.text() + "\n".join(tailtxt) + "\n"

if __name__ == "__main__":
    import json
    opt = json.loads(sys.argv[1]) if len(sys.argv) > 1 else {}
    g = Gen(**opt)
    print(g.build())
```

```python
from gen import *

def poll_loop(g, name, issue, check, spin, local=False):
    a = g.a
    ok = g.lab(name + "ok")
    lf = g.o.get("localpoll", "nt")
    if local and lf != "sc1":
        lg = g.lab(name + "g"); lp = g.lab(name + "l")
        a("s_cmp_eq_u32 s%d, 0" % sMode); a("s_cbranch_scc1 %s" % lg)
        a("s_mov_b32 s%d, 0" % sCnt)
        a.label(lp)
        issue(lf)
        a("s_waitcnt vmcnt(0)")
        check()
        a("s_cbranch_scc1 %s" % ok)
        a("s_add_u32 s%d, s%d, 1" % (sCnt, sCnt)); a("s_cmp_lt_u32 s%d, %d" % (sCnt, 64)); a("s_cbranch_scc1 %s" % lp)
        a.label(lg)
    lp = g.lab(name)
    a("s_mov_b32 s%d, 0" % sCnt)
    a.label(lp)
    issue("sc1")
    a("s_waitcnt vmcnt(0)")
    check()
    a("s_cbranch_scc1 %s" % ok)
    a("s_add_u32 s%d, s%d, 1" % (sCnt, sCnt)); a("s_cmp_lt_u32 s%d, %d" % (sCnt, spin)); a("s_cbranch_scc1 %s" % lp)
    a("s_branch L_fail")
    a.label(ok)
    tsn = g.o.get("tsn") or []
    if ("cnt_" + name) in tsn:
        i = g.ts_slot(); g.tsnames.setdefault(i, []).append("cnt_" + name)
        a("s_add_u32 s%d, s%d, 1" % (sTS + i, sCnt))

def chk_acc(g, regs, t0, t1, t2):
    a = g.a
    first = True
    for d in regs:
        a("v_perm_b32 v%d, v%d, v%d, s%d" % (t0, d + 1, d, sChkA))
        a("v_perm_b32 v%d, v%d, v%d, s%d" % (t1, d + 3, d + 2, sChkB))
        if first:
            a("v_or_b32 v%d, v%d, v%d" % (t2, t0, t1)); a("v_xor_b32 v%d, v%d, v%d" % (t2, t2, vTagW)); first = False
        else:
            a("v_or_b32 v%d, v%d, v%d" % (t0, t0, t1)); a("v_xor_b32 v%d, v%d, v%d" % (t0, t0, vTagW)); a("v_or_b32 v%d, v%d, v%d" % (t2, t2, t0))
    a("v_cmp_ne_u32 vcc, 0, v%d" % t2)
    a("s_cmp_eq_u64 vcc, 0")

def weights_hook(g):
    a = g.a
    W = vVS[2] if g.NS == 3 else vG + 20
    for i in range(8):
        a("buffer_load_dwordx4 v[%d:%d], v%d, s[%d:%d], s%d offen offset:%d nt" % (W + 4 * i, W + 4 * i + 3, vG + 56, SRD_W1, SRD_W1 + 3, sT2 if i >= 4 else sT3, (i & 3) * 1024))
        g.sq.append(("W", 0, i))
    if g.o.get("touch7", True):
        a("buffer_load_dword v%d, v%d, s[%d:%d], 0 offen %s" % (vG + 54, vG + 40, SRD_WS, SRD_WS + 3, g.o.get("touch7flag", "sc1")))
        g.sq.append(("W", 0, 8))


sH1s = 4
sYP  = 8
sE   = 9
sHC  = 10
sYo  = 26
vOA = vG + 32

def weights_setup(g):
    a = g.a
    a("s_lshl_b32 s%d, s%d, 19" % (sT0, sX)); a("s_lshr_b32 s%d, s%d, 1" % (sT1, sJ)); a("s_lshl_b32 s%d, s%d, 15" % (sT1, sT1)); a("s_add_u32 s%d, s%d, s%d" % (sT0, sT0, sT1))
    a("s_and_b32 s%d, s%d, 1" % (sT1, sJ)); a("s_lshl_b32 s%d, s%d, 9" % (sT1, sT1)); a("s_add_u32 s%d, s%d, s%d" % (sT0, sT0, sT1))
    a("s_sub_u32 s%d, 0x8000, s%d" % (sT2, sT1))
    a("s_cmp_lt_u32 s%d, %d" % (sWave, 0 if g.o.get("nowo") else 2)); a("s_cselect_b32 s%d, s%d, 0" % (sT1, sT2))
    g.make_srd(SRD_W1, sPWO, 0, off_sreg=sT0)
    a("s_mov_b32 s%d, s%d" % (SRD_W1 + 2, sT1))
    a("v_lshrrev_b32 v%d, 4, v%d" % (vTmp, vLane)); a("v_lshlrev_b32 v%d, 13, v%d" % (vG + 56, vTmp))
    a("v_and_b32 v%d, 15, v%d" % (vTmp, vLane)); a("v_lshl_add_u32 v%d, v%d, 4, v%d" % (vG + 56, vTmp, vG + 56))
    a("s_and_b32 s%d, s%d, 1" % (sT0, sWave)); a("s_lshl_b32 s%d, s%d, 8" % (sT0, sT0)); a("v_add_u32 v%d, s%d, v%d" % (vG + 56, sT0, vG + 56))

def o_pre(g):
    a = g.a
    t0, t1 = vTmp, vTmp + 1
    a("v_lshrrev_b32 v%d, 3, v%d" % (t0, vLane))
    a("v_lshlrev_b32 v%d, 11, v%d" % (vOA, t0)); a("v_and_b32 v%d, 7, v%d" % (t1, vLane)); a("v_lshl_add_u32 v%d, v%d, 4, v%d" % (vOA, t1, vOA))
    a("v_lshlrev_b32 v%d, 7, v%d" % (vOA + 1, t0))
    a("v_lshrrev_b32 v%d, 4, v%d" % (t0, vLane)); a("v_lshlrev_b32 v%d, 4, v%d" % (vOA + 2, t0)); a("v_lshl_add_u32 v%d, v%d, 1, v%d" % (vOA + 2, t1, vOA + 2))
    a("s_and_b32 s%d, s%d, 1" % (sT0, sWave)); a("s_lshl_b32 s%d, s%d, 6" % (sT0, sT0)); a("v_add_u32 v%d, s%d, v%d" % (vOA + 2, sT0, vOA + 2))
    a("v_bfe_u32 v%d, v%d, 2, 1" % (t1, vLane)); a("v_lshlrev_b32 v%d, 6, v%d" % (t1, t1)); a("v_lshl_add_u32 v%d, v%d, 4, v%d" % (vOA + 3, t0, t1))
    a("v_and_b32 v%d, 15, v%d" % (t1, vLane)); a("v_lshlrev_b32 v%d, 12, v%d" % (vOA + 5, t0)); a("v_lshl_add_u32 v%d, v%d, 4, v%d" % (vOA + 5, t1, vOA + 5))
    a("v_lshlrev_b32 v%d, 2, v%d" % (vOA + 6, t0)); a("v_lshl_add_u32 v%d, v%d, 4, v%d" % (vOA + 6, t1, vOA + 6))
    a("v_or_b32 v%d, 0x07060500, v%d" % (vOA + 7, t0))
    a("v_lshlrev_b32 v%d, 6, v%d" % (vOA + 4, t1))
    a("v_bfe_u32 v%d, v%d, 5, 1" % (t1, vLane)); a("v_lshl_add_u32 v%d, v%d, 5, v%d" % (vOA + 4, t1, vOA + 4))
    a("v_bfe_u32 v%d, v%d, 4, 1" % (t1, vLane)); a("v_lshl_add_u32 v%d, v%d, 4, v%d" % (vOA + 4, t1, vOA + 4))
    a("s_and_b32 s%d, s%d, 1" % (sT0, sJ)); a("s_lshl_b32 s%d, s%d, 1" % (sT0, sT0)); a("s_and_b32 s%d, s%d, 1" % (sT1, sWave)); a("s_add_u32 s%d, s%d, s%d" % (sT0, sT0, sT1))
    a("s_lshl_b32 s%d, s%d, 10" % (sT0, sT0)); a("v_add_u32 v%d, s%d, v%d" % (vOA + 4, sT0, vOA + 4))
    a("s_lshr_b32 s%d, s%d, 1" % (sT3, sJ))
    a("s_lshl_b32 s%d, s%d, 4" % (sYP, sX)); a("s_add_u32 s%d, s%d, s%d" % (sYP, sYP, sT3)); a("s_lshl_b32 s%d, s%d, 12" % (sYP, sYP)); a("s_add_u32 s%d, s%d, %d" % (sYP, sYP, WS_YP))
    a("s_lshl_b32 s%d, s%d, 5" % (sT0, sX)); a("s_and_b32 s%d, s%d, 1" % (sT1, sWave)); a("s_lshl_b32 s%d, s%d, 4" % (sT1, sT1)); a("s_add_u32 s%d, s%d, s%d" % (sT0, sT0, sT1))
    a("s_lshl_b32 s%d, s%d, 11" % (sT1, sT0)); a("s_lshl_b32 s%d, s%d, 7" % (sT2, sT3)); a("s_add_u32 s%d, s%d, s%d" % (sT1, sT1, sT2))
    a("s_add_u32 s%d, s%d, %d" % (sH1s, sT1, WS_PO)); a("s_add_u32 s%d, s%d, %d" % (sH1s + 1, sH1s, 8 * 2048))
    a("s_lshl_b32 s%d, s%d, 7" % (sT2, sT0)); a("s_lshr_b32 s%d, s%d, 2" % (sT3, sT3)); a("s_lshl_b32 s%d, s%d, 4" % (sT3, sT3)); a("s_add_u32 s%d, s%d, s%d" % (sT2, sT2, sT3))
    a("s_add_u32 s%d, s%d, %d" % (sH1s + 2, sT2, WS_PML)); a("s_add_u32 s%d, s%d, %d" % (sH1s + 3, sH1s + 2, 8 * 128))
    a("s_lshr_b32 s%d, s%d, 1" % (sT0, sX)); a("s_and_b32 s%d, s%d, 1" % (sT1, sX)); a("s_cmp_eq_u32 s%d, 0" % sT1); a("s_cselect_b32 s%d, 28, 32" % sT1)
    a("s_mul_i32 s%d, s%d, s%d" % (sE, sT0, sT1)); a("s_add_u32 s%d, s%d, s%d" % (sE, sE, sJ))
    a("s_sub_u32 s%d, s%d, 28" % (sT1, sJ)); a("s_lshl_b32 s%d, s%d, 2" % (sT1, sT1)); a("s_add_u32 s%d, s%d, s%d" % (sT1, sT1, sWave)); a("s_and_b32 s%d, s%d, 15" % (sT1, sT1))
    a("s_lshl_b32 s%d, s%d, 8" % (sT1, sT1))
    a("s_lshl_b32 s%d, s%d, 16" % (sT0, sX)); a("s_add_u32 s%d, s%d, s%d" % (sT0, sT0, sT1))
    a("s_add_u32 s%d, s%d, %d" % (sHC, sT0, WS_YP))
    for u in range(1, 4): a("s_add_u32 s%d, s%d, %d" % (sHC + u, sHC, u * 4 * 4096))
    a("s_lshl_b32 s%d, s%d, 12" % (sT0, sX)); a("s_add_u32 s%d, s%d, s%d" % (sT0, sT0, sT1)); a("s_add_u32 s%d, s%d, %d" % (sYo, sT0, WS_Y))
    if g.o.get("touch7", True):
        T = vOA + 8
        a("v_and_b32 v%d, 15, v%d" % (t0, vLane))
        a("v_lshlrev_b32 v%d, 11, v%d" % (t1, t0)); a("v_add_u32 v%d, s%d, v%d" % (t1, sH1s, t1))
        a("v_lshlrev_b32 v%d, 7, v%d" % (T, t0)); a("v_add_u32 v%d, s%d, v%d" % (T, sH1s + 2, T))
        a("s_mov_b32 s%d, 0xffff0000" % sMsk); a("s_mov_b32 s%d, 0" % (sMsk + 1))
        a("v_cndmask_b32 v%d, v%d, v%d, s[%d:%d]" % (T, t1, T, sMsk, sMsk + 1))
        a("s_cmp_lt_u32 s%d, 2" % sWave); a("s_cselect_b32 s%d, 0, 0x7ff00000" % sT0); a("v_add_u32 v%d, s%d, v%d" % (T, sT0, T))
        a("v_bfe_u32 v%d, v%d, 1, 4" % (t0, vLane)); a("v_lshlrev_b32 v%d, 12, v%d" % (t0, t0)); a("v_and_b32 v%d, 1, v%d" % (t1, vLane)); a("v_lshl_add_u32 v%d, v%d, 7, v%d" % (t0, t1, t0))
        a("v_add_u32 v%d, s%d, v%d" % (t0, sHC, t0))
        a("s_cmp_ge_u32 s%d, 28" % sJ); a("s_cselect_b32 s%d, 0, 0x7ff00000" % sT0); a("v_add_u32 v%d, s%d, v%d" % (t0, sT0, t0))
        a("s_mov_b32 s%d, 0" % sMsk); a("s_mov_b32 s%d, -1" % (sMsk + 1))
        a("v_cndmask_b32 v%d, v%d, v%d, s[%d:%d]" % (T, T, t0, sMsk, sMsk + 1))
    a("s_mov_b32 s%d, 4096" % sT2); a("s_mov_b32 s%d, 0" % sT3)

def pre_store(g):
    a = g.a
    Z = vT
    for e in range(4): a("v_mov_b32 v%d, 0" % (Z + e))
    a("s_cmp_lt_u32 s%d, 2" % sWave); a("s_cselect_b32 s%d, s%d, 0x7ffffff0" % (sT0, sYP))
    a("buffer_store_dwordx4 v[%d:%d], v%d, s[%d:%d], s%d offen" % (Z, Z + 3, vOA + 4, SRD_WS, SRD_WS + 3, sT0))
    a("s_mul_i32 s%d, s%d, 3072" % (sT0, sE)); a("s_mul_i32 s%d, s%d, 768" % (sT1, sWave)); a("s_add_u32 s%d, s%d, s%d" % (sT0, sT0, sT1)); a("s_add_u32 s%d, s%d, %d" % (sT0, sT0, WS_FP))
    a("s_bitcmp1_b32 s%d, 0" % sX); a("s_cselect_b32 s%d, 0x7ffffff0, s%d" % (sT0, sT0)); a("s_cmp_lt_u32 s%d, 28" % sJ); a("s_cselect_b32 s%d, s%d, 0x7ffffff0" % (sT0, sT0))
    a("v_lshlrev_b32 v%d, 4, v%d" % (vTmp, vLane))
    a("s_mov_b32 exec_hi, 0xffff")
    a("buffer_store_dwordx4 v[%d:%d], v%d, s[%d:%d], s%d offen" % (Z, Z + 3, vTmp, SRD_WS, SRD_WS + 3, sT0))
    a("s_mov_b64 exec, -1")
    return 2

def o_stage(g):
    a = g.a; o = g.o; spin = o["spin"]
    W = vVS[2]; WF = vVS[0]
    t0, t1, t2 = vTmp, vTmp + 1, vTmp + 2
    skip = g.lab("h1skip")
    a("s_cmp_ge_u32 s%d, 2" % sWave); a("s_cbranch_scc1 %s" % skip)
    a("s_waitcnt vmcnt(%d)" % (3 if o.get("touch7", True) else 2))
    for p in range(4):
        for j in range(8):
            a("v_perm_b32 v%d, v%d, v%d, s%d" % (WF + 4 * j + p, W + 4 * (2 * p + 1) + (j >> 1), W + 4 * (2 * p) + (j >> 1), sSelHi if j & 1 else sSelLo))
    g.ts("x_o_wo")
    D = vO
    def issue(fl):
        a("buffer_load_dwordx4 v[%d:%d], v%d, s[%d:%d], s%d offen %s" % (D, D + 3, vOA, SRD_WS, SRD_WS + 3, sH1s, fl))
        a("buffer_load_dwordx4 v[%d:%d], v%d, s[%d:%d], s%d offen %s" % (D + 4, D + 7, vOA, SRD_WS, SRD_WS + 3, sH1s + 1, fl))
        a("buffer_load_dwordx4 v[%d:%d], v%d, s[%d:%d], s%d offen %s" % (D + 8, D + 11, vOA + 1, SRD_WS, SRD_WS + 3, sH1s + 2, fl))
        a("buffer_load_dwordx4 v[%d:%d], v%d, s[%d:%d], s%d offen %s" % (D + 12, D + 15, vOA + 1, SRD_WS, SRD_WS + 3, sH1s + 3, fl))
    poll_loop(g, "h1", issue, lambda: chk_acc(g, [D, D + 4, D + 8, D + 12], t0, t1, t2), spin, local=True)
    g.ts("o_h1")
    Ma, La, Mb, Lb = D + 8, D + 9, D + 12, D + 13
    a("v_and_b32 v%d, 0xffffff00, v%d" % (Ma, Ma)); a("v_and_b32 v%d, 0xffffff00, v%d" % (Mb, Mb))
    MX = D + 10
    a("v_max_f32 v%d, v%d, v%d" % (MX, Ma, Mb))
    a("v_max_f32_dpp v%d, v%d, v%d row_ror:8 row_mask:0xf bank_mask:0xf" % (MX, MX, MX))
    g.allred_x16("v_max_f32", MX, t0); g.allred_x32("v_max_f32", MX, t0)
    a("v_sub_f32 v%d, v%d, v%d" % (Ma, Ma, MX)); a("v_sub_f32 v%d, v%d, v%d" % (Mb, Mb, MX))
    a("v_mul_f32 v%d, s%d, v%d" % (Ma, sLog2e, Ma)); a("v_mul_f32 v%d, s%d, v%d" % (Mb, sLog2e, Mb))
    a("v_exp_f32 v%d, v%d" % (Ma, Ma)); a("v_exp_f32 v%d, v%d" % (Mb, Mb))
    R = vO + 20
    a("v_mul_f32 v%d, v%d, v%d" % (R + 4, Ma, La))
    for e in range(4): a("v_mul_f32 v%d, v%d, v%d" % (R + e, Ma, D + e))
    a("v_fmac_f32 v%d, v%d, v%d" % (R + 4, Mb, Lb))
    for e in range(4): a("v_fmac_f32 v%d, v%d, v%d" % (R + e, Mb, D + 4 + e))
    a("v_add_f32_dpp v%d, v%d, v%d row_ror:8 row_mask:0xf bank_mask:0xf" % (R + 4, R + 4, R + 4))
    for e in range(4): a("v_add_f32_dpp v%d, v%d, v%d row_ror:8 row_mask:0xf bank_mask:0xf" % (R + e, R + e, R + e))
    a("v_mov_b32 v%d, v%d" % (t0, R + 4))
    a("v_permlane16_swap_b32 v%d, v%d" % (R, R + 1)); a("v_permlane16_swap_b32 v%d, v%d" % (R + 2, R + 3))
    a("v_permlane16_swap_b32 v%d, v%d" % (R + 4, t0))
    a("v_add_f32 v%d, v%d, v%d" % (R, R, R + 1)); a("v_add_f32 v%d, v%d, v%d" % (R + 2, R + 2, R + 3)); a("v_add_f32 v%d, v%d, v%d" % (R + 4, R + 4, t0))
    a("v_mov_b32 v%d, v%d" % (t0, R + 4))
    a("v_permlane32_swap_b32 v%d, v%d" % (R, R + 2)); a("v_permlane32_swap_b32 v%d, v%d" % (R + 4, t0))
    a("v_add_f32 v%d, v%d, v%d" % (R + 4, R + 4, t0)); a("v_add_f32 v%d, v%d, v%d" % (R, R, R + 2))
    a("v_rcp_f32 v%d, v%d" % (t0, R + 4))
    a("v_fma_f32 v%d, -v%d, v%d, 1.0" % (t1, R + 4, t0)); a("v_fma_f32 v%d, v%d, v%d, v%d" % (t0, t1, t0, t0))
    a("v_mul_f32 v%d, v%d, v%d" % (R, R, t0)); a("v_cvt_pk_bf16_f32 v%d, v%d, v%d" % (R, R, R))
    a("ds_write_b16 v%d, v%d offset:%d" % (vOA + 2, R, L_OA))
    a("s_mov_b32 s%d, 0" % sMsk); a("s_mov_b32 s%d, -1" % (sMsk + 1))
    a("s_waitcnt lgkmcnt(0)")
    g.ts("x_o_math")
    a("s_barrier")
    AF = vS
    a("ds_read_b128 v[%d:%d], v%d offset:%d" % (AF, AF + 3, vOA + 3, L_OA))
    a("s_waitcnt lgkmcnt(0)")
    YD = vO
    for j in range(8):
        a("v_mfma_f32_16x16x32_bf16 v[%d:%d], v[%d:%d], v[%d:%d], 0" % (YD + 4 * j, YD + 4 * j + 3, AF, AF + 3, WF + 4 * j, WF + 4 * j + 3))
    G = vS + 4
    for e in range(4): a("v_cndmask_b32 v%d, v%d, v%d, s[%d:%d]" % (G + e, YD + 4 * e, YD + 4 * (4 + e), sMsk, sMsk + 1))
    g.tag4(G + 4, [G, G + 1, G + 2, G + 3])
    g.by_mode(lambda fl: a("buffer_store_dwordx4 v[%d:%d], v%d, s[%d:%d], s%d offen %s" % (G + 4, G + 7, vOA + 4, SRD_WS, SRD_WS + 3, sYP, fl)))
    g.ts("o_yp")
    join = g.lab("ojoin")
    a("s_branch %s" % join)
    a.label(skip)
    a("s_barrier")
    a.label(join)
    a("s_barrier")

def h1c_role(g):
    a = g.a; o = g.o; spin = o["spin"]
    t0, t1, t2 = vTmp, vTmp + 1, vTmp + 2
    D = vO
    def issue2(fl):
        for u in range(4):
            a("buffer_load_dwordx4 v[%d:%d], v%d, s[%d:%d], s%d offen %s" % (D + 4 * u, D + 4 * u + 3, vOA + 5, SRD_WS, SRD_WS + 3, sHC + u, fl))
    g.ts("x_o_h1c0")
    poll_loop(g, "h1c", issue2, lambda: chk_acc(g, [D, D + 4, D + 8, D + 12], t0, t1, t2), spin, local=True)
    g.ts("o_h1c")
    for e in (0, 2):
        a("v_pk_add_f32 v[%d:%d], v[%d:%d], v[%d:%d]" % (D + e, D + e + 1, D + e, D + e + 1, D + 4 + e, D + 5 + e))
        a("v_pk_add_f32 v[%d:%d], v[%d:%d], v[%d:%d]" % (D + 8 + e, D + 9 + e, D + 8 + e, D + 9 + e, D + 12 + e, D + 13 + e))
    for e in (0, 2):
        a("v_pk_add_f32 v[%d:%d], v[%d:%d], v[%d:%d]" % (D + e, D + e + 1, D + e, D + e + 1, D + 8 + e, D + 9 + e))
    a("v_permlane16_swap_b32 v%d, v%d" % (D, D + 1)); a("v_permlane16_swap_b32 v%d, v%d" % (D + 2, D + 3))
    a("v_add_f32 v%d, v%d, v%d" % (D, D, D + 1)); a("v_add_f32 v%d, v%d, v%d" % (D + 2, D + 2, D + 3))
    a("v_permlane32_swap_b32 v%d, v%d" % (D, D + 2))
    a("v_add_f32 v%d, v%d, v%d" % (D, D, D + 2))
    a("v_perm_b32 v%d, v%d, v%d, v%d" % (D, D, vTagW, vOA + 7))
    a("buffer_store_dword v%d, v%d, s[%d:%d], s%d offen sc1" % (D, vOA + 6, SRD_WS, SRD_WS + 3, sYo))
    g.ts("o_y")

def final_role(g):
    a = g.a; o = g.o; spin = o["spin"]
    t0, t1, t2 = vTmp, vTmp + 1, vTmp + 2
    a("s_cmp_lg_u32 s%d, 0" % sWave); a("s_cbranch_scc1 L_done")
    XR = vT
    a("v_and_b32 v%d, 1, v%d" % (t0, vLane)); a("v_lshlrev_b32 v%d, 10, v%d" % (vT + 2, t0))
    a("s_lshl_b32 s%d, s%d, 3" % (sT0, sE))
    a("buffer_load_dwordx2 v[%d:%d], v%d, s[%d:%d], s%d offen" % (XR, XR + 1, vT + 2, SRD_X, SRD_X + 3, sT0))
    AY, AO3, AO4 = vT + 3, vT + 4, vT + 5
    a("v_bfe_u32 v%d, v%d, 1, 3" % (t1, vLane)); a("v_lshlrev_b32 v%d, 12, v%d" % (t1, t1)); a("v_lshl_add_u32 v%d, v%d, 4, v%d" % (AY, t0, t1))
    a("v_lshrrev_b32 v%d, 1, v%d" % (t1, vLane)); a("v_lshlrev_b32 v%d, 12, v%d" % (t1, t1)); a("v_lshl_add_u32 v%d, v%d, 4, v%d" % (AO3, t0, t1))
    a("s_mov_b32 s%d, 0" % sMsk); a("s_mov_b32 s%d, -1" % (sMsk + 1))
    a("v_add_u32 v%d, %d, v%d" % (AO4, 96 * 4096, AO3)); a("v_subrev_u32 v%d, %d, v%d" % (t1, 16 * 4096, AO3))
    a("v_cndmask_b32 v%d, v%d, v%d, s[%d:%d]" % (AO4, AO4, t1, sMsk, sMsk + 1))
    a("s_lshl_b32 s%d, s%d, 5" % (sT0, sE)); a("s_add_u32 s%d, s%d, %d" % (sH1s, sT0, WS_Y))
    a("s_add_u32 s%d, s%d, %d" % (sH1s + 1, sT0, WS_OP))
    a("s_add_u32 s%d, s%d, %d" % (sH1s + 2, sH1s + 1, 32 * 4096)); a("s_add_u32 s%d, s%d, %d" % (sH1s + 3, sH1s + 1, 64 * 4096))
    g.make_srd(SRD_W2, sPOUT, 2048)
    a("s_lshl_b32 s%d, s%d, 3" % (sYP, sE))
    D = vO + 4
    def issue3(fl):
        a("buffer_load_dwordx4 v[%d:%d], v%d, s[%d:%d], s%d offen sc1" % (D, D + 3, AY, SRD_WS, SRD_WS + 3, sH1s))
    poll_loop(g, "hy", issue3, lambda: chk_acc(g, [D], t0, t1, t2), spin)
    for sh in (8, 4, 2):
        for e in range(4): a("v_add_f32_dpp v%d, v%d, v%d row_ror:%d row_mask:0xf bank_mask:0xf" % (D + e, D + e, D + e, sh))
    H = vO + 12
    a("v_cvt_pk_bf16_f32 v%d, v%d, v%d" % (D + 4, D, D + 1)); a("v_cvt_pk_bf16_f32 v%d, v%d, v%d" % (D + 5, D + 2, D + 3))
    for p in range(2):
        a("v_lshlrev_b32 v%d, 16, v%d" % (D + 2 * p, D + 4 + p)); a("v_and_b32 v%d, 0xffff0000, v%d" % (D + 2 * p + 1, D + 4 + p))
        a("v_lshlrev_b32 v%d, 16, v%d" % (H + 2 * p, XR + p)); a("v_and_b32 v%d, 0xffff0000, v%d" % (H + 2 * p + 1, XR + p))
    for e in range(4): a("v_add_f32 v%d, v%d, v%d" % (H + e, H + e, D + e))
    a("v_cvt_pk_bf16_f32 v%d, v%d, v%d" % (D + 4, H, H + 1)); a("v_cvt_pk_bf16_f32 v%d, v%d, v%d" % (D + 5, H + 2, H + 3))
    for p in range(2):
        a("v_lshlrev_b32 v%d, 16, v%d" % (H + 2 * p, D + 4 + p)); a("v_and_b32 v%d, 0xffff0000, v%d" % (H + 2 * p + 1, D + 4 + p))
    HS, AOUT = vO + 10, vO + 11
    a("v_lshrrev_b32 v%d, 4, v%d" % (t0, vLane))
    a("v_cmp_eq_u32 vcc, 1, v%d" % t0); a("v_cndmask_b32 v%d, v%d, v%d, vcc" % (HS, H, H + 1))
    a("v_cmp_eq_u32 vcc, 2, v%d" % t0); a("v_cndmask_b32 v%d, v%d, v%d, vcc" % (HS, HS, H + 2))
    a("v_cmp_eq_u32 vcc, 3, v%d" % t0); a("v_cndmask_b32 v%d, v%d, v%d, vcc" % (HS, HS, H + 3))
    a("v_lshl_add_u32 v%d, v%d, 1, v%d" % (AOUT, t0, vT + 2))
    D = vO + 16
    def issue4(fl):
        for u in range(4):
            a("buffer_load_dwordx4 v[%d:%d], v%d, s[%d:%d], s%d offen sc1" % (D + 4 * u, D + 4 * u + 3, AO4 if u == 3 else AO3, SRD_WS, SRD_WS + 3, sH1s + 1 + (0 if u == 3 else u)))
    g.ts("x_o_hy")
    poll_loop(g, "h3", issue4, lambda: chk_acc(g, [D, D + 4, D + 8, D + 12], t0, t1, t2), spin)
    g.ts("o_h3")
    for e in range(4): a("v_cndmask_b32 v%d, v%d, 0, s[%d:%d]" % (D + 12 + e, D + 12 + e, sMsk, sMsk + 1))
    for e in (0, 2):
        a("v_pk_add_f32 v[%d:%d], v[%d:%d], v[%d:%d]" % (D + e, D + e + 1, D + e, D + e + 1, D + 4 + e, D + 5 + e))
        a("v_pk_add_f32 v[%d:%d], v[%d:%d], v[%d:%d]" % (D + 8 + e, D + 9 + e, D + 8 + e, D + 9 + e, D + 12 + e, D + 13 + e))
    for e in (0, 2):
        a("v_pk_add_f32 v[%d:%d], v[%d:%d], v[%d:%d]" % (D + e, D + e + 1, D + e, D + e + 1, D + 8 + e, D + 9 + e))
    a("v_permlane16_swap_b32 v%d, v%d" % (D, D + 1)); a("v_permlane16_swap_b32 v%d, v%d" % (D + 2, D + 3))
    a("v_add_f32 v%d, v%d, v%d" % (D, D, D + 1)); a("v_add_f32 v%d, v%d, v%d" % (D + 2, D + 2, D + 3))
    a("v_permlane32_swap_b32 v%d, v%d" % (D, D + 2))
    a("v_add_f32 v%d, v%d, v%d" % (D, D, D + 2))
    for sh in (8, 4, 2): a("v_add_f32_dpp v%d, v%d, v%d row_ror:%d row_mask:0xf bank_mask:0xf" % (D, D, D, sh))
    a("v_mov_b32 v%d, v%d" % (D + 1, HS))
    a("v_cvt_pk_bf16_f32 v%d, v%d, v%d" % (D, D, D)); a("v_lshlrev_b32 v%d, 16, v%d" % (D, D))
    a("v_add_f32 v%d, v%d, v%d" % (D, D, D + 1)); a("v_cvt_pk_bf16_f32 v%d, v%d, v%d" % (D, D, D))
    a("s_mov_b32 exec_lo, 0x00030003"); a("s_mov_b32 exec_hi, 0x00030003")
    a("buffer_store_short v%d, v%d, s[%d:%d], s%d offen" % (D, AOUT, SRD_W2, SRD_W2 + 3, sYP))
    a("s_cmp_lg_u32 s%d, 0" % sE); a("s_cbranch_scc1 L_done")
    a("s_mov_b64 exec, 1")
    a("v_mov_b32 v%d, s%d" % (t0, sEp1)); a("v_mov_b32 v%d, 0" % t1)
    a("buffer_store_dword v%d, v%d, s[%d:%d], 0 offen offset:%d" % (t0, t1, SRD_WS, SRD_WS + 3, WS_EPOCH))
    a("s_branch L_done")

def f_role(g):
    a = g.a; o = g.o; spin = o["spin"]
    t0, t1, t2, t3 = vTmp, vTmp + 1, vTmp + 2, vTmp + 3
    a("s_mov_b32 s%d, s%d" % (sSave, sE))
    a("s_and_b32 s%d, s%d, 3" % (sSave + 1, sSave))
    a("s_lshr_b32 s%d, s%d, 2" % (sT0, sSave)); a("s_lshl_b32 s%d, s%d, 7" % (sT0, sT0))
    a("s_mul_i32 s%d, s%d, %d" % (sT1, sSave + 1, 128 * 3584)); a("s_add_u32 s%d, s%d, s%d" % (sT0, sT0, sT1))
    g.make_srd(SRD_W1, sPG, 0, off_sreg=sT0); a("s_sub_u32 s%d, %d, s%d" % (SRD_W1 + 2, 512 * 3584, sT0))
    g.make_srd(SRD_W2, sPU, 0, off_sreg=sT0); a("s_sub_u32 s%d, %d, s%d" % (SRD_W2 + 2, 512 * 3584, sT0))
    a("s_lshl_b32 s%d, s%d, 14" % (sT0, sSave))
    g.make_srd(SRD_W3, sPD, 16384, off_sreg=sT0)
    a("v_lshrrev_b32 v%d, 3, v%d" % (t0, vLane)); a("s_lshl_b32 s%d, s%d, 5" % (sT0, sWave)); a("v_add_u32 v%d, s%d, v%d" % (t0, sT0, t0))
    a("s_movk_i32 s%d, 3584" % sT1); a("v_mul_lo_u32 v%d, v%d, s%d" % (t0, t0, sT1))
    a("v_and_b32 v%d, 7, v%d" % (t1, vLane)); a("v_lshl_add_u32 v%d, v%d, 4, v%d" % (t0, t1, t0))
    a("s_lshl_b32 s%d, s%d, 12" % (sT0, sWave))
    for mat, srd, img in ((0, SRD_W1, L_IMG0), (1, SRD_W2, L_IMG1)):
        for c in range(4):
            a("s_add_u32 m0, s%d, %d" % (sT0, img + c * 1024)); a("s_mov_b32 s%d, %d" % (sT1, c * 8 * 3584))
            a("buffer_load_dwordx4 v%d, s[%d:%d], s%d offen nt lds" % (t0, srd, srd + 3, sT1))
    DW = vVS[2]
    a("v_lshrrev_b32 v%d, 4, v%d" % (t1, vLane)); a("v_lshlrev_b32 v%d, 12, v%d" % (t1, t1))
    a("v_and_b32 v%d, 15, v%d" % (t2, vLane)); a("v_lshl_add_u32 v%d, v%d, 4, v%d" % (t1, t2, t1))
    a("s_lshl_b32 s%d, s%d, 8" % (sT0, sWave)); a("v_add_u32 v%d, s%d, v%d" % (t1, sT0, t1))
    for i in range(4):
        a("buffer_load_dwordx4 v[%d:%d], v%d, s[%d:%d], 0 offen offset:%d nt" % (DW + 4 * i, DW + 4 * i + 3, t1, SRD_W3, SRD_W3 + 3, i * 1024))
    g.ts("x_f_iss")
    if o.get("fptouch", True):
        a("s_and_b32 s%d, s%d, 0xfffffffc" % (sT0, sSave)); a("s_mul_i32 s%d, s%d, 3072" % (sT0, sT0))
        a("s_mul_i32 s%d, s%d, 768" % (sT1, sSave + 1)); a("s_add_u32 s%d, s%d, s%d" % (sT0, sT0, sT1)); a("s_add_u32 s%d, s%d, %d" % (sT0, sT0, WS_FP))
        a("v_lshrrev_b32 v%d, 3, v%d" % (t1, vLane)); a("v_min_u32 v%d, 3, v%d" % (t1, t1)); a("v_mul_u32_u24 v%d, 3072, v%d" % (t1, t1))
        a("v_and_b32 v%d, 7, v%d" % (t2, vLane)); a("v_min_u32 v%d, 5, v%d" % (t2, t2)); a("v_lshl_add_u32 v%d, v%d, 7, v%d" % (t1, t2, t1))
        a("buffer_load_dword v%d, v%d, s[%d:%d], s%d offen" % (vG + 54, t1, SRD_WS, SRD_WS + 3, sT0))
    XR = vT
    a("v_lshrrev_b32 v%d, 5, v%d" % (t1, vLane)); a("v_lshlrev_b32 v%d, 10, v%d" % (t1, t1)); a("v_and_b32 v%d, 31, v%d" % (t2, vLane)); a("v_lshl_add_u32 v%d, v%d, 3, v%d" % (t1, t2, t1))
    a("s_lshl_b32 s%d, s%d, 8" % (sT0, sSave + 1))
    a("buffer_load_dwordx2 v[%d:%d], v%d, s[%d:%d], s%d offen" % (XR, XR + 1, t1, SRD_X, SRD_X + 3, sT0))
    AY = vG
    a("v_lshrrev_b32 v%d, 5, v%d" % (t1, vLane)); a("v_lshlrev_b32 v%d, 4, v%d" % (t1, t1)); a("v_lshl_add_u32 v%d, v%d, 5, v%d" % (AY, t2, t1))
    a("s_lshl_b32 s%d, s%d, 10" % (sT0, sSave + 1)); a("v_add_u32 v%d, s%d, v%d" % (AY, sT0, AY))
    AP = vG + 5
    a("s_lshl_b32 s%d, s%d, 10" % (sT0, sWave)); a("v_lshl_add_u32 v%d, v%d, 4, s%d" % (AP, vLane, sT0))
    AL = vG + 6
    a("v_lshlrev_b32 v%d, 4, v%d" % (AL, vLane))
    TR = vG + 1
    a("v_lshrrev_b32 v%d, 4, v%d" % (t1, vLane)); a("v_bfe_u32 v%d, v%d, 2, 2" % (t2, vLane)); a("v_lshl_add_u32 v%d, v%d, 3, v%d" % (t2, t1, t2))
    a("v_lshlrev_b32 v%d, 7, v%d" % (t2, t2)); a("v_and_b32 v%d, 3, v%d" % (t3, vLane)); a("v_lshl_add_u32 v%d, v%d, 3, v%d" % (TR, t3, t2))
    a("s_lshl_b32 s%d, s%d, 5" % (sT0, sWave)); a("v_add_u32 v%d, s%d, v%d" % (TR, sT0, TR))
    AW = vG + 3; AH = vG + 2
    a("s_lshl_b32 s%d, s%d, 9" % (sT0, sWave))
    a("v_lshrrev_b32 v%d, 5, v%d" % (t2, vLane)); a("v_lshlrev_b32 v%d, 8, v%d" % (t2, t2)); a("v_and_b32 v%d, 31, v%d" % (t3, vLane)); a("v_lshl_add_u32 v%d, v%d, 3, v%d" % (AW, t3, t2))
    a("v_add_u32 v%d, s%d, v%d" % (AW, sT0, AW))
    a("v_bfe_u32 v%d, v%d, 2, 1" % (t2, vLane)); a("v_lshlrev_b32 v%d, 8, v%d" % (t2, t2)); a("v_lshl_add_u32 v%d, v%d, 4, v%d" % (AH, t1, t2))
    a("v_add_u32 v%d, s%d, v%d" % (AH, sT0, AH))
    AS = vG + 4
    a("v_and_b32 v%d, 15, v%d" % (AS, vLane)); a("v_lshlrev_b32 v%d, 6, v%d" % (AS, AS))
    a("v_bfe_u32 v%d, v%d, 5, 1" % (t2, vLane)); a("v_lshl_add_u32 v%d, v%d, 5, v%d" % (AS, t2, AS))
    a("v_bfe_u32 v%d, v%d, 4, 1" % (t2, vLane)); a("v_lshl_add_u32 v%d, v%d, 4, v%d" % (AS, t2, AS))
    a("s_lshl_b32 s%d, s%d, 10" % (sT0, sWave)); a("v_add_u32 v%d, s%d, v%d" % (AS, sT0, AS))
    AG = vG + 7
    a("v_lshrrev_b32 v%d, 4, v%d" % (t2, vLane)); a("v_min_u32 v%d, 2, v%d" % (t2, t2)); a("v_lshlrev_b32 v%d, 8, v%d" % (t2, t2))
    a("v_and_b32 v%d, 15, v%d" % (t3, vLane)); a("v_lshl_add_u32 v%d, v%d, 4, v%d" % (AG, t3, t2))
    a("s_waitcnt vmcnt(0)")
    a("s_barrier")
    BG = vVS[0]
    for mat, img in ((0, L_IMG0), (1, L_IMG1)):
        if mat: a("s_waitcnt lgkmcnt(4)")
        for t in range(4):
            b = BG + 16 * mat + 4 * t
            a("ds_read_b64_tr_b16 v[%d:%d], v%d offset:%d" % (b, b + 1, TR, img + t * 4096))
            a("ds_read_b64_tr_b16 v[%d:%d], v%d offset:%d" % (b + 2, b + 3, TR, img + t * 4096 + 512))
    DF = vVS[1]
    for j in range(8):
        for p in range(2):
            a("v_perm_b32 v%d, v%d, v%d, s%d" % (DF + 2 * j + p, DW + 4 * (2 * p + 1) + (j >> 1), DW + 4 * (2 * p) + (j >> 1), sSelHi if j & 1 else sSelLo))
    XF = vT + 2
    for p in range(2):
        a("v_lshlrev_b32 v%d, 16, v%d" % (XF + 2 * p, XR + p)); a("v_and_b32 v%d, 0xffff0000, v%d" % (XF + 2 * p + 1, XR + p))
    a("s_lshl_b32 s%d, s%d, 13" % (sT2, sWave)); a("s_add_u32 s%d, s%d, %d" % (sT2, sT2, WS_Y)); a("s_add_u32 s%d, s%d, 4096" % (sT3, sT2))
    a("s_waitcnt lgkmcnt(0)")
    g.ts("f_w")
    D = vO
    def issue(fl):
        a("buffer_load_dwordx4 v[%d:%d], v%d, s[%d:%d], s%d offen sc1" % (D, D + 3, AY, SRD_WS, SRD_WS + 3, sT2))
        a("buffer_load_dwordx4 v[%d:%d], v%d, s[%d:%d], s%d offen sc1" % (D + 4, D + 7, AY, SRD_WS, SRD_WS + 3, sT3))
    poll_loop(g, "h2", issue, lambda: chk_acc(g, [D, D + 4], t0, t1, t2), spin)
    g.ts("f_h2")
    for e in (0, 2): a("v_pk_add_f32 v[%d:%d], v[%d:%d], v[%d:%d]" % (D + e, D + e + 1, D + e, D + e + 1, D + 4 + e, D + 5 + e))
    a("ds_write_b128 v%d, v[%d:%d] offset:%d" % (AP, D, D + 3, L_CO))
    a("s_waitcnt lgkmcnt(0)")
    a("s_barrier")
    g.ts("x_f_b1")
    for w in range(4): a("ds_read_b128 v[%d:%d], v%d offset:%d" % (D + 4 * w, D + 4 * w + 3, AL, L_CO + 1024 * w))
    a("s_waitcnt lgkmcnt(2)")
    for e in (0, 2): a("v_pk_add_f32 v[%d:%d], v[%d:%d], v[%d:%d]" % (D + e, D + e + 1, D + e, D + e + 1, D + 4 + e, D + 5 + e))
    a("s_waitcnt lgkmcnt(0)")
    for e in (0, 2): a("v_pk_add_f32 v[%d:%d], v[%d:%d], v[%d:%d]" % (D + 8 + e, D + 9 + e, D + 8 + e, D + 9 + e, D + 12 + e, D + 13 + e))
    for e in (0, 2): a("v_pk_add_f32 v[%d:%d], v[%d:%d], v[%d:%d]" % (D + e, D + e + 1, D + e, D + e + 1, D + 8 + e, D + 9 + e))
    H = vO + 8
    a("v_cvt_pk_bf16_f32 v%d, v%d, v%d" % (D + 4, D, D + 1)); a("v_cvt_pk_bf16_f32 v%d, v%d, v%d" % (D + 5, D + 2, D + 3))
    for p in range(2):
        a("v_lshlrev_b32 v%d, 16, v%d" % (D + 2 * p, D + 4 + p)); a("v_and_b32 v%d, 0xffff0000, v%d" % (D + 2 * p + 1, D + 4 + p))
    for e in (0, 2): a("v_pk_add_f32 v[%d:%d], v[%d:%d], v[%d:%d]" % (H + e, H + e + 1, D + e, D + e + 1, XF + e, XF + e + 1))
    a("v_cvt_pk_bf16_f32 v%d, v%d, v%d" % (D + 4, H, H + 1)); a("v_cvt_pk_bf16_f32 v%d, v%d, v%d" % (D + 5, H + 2, H + 3))
    a("ds_write_b64 v%d, v[%d:%d] offset:%d" % (AW, D + 4, D + 5, L_HN))
    for p in range(2):
        a("v_lshlrev_b32 v%d, 16, v%d" % (H + 2 * p, D + 4 + p)); a("v_and_b32 v%d, 0xffff0000, v%d" % (H + 2 * p + 1, D + 4 + p))
    AF = vS
    a("s_waitcnt lgkmcnt(0)")
    for t in range(4): a("ds_read_b128 v[%d:%d], v%d offset:%d" % (AF + 4 * t, AF + 4 * t + 3, AH, L_HN + 64 * t))
    S1, S2 = vO + 12, vO + 13
    a("v_add_f32 v%d, v%d, v%d" % (S1, H, H + 1)); a("v_mul_f32 v%d, v%d, v%d" % (S2, H, H))
    a("v_add_f32 v%d, v%d, v%d" % (D + 2, H + 2, H + 3)); a("v_fmac_f32 v%d, v%d, v%d" % (S2, H + 1, H + 1))
    a("v_add_f32 v%d, v%d, v%d" % (S1, S1, D + 2)); a("v_fmac_f32 v%d, v%d, v%d" % (S2, H + 2, H + 2)); a("v_fmac_f32 v%d, v%d, v%d" % (S2, H + 3, H + 3))
    a("s_mov_b32 s%d, 0xff00ff00" % sMsk); a("s_mov_b32 s%d, 0xff00ff00" % (sMsk + 1))
    a("v_mov_b32 v%d, 0x3f803f80" % t0)
    a("s_waitcnt lgkmcnt(0)")
    for q in range(16): a("v_cndmask_b32 v%d, v%d, v%d, s[%d:%d]" % (AF + q, AF + q, t0, sMsk, sMsk + 1))
    GD, UD = vO, vO + 4
    for t in range(4):
        for mat, dd in ((0, GD), (1, UD)):
            b = BG + 16 * mat + 4 * t
            a("v_mfma_f32_16x16x32_bf16 v[%d:%d], v[%d:%d], v[%d:%d], %s" % (dd, dd + 3, AF + 4 * t, AF + 4 * t + 3, b, b + 3, "0" if t == 0 else "v[%d:%d]" % (dd, dd + 3)))
    for sh in (8, 4, 2, 1):
        a("v_add_f32_dpp v%d, v%d, v%d row_ror:%d row_mask:0xf bank_mask:0xf" % (S1, S1, S1, sh))
        a("v_add_f32_dpp v%d, v%d, v%d row_ror:%d row_mask:0xf bank_mask:0xf" % (S2, S2, S2, sh))
    a("v_mov_b32 v%d, v%d" % (t1, S1)); a("v_mov_b32 v%d, v%d" % (t2, S2))
    a("v_permlane16_swap_b32 v%d, v%d" % (S1, t1)); a("v_permlane16_swap_b32 v%d, v%d" % (S2, t2))
    a("v_add_f32 v%d, v%d, v%d" % (S1, S1, t1)); a("v_add_f32 v%d, v%d, v%d" % (S2, S2, t2))
    a("v_mov_b32 v%d, v%d" % (t1, S1)); a("v_mov_b32 v%d, v%d" % (t2, S2))
    a("v_permlane32_swap_b32 v%d, v%d" % (S1, t1)); a("v_permlane32_swap_b32 v%d, v%d" % (S2, t2))
    a("s_mov_b32 s%d, 0xffff0000" % sMsk); a("s_mov_b32 s%d, 0" % (sMsk + 1))
    G = vS
    a("v_cndmask_b32 v%d, v%d, v%d, s[%d:%d]" % (G + 2, S1, t1, sMsk, sMsk + 1)); a("v_cndmask_b32 v%d, v%d, v%d, s[%d:%d]" % (G + 3, S2, t2, sMsk, sMsk + 1))
    g.tag4(G + 4, [GD, UD, G + 2, G + 3])
    a("s_mul_i32 s%d, s%d, 3072" % (sT0, sSave)); a("s_mul_i32 s%d, s%d, 768" % (sT1, sWave)); a("s_add_u32 s%d, s%d, s%d" % (sT0, sT0, sT1))
    a("s_add_u32 s%d, s%d, %d" % (sT0, sT0, WS_FP))
    a("s_mov_b32 exec_hi, 0xffff")
    g.by_mode(lambda fl: a("buffer_store_dwordx4 v[%d:%d], v%d, s[%d:%d], s%d offen %s" % (G + 4, G + 7, AL, SRD_WS, SRD_WS + 3, sT0, fl)))
    a("s_mov_b64 exec, -1")
    g.ts("x_f_fp")
    a("s_and_b32 s%d, s%d, 0xfffffffc" % (sT0, sSave)); a("s_mul_i32 s%d, s%d, 3072" % (sT0, sT0))
    a("s_mul_i32 s%d, s%d, 768" % (sT1, sSave + 1)); a("s_add_u32 s%d, s%d, s%d" % (sT0, sT0, sT1)); a("s_add_u32 s%d, s%d, %d" % (sT0, sT0, WS_FP))
    for u in range(1, 4): a("s_add_u32 s%d, s%d, %d" % (sT0 + u, sT0, u * 3072))
    D = vO
    def issue2(fl):
        for u in range(4):
            a("buffer_load_dwordx4 v[%d:%d], v%d, s[%d:%d], s%d offen %s" % (D + 4 * u, D + 4 * u + 3, AG, SRD_WS, SRD_WS + 3, sT0 + u, fl))
    poll_loop(g, "hf", issue2, lambda: chk_acc(g, [D + 4 * u for u in range(4)], t0, t1, t2), spin, local=True)
    g.ts("x_f_hf")
    for e in (0, 2):
        a("v_pk_add_f32 v[%d:%d], v[%d:%d], v[%d:%d]" % (D + e, D + e + 1, D + e, D + e + 1, D + 4 + e, D + 5 + e))
        a("v_pk_add_f32 v[%d:%d], v[%d:%d], v[%d:%d]" % (D + 8 + e, D + 9 + e, D + 8 + e, D + 9 + e, D + 12 + e, D + 13 + e))
    for e in (0, 2): a("v_pk_add_f32 v[%d:%d], v[%d:%d], v[%d:%d]" % (D + e, D + e + 1, D + e, D + e + 1, D + 8 + e, D + 9 + e))
    CG, CU = D + 4, D + 5
    a("v_mov_b32 v%d, v%d" % (t0, D)); a("v_mov_b32 v%d, v%d" % (t1, D + 1))
    a("v_permlane32_swap_b32 v%d, v%d" % (t0, CG)); a("v_permlane32_swap_b32 v%d, v%d" % (t1, CU))
    MN, VR = D + 6, D + 7
    a("v_mul_f32 v%d, 0x3b000000, v%d" % (MN, D + 2)); a("v_mul_f32 v%d, 0x3b000000, v%d" % (VR, D + 3))
    a("v_fma_f32 v%d, -v%d, v%d, v%d" % (VR, MN, MN, VR))
    a("v_cvt_pk_bf16_f32 v%d, v%d, v%d" % (t0, MN, VR))
    a("v_lshlrev_b32 v%d, 16, v%d" % (MN, t0)); a("v_and_b32 v%d, 0xffff0000, v%d" % (VR, t0))
    a("v_add_f32 v%d, 0x3727c5ac, v%d" % (VR, VR))
    a("v_cvt_pk_bf16_f32 v%d, v%d, v%d" % (VR, VR, VR)); a("v_lshlrev_b32 v%d, 16, v%d" % (VR, VR))
    a("v_sqrt_f32 v%d, v%d" % (VR, VR))
    a("v_fma_f32 v%d, -v%d, v%d, v%d" % (D, MN, CG, D)); a("v_fma_f32 v%d, -v%d, v%d, v%d" % (D + 1, MN, CU, D + 1))
    a("v_cvt_pk_bf16_f32 v%d, v%d, v%d" % (VR, VR, VR)); a("v_lshlrev_b32 v%d, 16, v%d" % (VR, VR))
    a("v_rcp_f32 v%d, v%d" % (VR, VR))
    a("v_mul_f32 v%d, v%d, v%d" % (D, D, VR)); a("v_mul_f32 v%d, v%d, v%d" % (D + 1, D + 1, VR))
    a("v_cvt_pk_bf16_f32 v%d, v%d, v%d" % (t0, D, D + 1))
    a("v_lshlrev_b32 v%d, 16, v%d" % (D, t0)); a("v_and_b32 v%d, 0xffff0000, v%d" % (D + 1, t0))
    a("v_mul_f32 v%d, s%d, v%d" % (t0, sLog2e, D)); a("v_exp_f32 v%d, -v%d" % (t0, t0)); a("v_add_f32 v%d, 1.0, v%d" % (t0, t0)); a("v_rcp_f32 v%d, v%d" % (t0, t0))
    a("v_mul_f32 v%d, v%d, v%d" % (D, D, t0))
    a("v_cvt_pk_bf16_f32 v%d, v%d, v%d" % (t0, D, D)); a("v_lshlrev_b32 v%d, 16, v%d" % (D, t0))
    a("v_mul_f32 v%d, v%d, v%d" % (D, D, D + 1))
    a("v_cvt_pk_bf16_f32 v%d, v%d, v%d" % (D, D, D))
    a("s_lshl_b32 s%d, s%d, 6" % (sT0, sWave)); a("v_lshl_add_u32 v%d, v%d, 1, s%d" % (t0, vLane, sT0))
    a("s_mov_b32 exec_hi, 0")
    a("ds_write_b16 v%d, v%d offset:%d" % (t0, D, L_GU))
    a("s_mov_b64 exec, -1")
    a("v_bfe_u32 v%d, v%d, 2, 1" % (t0, vLane)); a("v_lshlrev_b32 v%d, 5, v%d" % (t0, t0))
    a("v_lshrrev_b32 v%d, 4, v%d" % (t1, vLane)); a("v_lshl_add_u32 v%d, v%d, 3, v%d" % (t0, t1, t0)); a("v_add_u32 v%d, s%d, v%d" % (t0, sT0, t0))
    AC = vS
    a("s_waitcnt lgkmcnt(0)")
    a("ds_read_b64 v[%d:%d], v%d offset:%d" % (AC, AC + 1, t0, L_GU))
    a("s_mov_b32 s%d, 0" % sMsk); a("s_mov_b32 s%d, -1" % (sMsk + 1))
    a("s_lshl_b32 s%d, s%d, 12" % (sT0, sSave)); a("s_add_u32 s%d, s%d, %d" % (sT0, sT0, WS_OP))
    a("s_waitcnt lgkmcnt(0)")
    g.ts("x_f_act")
    YD = vO
    for j in range(8):
        a("v_mfma_f32_16x16x16_bf16 v[%d:%d], v[%d:%d], v[%d:%d], 0" % (YD + 4 * j, YD + 4 * j + 3, AC, AC + 1, DF + 2 * j, DF + 2 * j + 1))
    G = vS + 4
    for e in range(4): a("v_cndmask_b32 v%d, v%d, v%d, s[%d:%d]" % (G + e, YD + 4 * e, YD + 4 * (4 + e), sMsk, sMsk + 1))
    g.tag4(G + 4, [G, G + 1, G + 2, G + 3])
    a("buffer_store_dwordx4 v[%d:%d], v%d, s[%d:%d], s%d offen sc1" % (G + 4, G + 7, AS, SRD_WS, SRD_WS + 3, sT0))
    g.ts("f_op")
    a("s_branch L_done")

def emit(g):
    a = g.a
    weights_setup(g)
    g.comb_pre()
    o_pre(g)
    nextra = 0
    if g.o.get("prestore", False):
        nextra = pre_store(g)
        a("s_mov_b32 s%d, 4096" % sT2); a("s_mov_b32 s%d, 0" % sT3)
    g.stream(weights_hook=lambda: weights_hook(g), touch_hook=None, nextra=nextra)
    g.ts("stream")
    a.label("L_tail0")
    g.wg_combine()
    g.ts("comb")
    if g.o.get("tsn") and "x_ack" in g.o["tsn"]:
        a("s_waitcnt vmcnt(0)"); g.ts("x_ack")
    if g.o.get("stop") == "p": return
    o_stage(g)
    l = g.lab("noh1c")
    a("s_cmp_lt_u32 s%d, 28" % sJ); a("s_cbranch_scc1 %s" % l)
    h1c_role(g)
    a.label(l)
    a("s_bitcmp1_b32 s%d, 0" % sX); a("s_cbranch_scc1 L_final")
    a("s_cmp_lt_u32 s%d, 28" % sJ); a("s_cbranch_scc0 L_done")
    n0 = g.nts
    f_role(g)
    n1 = g.nts
    g.nts = n0
    a.label("L_final")
    final_role(g)
    g.nts = max(g.nts, n1)
```

```python
from gen import *

def poll_loop(g, name, issue, check, spin, local=False):
    a = g.a
    ok = g.lab(name + "ok")
    lf = g.o.get("localpoll", "nt")
    if local and lf != "sc1":
        lg = g.lab(name + "g"); lp = g.lab(name + "l")
        a("s_cmp_eq_u32 s%d, 0" % sMode); a("s_cbranch_scc1 %s" % lg)
        a("s_mov_b32 s%d, 0" % sCnt)
        a.label(lp)
        issue(lf)
        a("s_waitcnt vmcnt(0)")
        check()
        a("s_cbranch_scc1 %s" % ok)
        a("s_add_u32 s%d, s%d, 1" % (sCnt, sCnt)); a("s_cmp_lt_u32 s%d, %d" % (sCnt, 64)); a("s_cbranch_scc1 %s" % lp)
        a.label(lg)
    lp = g.lab(name)
    a("s_mov_b32 s%d, 0" % sCnt)
    a.label(lp)
    issue("sc1")
    a("s_waitcnt vmcnt(0)")
    check()
    a("s_cbranch_scc1 %s" % ok)
    a("s_add_u32 s%d, s%d, 1" % (sCnt, sCnt)); a("s_cmp_lt_u32 s%d, %d" % (sCnt, spin)); a("s_cbranch_scc1 %s" % lp)
    a("s_branch L_fail")
    a.label(ok)
    tsn = g.o.get("tsn") or []
    if ("cnt_" + name) in tsn:
        i = g.ts_slot(); g.tsnames.setdefault(i, []).append("cnt_" + name)
        a("s_add_u32 s%d, s%d, 1" % (sTS + i, sCnt))

def chk_acc(g, regs, t0, t1, t2):
    a = g.a
    first = True
    for d in regs:
        for k in range(4): a("v_xor_b32 v%d, s%d, v%d" % (d + k, sTB[k], d + k))
        if first:
            a("v_or_b32 v%d, v%d, v%d" % (t2, d, d + 1)); a("v_or3_b32 v%d, v%d, v%d, v%d" % (t2, t2, d + 2, d + 3)); first = False
        else:
            a("v_or3_b32 v%d, v%d, v%d, v%d" % (t2, t2, d, d + 1)); a("v_or3_b32 v%d, v%d, v%d, v%d" % (t2, t2, d + 2, d + 3))
    a("v_and_b32 v%d, 0xff, v%d" % (t2, t2))
    a("v_cmp_ne_u32 vcc, 0, v%d" % t2)
    a("s_cmp_eq_u64 vcc, 0")

def weights_hook(g):
    a = g.a
    W = vVS[2] if g.NS == 3 else vG + 20
    for i in range(8):
        a("buffer_load_dwordx4 v[%d:%d], v%d, s[%d:%d], s%d offen offset:%d nt" % (W + 4 * i, W + 4 * i + 3, vG + 56, SRD_W1, SRD_W1 + 3, sT2 if i >= 4 else sT3, (i & 3) * 1024))
        g.sq.append(("W", 0, i))
    if g.o.get("touch7", True):
        a("buffer_load_dword v%d, v%d, s[%d:%d], 0 offen %s" % (vG + 54, vG + 40, SRD_WS, SRD_WS + 3, g.o.get("touch7flag", "sc1")))
        g.sq.append(("W", 0, 8))


sH1s = 4
sYP  = 8
sE   = 9
sHC  = 10
sYo  = 26
vOA = vG + 32

def weights_setup(g):
    a = g.a
    a("s_lshl_b32 s%d, s%d, 19" % (sT0, sX)); a("s_lshr_b32 s%d, s%d, 1" % (sT1, sJ)); a("s_lshl_b32 s%d, s%d, 15" % (sT1, sT1)); a("s_add_u32 s%d, s%d, s%d" % (sT0, sT0, sT1))
    a("s_and_b32 s%d, s%d, 1" % (sT1, sJ)); a("s_lshl_b32 s%d, s%d, 9" % (sT1, sT1)); a("s_add_u32 s%d, s%d, s%d" % (sT0, sT0, sT1))
    a("s_sub_u32 s%d, 0x8000, s%d" % (sT2, sT1))
    a("s_cmp_lt_u32 s%d, %d" % (sWave, 0 if g.o.get("nowo") else 2)); a("s_cselect_b32 s%d, s%d, 0" % (sT1, sT2))
    g.make_srd(SRD_W1, sPWO, 0, off_sreg=sT0)
    a("s_mov_b32 s%d, s%d" % (SRD_W1 + 2, sT1))
    a("v_lshrrev_b32 v%d, 4, v%d" % (vTmp, vLane)); a("v_lshlrev_b32 v%d, 13, v%d" % (vG + 56, vTmp))
    a("v_and_b32 v%d, 15, v%d" % (vTmp, vLane)); a("v_lshl_add_u32 v%d, v%d, 4, v%d" % (vG + 56, vTmp, vG + 56))
    a("s_and_b32 s%d, s%d, 1" % (sT0, sWave)); a("s_lshl_b32 s%d, s%d, 8" % (sT0, sT0)); a("v_add_u32 v%d, s%d, v%d" % (vG + 56, sT0, vG + 56))

def o_pre(g):
    a = g.a
    t0, t1 = vTmp, vTmp + 1
    a("v_lshrrev_b32 v%d, 3, v%d" % (t0, vLane))
    a("v_lshlrev_b32 v%d, 11, v%d" % (vOA, t0)); a("v_and_b32 v%d, 7, v%d" % (t1, vLane)); a("v_lshl_add_u32 v%d, v%d, 4, v%d" % (vOA, t1, vOA))
    a("v_lshlrev_b32 v%d, 7, v%d" % (vOA + 1, t0))
    a("v_lshrrev_b32 v%d, 4, v%d" % (t0, vLane)); a("v_lshlrev_b32 v%d, 4, v%d" % (vOA + 2, t0)); a("v_lshl_add_u32 v%d, v%d, 1, v%d" % (vOA + 2, t1, vOA + 2))
    a("s_and_b32 s%d, s%d, 1" % (sT0, sWave)); a("s_lshl_b32 s%d, s%d, 6" % (sT0, sT0)); a("v_add_u32 v%d, s%d, v%d" % (vOA + 2, sT0, vOA + 2))
    a("v_bfe_u32 v%d, v%d, 2, 1" % (t1, vLane)); a("v_lshlrev_b32 v%d, 6, v%d" % (t1, t1)); a("v_lshl_add_u32 v%d, v%d, 4, v%d" % (vOA + 3, t0, t1))
    a("v_and_b32 v%d, 15, v%d" % (t1, vLane)); a("v_lshlrev_b32 v%d, 12, v%d" % (vOA + 5, t0)); a("v_lshl_add_u32 v%d, v%d, 4, v%d" % (vOA + 5, t1, vOA + 5))
    a("v_lshlrev_b32 v%d, 2, v%d" % (vOA + 6, t0)); a("v_lshl_add_u32 v%d, v%d, 4, v%d" % (vOA + 6, t1, vOA + 6))
    a("v_or_b32 v%d, 0x07060500, v%d" % (vOA + 7, t0))
    a("v_lshlrev_b32 v%d, 6, v%d" % (vOA + 4, t1))
    a("v_bfe_u32 v%d, v%d, 5, 1" % (t1, vLane)); a("v_lshl_add_u32 v%d, v%d, 5, v%d" % (vOA + 4, t1, vOA + 4))
    a("v_bfe_u32 v%d, v%d, 4, 1" % (t1, vLane)); a("v_lshl_add_u32 v%d, v%d, 4, v%d" % (vOA + 4, t1, vOA + 4))
    a("s_and_b32 s%d, s%d, 1" % (sT0, sJ)); a("s_lshl_b32 s%d, s%d, 1" % (sT0, sT0)); a("s_and_b32 s%d, s%d, 1" % (sT1, sWave)); a("s_add_u32 s%d, s%d, s%d" % (sT0, sT0, sT1))
    a("s_lshl_b32 s%d, s%d, 10" % (sT0, sT0)); a("v_add_u32 v%d, s%d, v%d" % (vOA + 4, sT0, vOA + 4))
    a("s_lshr_b32 s%d, s%d, 1" % (sT3, sJ))
    a("s_lshl_b32 s%d, s%d, 4" % (sYP, sX)); a("s_add_u32 s%d, s%d, s%d" % (sYP, sYP, sT3)); a("s_lshl_b32 s%d, s%d, 12" % (sYP, sYP)); a("s_add_u32 s%d, s%d, %d" % (sYP, sYP, WS_YP))
    a("s_lshl_b32 s%d, s%d, 5" % (sT0, sX)); a("s_and_b32 s%d, s%d, 1" % (sT1, sWave)); a("s_lshl_b32 s%d, s%d, 4" % (sT1, sT1)); a("s_add_u32 s%d, s%d, s%d" % (sT0, sT0, sT1))
    a("s_lshl_b32 s%d, s%d, 11" % (sT1, sT0)); a("s_lshl_b32 s%d, s%d, 7" % (sT2, sT3)); a("s_add_u32 s%d, s%d, s%d" % (sT1, sT1, sT2))
    a("s_add_u32 s%d, s%d, %d" % (sH1s, sT1, WS_PO)); a("s_add_u32 s%d, s%d, %d" % (sH1s + 1, sH1s, 8 * 2048))
    a("s_lshl_b32 s%d, s%d, 7" % (sT2, sT0)); a("s_lshr_b32 s%d, s%d, 2" % (sT3, sT3)); a("s_lshl_b32 s%d, s%d, 4" % (sT3, sT3)); a("s_add_u32 s%d, s%d, s%d" % (sT2, sT2, sT3))
    a("s_add_u32 s%d, s%d, %d" % (sH1s + 2, sT2, WS_PML)); a("s_add_u32 s%d, s%d, %d" % (sH1s + 3, sH1s + 2, 8 * 128))
    a("s_lshr_b32 s%d, s%d, 1" % (sT0, sX)); a("s_and_b32 s%d, s%d, 1" % (sT1, sX)); a("s_cmp_eq_u32 s%d, 0" % sT1); a("s_cselect_b32 s%d, 28, 32" % sT1)
    a("s_mul_i32 s%d, s%d, s%d" % (sE, sT0, sT1)); a("s_add_u32 s%d, s%d, s%d" % (sE, sE, sJ))
    a("s_sub_u32 s%d, s%d, 28" % (sT1, sJ)); a("s_lshl_b32 s%d, s%d, 2" % (sT1, sT1)); a("s_add_u32 s%d, s%d, s%d" % (sT1, sT1, sWave)); a("s_and_b32 s%d, s%d, 15" % (sT1, sT1))
    a("s_lshl_b32 s%d, s%d, 8" % (sT1, sT1))
    a("s_lshl_b32 s%d, s%d, 16" % (sT0, sX)); a("s_add_u32 s%d, s%d, s%d" % (sT0, sT0, sT1))
    a("s_add_u32 s%d, s%d, %d" % (sHC, sT0, WS_YP))
    for u in range(1, 4): a("s_add_u32 s%d, s%d, %d" % (sHC + u, sHC, u * 4 * 4096))
    a("s_lshl_b32 s%d, s%d, 12" % (sT0, sX)); a("s_add_u32 s%d, s%d, s%d" % (sT0, sT0, sT1)); a("s_add_u32 s%d, s%d, %d" % (sYo, sT0, WS_Y))
    if g.o.get("touch7", True):
        T = vOA + 8
        a("v_and_b32 v%d, 15, v%d" % (t0, vLane))
        a("v_lshlrev_b32 v%d, 11, v%d" % (t1, t0)); a("v_add_u32 v%d, s%d, v%d" % (t1, sH1s, t1))
        a("v_lshlrev_b32 v%d, 7, v%d" % (T, t0)); a("v_add_u32 v%d, s%d, v%d" % (T, sH1s + 2, T))
        a("s_mov_b32 s%d, 0xffff0000" % sMsk); a("s_mov_b32 s%d, 0" % (sMsk + 1))
        a("v_cndmask_b32 v%d, v%d, v%d, s[%d:%d]" % (T, t1, T, sMsk, sMsk + 1))
        a("s_cmp_lt_u32 s%d, 2" % sWave); a("s_cselect_b32 s%d, 0, 0x7ff00000" % sT0); a("v_add_u32 v%d, s%d, v%d" % (T, sT0, T))
        a("v_bfe_u32 v%d, v%d, 1, 4" % (t0, vLane)); a("v_lshlrev_b32 v%d, 12, v%d" % (t0, t0)); a("v_and_b32 v%d, 1, v%d" % (t1, vLane)); a("v_lshl_add_u32 v%d, v%d, 7, v%d" % (t0, t1, t0))
        a("v_add_u32 v%d, s%d, v%d" % (t0, sHC, t0))
        a("s_cmp_ge_u32 s%d, 28" % sJ); a("s_cselect_b32 s%d, 0, 0x7ff00000" % sT0); a("v_add_u32 v%d, s%d, v%d" % (t0, sT0, t0))
        a("s_mov_b32 s%d, 0" % sMsk); a("s_mov_b32 s%d, -1" % (sMsk + 1))
        a("v_cndmask_b32 v%d, v%d, v%d, s[%d:%d]" % (T, T, t0, sMsk, sMsk + 1))
    a("s_mov_b32 s%d, 4096" % sT2); a("s_mov_b32 s%d, 0" % sT3)

def pre_store(g):
    a = g.a
    Z = vT
    for e in range(4): a("v_mov_b32 v%d, 0" % (Z + e))
    a("s_cmp_lt_u32 s%d, 2" % sWave); a("s_cselect_b32 s%d, s%d, 0x7ffffff0" % (sT0, sYP))
    a("buffer_store_dwordx4 v[%d:%d], v%d, s[%d:%d], s%d offen" % (Z, Z + 3, vOA + 4, SRD_WS, SRD_WS + 3, sT0))
    a("s_mul_i32 s%d, s%d, 3072" % (sT0, sE)); a("s_mul_i32 s%d, s%d, 768" % (sT1, sWave)); a("s_add_u32 s%d, s%d, s%d" % (sT0, sT0, sT1)); a("s_add_u32 s%d, s%d, %d" % (sT0, sT0, WS_FP))
    a("s_bitcmp1_b32 s%d, 0" % sX); a("s_cselect_b32 s%d, 0x7ffffff0, s%d" % (sT0, sT0)); a("s_cmp_lt_u32 s%d, 28" % sJ); a("s_cselect_b32 s%d, s%d, 0x7ffffff0" % (sT0, sT0))
    a("v_lshlrev_b32 v%d, 4, v%d" % (vTmp, vLane))
    a("s_mov_b32 exec_hi, 0xffff")
    a("buffer_store_dwordx4 v[%d:%d], v%d, s[%d:%d], s%d offen" % (Z, Z + 3, vTmp, SRD_WS, SRD_WS + 3, sT0))
    a("s_mov_b64 exec, -1")
    return 2

def o_stage(g):
    a = g.a; o = g.o; spin = o["spin"]
    W = vVS[2]; WF = vVS[0]
    t0, t1, t2 = vTmp, vTmp + 1, vTmp + 2
    skip = g.lab("h1skip")
    a("s_cmp_ge_u32 s%d, 2" % sWave); a("s_cbranch_scc1 %s" % skip)
    a("s_waitcnt vmcnt(%d)" % (3 if o.get("touch7", True) else 2))
    for p in range(4):
        for j in range(8):
            a("v_perm_b32 v%d, v%d, v%d, s%d" % (WF + 4 * j + p, W + 4 * (2 * p + 1) + (j >> 1), W + 4 * (2 * p) + (j >> 1), sSelHi if j & 1 else sSelLo))
    g.ts("x_o_wo")
    D = vO
    def issue(fl):
        a("buffer_load_dwordx4 v[%d:%d], v%d, s[%d:%d], s%d offen %s" % (D, D + 3, vOA, SRD_WS, SRD_WS + 3, sH1s, fl))
        a("buffer_load_dwordx4 v[%d:%d], v%d, s[%d:%d], s%d offen %s" % (D + 4, D + 7, vOA, SRD_WS, SRD_WS + 3, sH1s + 1, fl))
        a("buffer_load_dwordx4 v[%d:%d], v%d, s[%d:%d], s%d offen %s" % (D + 8, D + 11, vOA + 1, SRD_WS, SRD_WS + 3, sH1s + 2, fl))
        a("buffer_load_dwordx4 v[%d:%d], v%d, s[%d:%d], s%d offen %s" % (D + 12, D + 15, vOA + 1, SRD_WS, SRD_WS + 3, sH1s + 3, fl))
    poll_loop(g, "h1", issue, lambda: chk_acc(g, [D, D + 4, D + 8, D + 12], t0, t1, t2), spin, local=True)
    g.ts("o_h1")
    Ma, La, Mb, Lb = D + 8, D + 9, D + 12, D + 13
    MX = D + 10
    a("v_max_f32 v%d, v%d, v%d" % (MX, Ma, Mb))
    a("v_max_f32_dpp v%d, v%d, v%d row_ror:8 row_mask:0xf bank_mask:0xf" % (MX, MX, MX))
    g.allred_x16("v_max_f32", MX, t0); g.allred_x32("v_max_f32", MX, t0)
    a("v_sub_f32 v%d, v%d, v%d" % (Ma, Ma, MX)); a("v_sub_f32 v%d, v%d, v%d" % (Mb, Mb, MX))
    a("v_mul_f32 v%d, s%d, v%d" % (Ma, sLog2e, Ma)); a("v_mul_f32 v%d, s%d, v%d" % (Mb, sLog2e, Mb))
    a("v_exp_f32 v%d, v%d" % (Ma, Ma)); a("v_exp_f32 v%d, v%d" % (Mb, Mb))
    R = vO + 20
    a("v_mul_f32 v%d, v%d, v%d" % (R + 4, Ma, La))
    for e in range(4): a("v_mul_f32 v%d, v%d, v%d" % (R + e, Ma, D + e))
    a("v_fmac_f32 v%d, v%d, v%d" % (R + 4, Mb, Lb))
    for e in range(4): a("v_fmac_f32 v%d, v%d, v%d" % (R + e, Mb, D + 4 + e))
    a("v_add_f32_dpp v%d, v%d, v%d row_ror:8 row_mask:0xf bank_mask:0xf" % (R + 4, R + 4, R + 4))
    for e in range(4): a("v_add_f32_dpp v%d, v%d, v%d row_ror:8 row_mask:0xf bank_mask:0xf" % (R + e, R + e, R + e))
    a("v_mov_b32 v%d, v%d" % (t0, R + 4))
    a("v_permlane16_swap_b32 v%d, v%d" % (R, R + 1)); a("v_permlane16_swap_b32 v%d, v%d" % (R + 2, R + 3))
    a("v_permlane16_swap_b32 v%d, v%d" % (R + 4, t0))
    a("v_add_f32 v%d, v%d, v%d" % (R, R, R + 1)); a("v_add_f32 v%d, v%d, v%d" % (R + 2, R + 2, R + 3)); a("v_add_f32 v%d, v%d, v%d" % (R + 4, R + 4, t0))
    a("v_mov_b32 v%d, v%d" % (t0, R + 4))
    a("v_permlane32_swap_b32 v%d, v%d" % (R, R + 2)); a("v_permlane32_swap_b32 v%d, v%d" % (R + 4, t0))
    a("v_add_f32 v%d, v%d, v%d" % (R + 4, R + 4, t0)); a("v_add_f32 v%d, v%d, v%d" % (R, R, R + 2))
    a("v_rcp_f32 v%d, v%d" % (t0, R + 4))
    a("v_fma_f32 v%d, -v%d, v%d, 1.0" % (t1, R + 4, t0)); a("v_fma_f32 v%d, v%d, v%d, v%d" % (t0, t1, t0, t0))
    a("v_mul_f32 v%d, v%d, v%d" % (R, R, t0)); a("v_cvt_pk_bf16_f32 v%d, v%d, v%d" % (R, R, R))
    a("ds_write_b16 v%d, v%d offset:%d" % (vOA + 2, R, L_OA))
    a("s_mov_b32 s%d, 0" % sMsk); a("s_mov_b32 s%d, -1" % (sMsk + 1))
    a("s_waitcnt lgkmcnt(0)")
    g.ts("x_o_math")
    a("s_barrier")
    AF = vS
    a("ds_read_b128 v[%d:%d], v%d offset:%d" % (AF, AF + 3, vOA + 3, L_OA))
    a("s_waitcnt lgkmcnt(0)")
    YD = vO
    for j in range(8):
        a("v_mfma_f32_16x16x32_bf16 v[%d:%d], v[%d:%d], v[%d:%d], 0" % (YD + 4 * j, YD + 4 * j + 3, AF, AF + 3, WF + 4 * j, WF + 4 * j + 3))
    G = vS + 4
    for e in range(4): a("v_cndmask_b32 v%d, v%d, v%d, s[%d:%d]" % (G + e, YD + 4 * e, YD + 4 * (4 + e), sMsk, sMsk + 1))
    g.tag4(G + 4, [G, G + 1, G + 2, G + 3])
    g.by_mode(lambda fl: a("buffer_store_dwordx4 v[%d:%d], v%d, s[%d:%d], s%d offen %s" % (G + 4, G + 7, vOA + 4, SRD_WS, SRD_WS + 3, sYP, fl)))
    g.ts("o_yp")
    join = g.lab("ojoin")
    a("s_branch %s" % join)
    a.label(skip)
    a("s_barrier")
    a.label(join)
    a("s_barrier")

def h1c_role(g):
    a = g.a; o = g.o; spin = o["spin"]
    t0, t1, t2 = vTmp, vTmp + 1, vTmp + 2
    D = vO
    def issue2(fl):
        for u in range(4):
            a("buffer_load_dwordx4 v[%d:%d], v%d, s[%d:%d], s%d offen %s" % (D + 4 * u, D + 4 * u + 3, vOA + 5, SRD_WS, SRD_WS + 3, sHC + u, fl))
    g.ts("x_o_h1c0")
    poll_loop(g, "h1c", issue2, lambda: chk_acc(g, [D, D + 4, D + 8, D + 12], t0, t1, t2), spin, local=True)
    g.ts("o_h1c")
    for e in (0, 2):
        a("v_pk_add_f32 v[%d:%d], v[%d:%d], v[%d:%d]" % (D + e, D + e + 1, D + e, D + e + 1, D + 4 + e, D + 5 + e))
        a("v_pk_add_f32 v[%d:%d], v[%d:%d], v[%d:%d]" % (D + 8 + e, D + 9 + e, D + 8 + e, D + 9 + e, D + 12 + e, D + 13 + e))
    for e in (0, 2):
        a("v_pk_add_f32 v[%d:%d], v[%d:%d], v[%d:%d]" % (D + e, D + e + 1, D + e, D + e + 1, D + 8 + e, D + 9 + e))
    a("v_permlane16_swap_b32 v%d, v%d" % (D, D + 1)); a("v_permlane16_swap_b32 v%d, v%d" % (D + 2, D + 3))
    a("v_add_f32 v%d, v%d, v%d" % (D, D, D + 1)); a("v_add_f32 v%d, v%d, v%d" % (D + 2, D + 2, D + 3))
    a("v_permlane32_swap_b32 v%d, v%d" % (D, D + 2))
    a("v_add_f32 v%d, v%d, v%d" % (D, D, D + 2))
    a("v_perm_b32 v%d, v%d, v%d, v%d" % (D, D, vTagW, vOA + 7))
    a("buffer_store_dword v%d, v%d, s[%d:%d], s%d offen sc1" % (D, vOA + 6, SRD_WS, SRD_WS + 3, sYo))
    g.ts("o_y")

def final_role(g):
    a = g.a; o = g.o; spin = o["spin"]
    t0, t1, t2 = vTmp, vTmp + 1, vTmp + 2
    a("s_cmp_lg_u32 s%d, 0" % sWave); a("s_cbranch_scc1 L_done")
    XR = vT
    a("v_and_b32 v%d, 1, v%d" % (t0, vLane)); a("v_lshlrev_b32 v%d, 10, v%d" % (vT + 2, t0))
    a("s_lshl_b32 s%d, s%d, 3" % (sT0, sE))
    a("buffer_load_dwordx2 v[%d:%d], v%d, s[%d:%d], s%d offen" % (XR, XR + 1, vT + 2, SRD_X, SRD_X + 3, sT0))
    AY, AO3, AO4 = vT + 3, vT + 4, vT + 5
    a("v_bfe_u32 v%d, v%d, 1, 3" % (t1, vLane)); a("v_lshlrev_b32 v%d, 12, v%d" % (t1, t1)); a("v_lshl_add_u32 v%d, v%d, 4, v%d" % (AY, t0, t1))
    a("v_lshrrev_b32 v%d, 1, v%d" % (t1, vLane)); a("v_lshlrev_b32 v%d, 12, v%d" % (t1, t1)); a("v_lshl_add_u32 v%d, v%d, 4, v%d" % (AO3, t0, t1))
    a("s_mov_b32 s%d, 0" % sMsk); a("s_mov_b32 s%d, -1" % (sMsk + 1))
    a("v_add_u32 v%d, %d, v%d" % (AO4, 96 * 4096, AO3)); a("v_subrev_u32 v%d, %d, v%d" % (t1, 16 * 4096, AO3))
    a("v_cndmask_b32 v%d, v%d, v%d, s[%d:%d]" % (AO4, AO4, t1, sMsk, sMsk + 1))
    a("s_lshl_b32 s%d, s%d, 5" % (sT0, sE)); a("s_add_u32 s%d, s%d, %d" % (sH1s, sT0, WS_Y))
    a("s_add_u32 s%d, s%d, %d" % (sH1s + 1, sT0, WS_OP))
    a("s_add_u32 s%d, s%d, %d" % (sH1s + 2, sH1s + 1, 32 * 4096)); a("s_add_u32 s%d, s%d, %d" % (sH1s + 3, sH1s + 1, 64 * 4096))
    g.make_srd(SRD_W2, sPOUT, 2048)
    a("s_lshl_b32 s%d, s%d, 3" % (sYP, sE))
    D = vO + 4
    def issue3(fl):
        a("buffer_load_dwordx4 v[%d:%d], v%d, s[%d:%d], s%d offen sc1" % (D, D + 3, AY, SRD_WS, SRD_WS + 3, sH1s))
    poll_loop(g, "hy", issue3, lambda: chk_acc(g, [D], t0, t1, t2), spin)
    for sh in (8, 4, 2):
        for e in range(4): a("v_add_f32_dpp v%d, v%d, v%d row_ror:%d row_mask:0xf bank_mask:0xf" % (D + e, D + e, D + e, sh))
    H = vO + 12
    a("v_cvt_pk_bf16_f32 v%d, v%d, v%d" % (D + 4, D, D + 1)); a("v_cvt_pk_bf16_f32 v%d, v%d, v%d" % (D + 5, D + 2, D + 3))
    for p in range(2):
        a("v_lshlrev_b32 v%d, 16, v%d" % (D + 2 * p, D + 4 + p)); a("v_and_b32 v%d, 0xffff0000, v%d" % (D + 2 * p + 1, D + 4 + p))
        a("v_lshlrev_b32 v%d, 16, v%d" % (H + 2 * p, XR + p)); a("v_and_b32 v%d, 0xffff0000, v%d" % (H + 2 * p + 1, XR + p))
    for e in range(4): a("v_add_f32 v%d, v%d, v%d" % (H + e, H + e, D + e))
    a("v_cvt_pk_bf16_f32 v%d, v%d, v%d" % (D + 4, H, H + 1)); a("v_cvt_pk_bf16_f32 v%d, v%d, v%d" % (D + 5, H + 2, H + 3))
    for p in range(2):
        a("v_lshlrev_b32 v%d, 16, v%d" % (H + 2 * p, D + 4 + p)); a("v_and_b32 v%d, 0xffff0000, v%d" % (H + 2 * p + 1, D + 4 + p))
    HS, AOUT = vO + 10, vO + 11
    a("v_lshrrev_b32 v%d, 4, v%d" % (t0, vLane))
    a("v_cmp_eq_u32 vcc, 1, v%d" % t0); a("v_cndmask_b32 v%d, v%d, v%d, vcc" % (HS, H, H + 1))
    a("v_cmp_eq_u32 vcc, 2, v%d" % t0); a("v_cndmask_b32 v%d, v%d, v%d, vcc" % (HS, HS, H + 2))
    a("v_cmp_eq_u32 vcc, 3, v%d" % t0); a("v_cndmask_b32 v%d, v%d, v%d, vcc" % (HS, HS, H + 3))
    a("v_lshl_add_u32 v%d, v%d, 1, v%d" % (AOUT, t0, vT + 2))
    D = vO + 16
    def issue4(fl):
        for u in range(4):
            a("buffer_load_dwordx4 v[%d:%d], v%d, s[%d:%d], s%d offen sc1" % (D + 4 * u, D + 4 * u + 3, AO4 if u == 3 else AO3, SRD_WS, SRD_WS + 3, sH1s + 1 + (0 if u == 3 else u)))
    g.ts("x_o_hy")
    poll_loop(g, "h3", issue4, lambda: chk_acc(g, [D, D + 4, D + 8, D + 12], t0, t1, t2), spin)
    g.ts("o_h3")
    for e in range(4): a("v_cndmask_b32 v%d, v%d, 0, s[%d:%d]" % (D + 12 + e, D + 12 + e, sMsk, sMsk + 1))
    for e in (0, 2):
        a("v_pk_add_f32 v[%d:%d], v[%d:%d], v[%d:%d]" % (D + e, D + e + 1, D + e, D + e + 1, D + 4 + e, D + 5 + e))
        a("v_pk_add_f32 v[%d:%d], v[%d:%d], v[%d:%d]" % (D + 8 + e, D + 9 + e, D + 8 + e, D + 9 + e, D + 12 + e, D + 13 + e))
    for e in (0, 2):
        a("v_pk_add_f32 v[%d:%d], v[%d:%d], v[%d:%d]" % (D + e, D + e + 1, D + e, D + e + 1, D + 8 + e, D + 9 + e))
    a("v_permlane16_swap_b32 v%d, v%d" % (D, D + 1)); a("v_permlane16_swap_b32 v%d, v%d" % (D + 2, D + 3))
    a("v_add_f32 v%d, v%d, v%d" % (D, D, D + 1)); a("v_add_f32 v%d, v%d, v%d" % (D + 2, D + 2, D + 3))
    a("v_permlane32_swap_b32 v%d, v%d" % (D, D + 2))
    a("v_add_f32 v%d, v%d, v%d" % (D, D, D + 2))
    for sh in (8, 4, 2): a("v_add_f32_dpp v%d, v%d, v%d row_ror:%d row_mask:0xf bank_mask:0xf" % (D, D, D, sh))
    a("v_mov_b32 v%d, v%d" % (D + 1, HS))
    a("v_cvt_pk_bf16_f32 v%d, v%d, v%d" % (D, D, D)); a("v_lshlrev_b32 v%d, 16, v%d" % (D, D))
    a("v_add_f32 v%d, v%d, v%d" % (D, D, D + 1)); a("v_cvt_pk_bf16_f32 v%d, v%d, v%d" % (D, D, D))
    a("s_mov_b32 exec_lo, 0x00030003"); a("s_mov_b32 exec_hi, 0x00030003")
    a("buffer_store_short v%d, v%d, s[%d:%d], s%d offen" % (D, AOUT, SRD_W2, SRD_W2 + 3, sYP))
    a("s_cmp_lg_u32 s%d, 0" % sE); a("s_cbranch_scc1 L_done")
    a("s_mov_b64 exec, 1")
    a("v_mov_b32 v%d, s%d" % (t0, sEp1)); a("v_mov_b32 v%d, 0" % t1)
    a("buffer_store_dword v%d, v%d, s[%d:%d], 0 offen offset:%d" % (t0, t1, SRD_WS, SRD_WS + 3, WS_EPOCH))
    a("s_branch L_done")

def f_role(g):
    a = g.a; o = g.o; spin = o["spin"]
    t0, t1, t2, t3 = vTmp, vTmp + 1, vTmp + 2, vTmp + 3
    a("s_mov_b32 s%d, s%d" % (sSave, sE))
    a("s_and_b32 s%d, s%d, 3" % (sSave + 1, sSave))
    a("s_lshr_b32 s%d, s%d, 2" % (sT0, sSave)); a("s_lshl_b32 s%d, s%d, 7" % (sT0, sT0))
    a("s_mul_i32 s%d, s%d, %d" % (sT1, sSave + 1, 128 * 3584)); a("s_add_u32 s%d, s%d, s%d" % (sT0, sT0, sT1))
    g.make_srd(SRD_W1, sPG, 0, off_sreg=sT0); a("s_sub_u32 s%d, %d, s%d" % (SRD_W1 + 2, 512 * 3584, sT0))
    g.make_srd(SRD_W2, sPU, 0, off_sreg=sT0); a("s_sub_u32 s%d, %d, s%d" % (SRD_W2 + 2, 512 * 3584, sT0))
    a("s_lshl_b32 s%d, s%d, 14" % (sT0, sSave))
    g.make_srd(SRD_W3, sPD, 16384, off_sreg=sT0)
    a("v_lshrrev_b32 v%d, 3, v%d" % (t0, vLane)); a("s_lshl_b32 s%d, s%d, 5" % (sT0, sWave)); a("v_add_u32 v%d, s%d, v%d" % (t0, sT0, t0))
    a("s_movk_i32 s%d, 3584" % sT1); a("v_mul_lo_u32 v%d, v%d, s%d" % (t0, t0, sT1))
    a("v_and_b32 v%d, 7, v%d" % (t1, vLane)); a("v_lshl_add_u32 v%d, v%d, 4, v%d" % (t0, t1, t0))
    a("s_lshl_b32 s%d, s%d, 12" % (sT0, sWave))
    for mat, srd, img in ((0, SRD_W1, L_IMG0), (1, SRD_W2, L_IMG1)):
        for c in range(4):
            a("s_add_u32 m0, s%d, %d" % (sT0, img + c * 1024)); a("s_mov_b32 s%d, %d" % (sT1, c * 8 * 3584))
            a("buffer_load_dwordx4 v%d, s[%d:%d], s%d offen nt lds" % (t0, srd, srd + 3, sT1))
    DW = vVS[2]
    a("v_lshrrev_b32 v%d, 4, v%d" % (t1, vLane)); a("v_lshlrev_b32 v%d, 12, v%d" % (t1, t1))
    a("v_and_b32 v%d, 15, v%d" % (t2, vLane)); a("v_lshl_add_u32 v%d, v%d, 4, v%d" % (t1, t2, t1))
    a("s_lshl_b32 s%d, s%d, 8" % (sT0, sWave)); a("v_add_u32 v%d, s%d, v%d" % (t1, sT0, t1))
    for i in range(4):
        a("buffer_load_dwordx4 v[%d:%d], v%d, s[%d:%d], 0 offen offset:%d nt" % (DW + 4 * i, DW + 4 * i + 3, t1, SRD_W3, SRD_W3 + 3, i * 1024))
    g.ts("x_f_iss")
    if o.get("fptouch", True):
        a("s_and_b32 s%d, s%d, 0xfffffffc" % (sT0, sSave)); a("s_mul_i32 s%d, s%d, 3072" % (sT0, sT0))
        a("s_mul_i32 s%d, s%d, 768" % (sT1, sSave + 1)); a("s_add_u32 s%d, s%d, s%d" % (sT0, sT0, sT1)); a("s_add_u32 s%d, s%d, %d" % (sT0, sT0, WS_FP))
        a("v_lshrrev_b32 v%d, 3, v%d" % (t1, vLane)); a("v_min_u32 v%d, 3, v%d" % (t1, t1)); a("v_mul_u32_u24 v%d, 3072, v%d" % (t1, t1))
        a("v_and_b32 v%d, 7, v%d" % (t2, vLane)); a("v_min_u32 v%d, 5, v%d" % (t2, t2)); a("v_lshl_add_u32 v%d, v%d, 7, v%d" % (t1, t2, t1))
        a("buffer_load_dword v%d, v%d, s[%d:%d], s%d offen" % (vG + 54, t1, SRD_WS, SRD_WS + 3, sT0))
    XR = vT
    a("v_lshrrev_b32 v%d, 5, v%d" % (t1, vLane)); a("v_lshlrev_b32 v%d, 10, v%d" % (t1, t1)); a("v_and_b32 v%d, 31, v%d" % (t2, vLane)); a("v_lshl_add_u32 v%d, v%d, 3, v%d" % (t1, t2, t1))
    a("s_lshl_b32 s%d, s%d, 8" % (sT0, sSave + 1))
    a("buffer_load_dwordx2 v[%d:%d], v%d, s[%d:%d], s%d offen" % (XR, XR + 1, t1, SRD_X, SRD_X + 3, sT0))
    AY = vG
    a("v_lshrrev_b32 v%d, 5, v%d" % (t1, vLane)); a("v_lshlrev_b32 v%d, 4, v%d" % (t1, t1)); a("v_lshl_add_u32 v%d, v%d, 5, v%d" % (AY, t2, t1))
    a("s_lshl_b32 s%d, s%d, 10" % (sT0, sSave + 1)); a("v_add_u32 v%d, s%d, v%d" % (AY, sT0, AY))
    AP = vG + 5
    a("s_lshl_b32 s%d, s%d, 10" % (sT0, sWave)); a("v_lshl_add_u32 v%d, v%d, 4, s%d" % (AP, vLane, sT0))
    AL = vG + 6
    a("v_lshlrev_b32 v%d, 4, v%d" % (AL, vLane))
    TR = vG + 1
    a("v_lshrrev_b32 v%d, 4, v%d" % (t1, vLane)); a("v_bfe_u32 v%d, v%d, 2, 2" % (t2, vLane)); a("v_lshl_add_u32 v%d, v%d, 3, v%d" % (t2, t1, t2))
    a("v_lshlrev_b32 v%d, 7, v%d" % (t2, t2)); a("v_and_b32 v%d, 3, v%d" % (t3, vLane)); a("v_lshl_add_u32 v%d, v%d, 3, v%d" % (TR, t3, t2))
    a("s_lshl_b32 s%d, s%d, 5" % (sT0, sWave)); a("v_add_u32 v%d, s%d, v%d" % (TR, sT0, TR))
    AW = vG + 3; AH = vG + 2
    a("s_lshl_b32 s%d, s%d, 9" % (sT0, sWave))
    a("v_lshrrev_b32 v%d, 5, v%d" % (t2, vLane)); a("v_lshlrev_b32 v%d, 8, v%d" % (t2, t2)); a("v_and_b32 v%d, 31, v%d" % (t3, vLane)); a("v_lshl_add_u32 v%d, v%d, 3, v%d" % (AW, t3, t2))
    a("v_add_u32 v%d, s%d, v%d" % (AW, sT0, AW))
    a("v_bfe_u32 v%d, v%d, 2, 1" % (t2, vLane)); a("v_lshlrev_b32 v%d, 8, v%d" % (t2, t2)); a("v_lshl_add_u32 v%d, v%d, 4, v%d" % (AH, t1, t2))
    a("v_add_u32 v%d, s%d, v%d" % (AH, sT0, AH))
    AS = vG + 4
    a("v_and_b32 v%d, 15, v%d" % (AS, vLane)); a("v_lshlrev_b32 v%d, 6, v%d" % (AS, AS))
    a("v_bfe_u32 v%d, v%d, 5, 1" % (t2, vLane)); a("v_lshl_add_u32 v%d, v%d, 5, v%d" % (AS, t2, AS))
    a("v_bfe_u32 v%d, v%d, 4, 1" % (t2, vLane)); a("v_lshl_add_u32 v%d, v%d, 4, v%d" % (AS, t2, AS))
    a("s_lshl_b32 s%d, s%d, 10" % (sT0, sWave)); a("v_add_u32 v%d, s%d, v%d" % (AS, sT0, AS))
    AG = vG + 7
    a("v_lshrrev_b32 v%d, 4, v%d" % (t2, vLane)); a("v_min_u32 v%d, 2, v%d" % (t2, t2)); a("v_lshlrev_b32 v%d, 8, v%d" % (t2, t2))
    a("v_and_b32 v%d, 15, v%d" % (t3, vLane)); a("v_lshl_add_u32 v%d, v%d, 4, v%d" % (AG, t3, t2))
    a("s_waitcnt vmcnt(0)")
    a("s_barrier")
    BG = vVS[0]
    for mat, img in ((0, L_IMG0), (1, L_IMG1)):
        if mat: a("s_waitcnt lgkmcnt(4)")
        for t in range(4):
            b = BG + 16 * mat + 4 * t
            a("ds_read_b64_tr_b16 v[%d:%d], v%d offset:%d" % (b, b + 1, TR, img + t * 4096))
            a("ds_read_b64_tr_b16 v[%d:%d], v%d offset:%d" % (b + 2, b + 3, TR, img + t * 4096 + 512))
    DF = vVS[1]
    for j in range(8):
        for p in range(2):
            a("v_perm_b32 v%d, v%d, v%d, s%d" % (DF + 2 * j + p, DW + 4 * (2 * p + 1) + (j >> 1), DW + 4 * (2 * p) + (j >> 1), sSelHi if j & 1 else sSelLo))
    XF = vT + 2
    for p in range(2):
        a("v_lshlrev_b32 v%d, 16, v%d" % (XF + 2 * p, XR + p)); a("v_and_b32 v%d, 0xffff0000, v%d" % (XF + 2 * p + 1, XR + p))
    a("s_lshl_b32 s%d, s%d, 13" % (sT2, sWave)); a("s_add_u32 s%d, s%d, %d" % (sT2, sT2, WS_Y)); a("s_add_u32 s%d, s%d, 4096" % (sT3, sT2))
    a("s_waitcnt lgkmcnt(0)")
    g.ts("f_w")
    D = vO
    def issue(fl):
        a("buffer_load_dwordx4 v[%d:%d], v%d, s[%d:%d], s%d offen sc1" % (D, D + 3, AY, SRD_WS, SRD_WS + 3, sT2))
        a("buffer_load_dwordx4 v[%d:%d], v%d, s[%d:%d], s%d offen sc1" % (D + 4, D + 7, AY, SRD_WS, SRD_WS + 3, sT3))
    poll_loop(g, "h2", issue, lambda: chk_acc(g, [D, D + 4], t0, t1, t2), spin)
    g.ts("f_h2")
    for e in (0, 2): a("v_pk_add_f32 v[%d:%d], v[%d:%d], v[%d:%d]" % (D + e, D + e + 1, D + e, D + e + 1, D + 4 + e, D + 5 + e))
    a("ds_write_b128 v%d, v[%d:%d] offset:%d" % (AP, D, D + 3, L_CO))
    a("s_waitcnt lgkmcnt(0)")
    a("s_barrier")
    g.ts("x_f_b1")
    for w in range(4): a("ds_read_b128 v[%d:%d], v%d offset:%d" % (D + 4 * w, D + 4 * w + 3, AL, L_CO + 1024 * w))
    a("s_waitcnt lgkmcnt(2)")
    for e in (0, 2): a("v_pk_add_f32 v[%d:%d], v[%d:%d], v[%d:%d]" % (D + e, D + e + 1, D + e, D + e + 1, D + 4 + e, D + 5 + e))
    a("s_waitcnt lgkmcnt(0)")
    for e in (0, 2): a("v_pk_add_f32 v[%d:%d], v[%d:%d], v[%d:%d]" % (D + 8 + e, D + 9 + e, D + 8 + e, D + 9 + e, D + 12 + e, D + 13 + e))
    for e in (0, 2): a("v_pk_add_f32 v[%d:%d], v[%d:%d], v[%d:%d]" % (D + e, D + e + 1, D + e, D + e + 1, D + 8 + e, D + 9 + e))
    H = vO + 8
    a("v_cvt_pk_bf16_f32 v%d, v%d, v%d" % (D + 4, D, D + 1)); a("v_cvt_pk_bf16_f32 v%d, v%d, v%d" % (D + 5, D + 2, D + 3))
    for p in range(2):
        a("v_lshlrev_b32 v%d, 16, v%d" % (D + 2 * p, D + 4 + p)); a("v_and_b32 v%d, 0xffff0000, v%d" % (D + 2 * p + 1, D + 4 + p))
    for e in (0, 2): a("v_pk_add_f32 v[%d:%d], v[%d:%d], v[%d:%d]" % (H + e, H + e + 1, D + e, D + e + 1, XF + e, XF + e + 1))
    a("v_cvt_pk_bf16_f32 v%d, v%d, v%d" % (D + 4, H, H + 1)); a("v_cvt_pk_bf16_f32 v%d, v%d, v%d" % (D + 5, H + 2, H + 3))
    a("ds_write_b64 v%d, v[%d:%d] offset:%d" % (AW, D + 4, D + 5, L_HN))
    for p in range(2):
        a("v_lshlrev_b32 v%d, 16, v%d" % (H + 2 * p, D + 4 + p)); a("v_and_b32 v%d, 0xffff0000, v%d" % (H + 2 * p + 1, D + 4 + p))
    AF = vS
    a("s_waitcnt lgkmcnt(0)")
    for t in range(4): a("ds_read_b128 v[%d:%d], v%d offset:%d" % (AF + 4 * t, AF + 4 * t + 3, AH, L_HN + 64 * t))
    S1, S2 = vO + 12, vO + 13
    a("v_add_f32 v%d, v%d, v%d" % (S1, H, H + 1)); a("v_mul_f32 v%d, v%d, v%d" % (S2, H, H))
    a("v_add_f32 v%d, v%d, v%d" % (D + 2, H + 2, H + 3)); a("v_fmac_f32 v%d, v%d, v%d" % (S2, H + 1, H + 1))
    a("v_add_f32 v%d, v%d, v%d" % (S1, S1, D + 2)); a("v_fmac_f32 v%d, v%d, v%d" % (S2, H + 2, H + 2)); a("v_fmac_f32 v%d, v%d, v%d" % (S2, H + 3, H + 3))
    a("s_mov_b32 s%d, 0xff00ff00" % sMsk); a("s_mov_b32 s%d, 0xff00ff00" % (sMsk + 1))
    a("v_mov_b32 v%d, 0x3f803f80" % t0)
    a("s_waitcnt lgkmcnt(0)")
    for q in range(16): a("v_cndmask_b32 v%d, v%d, v%d, s[%d:%d]" % (AF + q, AF + q, t0, sMsk, sMsk + 1))
    GD, UD = vO, vO + 4
    for t in range(4):
        for mat, dd in ((0, GD), (1, UD)):
            b = BG + 16 * mat + 4 * t
            a("v_mfma_f32_16x16x32_bf16 v[%d:%d], v[%d:%d], v[%d:%d], %s" % (dd, dd + 3, AF + 4 * t, AF + 4 * t + 3, b, b + 3, "0" if t == 0 else "v[%d:%d]" % (dd, dd + 3)))
    for sh in (8, 4, 2, 1):
        a("v_add_f32_dpp v%d, v%d, v%d row_ror:%d row_mask:0xf bank_mask:0xf" % (S1, S1, S1, sh))
        a("v_add_f32_dpp v%d, v%d, v%d row_ror:%d row_mask:0xf bank_mask:0xf" % (S2, S2, S2, sh))
    a("v_mov_b32 v%d, v%d" % (t1, S1)); a("v_mov_b32 v%d, v%d" % (t2, S2))
    a("v_permlane16_swap_b32 v%d, v%d" % (S1, t1)); a("v_permlane16_swap_b32 v%d, v%d" % (S2, t2))
    a("v_add_f32 v%d, v%d, v%d" % (S1, S1, t1)); a("v_add_f32 v%d, v%d, v%d" % (S2, S2, t2))
    a("v_mov_b32 v%d, v%d" % (t1, S1)); a("v_mov_b32 v%d, v%d" % (t2, S2))
    a("v_permlane32_swap_b32 v%d, v%d" % (S1, t1)); a("v_permlane32_swap_b32 v%d, v%d" % (S2, t2))
    a("s_mov_b32 s%d, 0xffff0000" % sMsk); a("s_mov_b32 s%d, 0" % (sMsk + 1))
    G = vS
    a("v_cndmask_b32 v%d, v%d, v%d, s[%d:%d]" % (G + 2, S1, t1, sMsk, sMsk + 1)); a("v_cndmask_b32 v%d, v%d, v%d, s[%d:%d]" % (G + 3, S2, t2, sMsk, sMsk + 1))
    g.tag4(G + 4, [GD, UD, G + 2, G + 3])
    a("s_mul_i32 s%d, s%d, 3072" % (sT0, sSave)); a("s_mul_i32 s%d, s%d, 768" % (sT1, sWave)); a("s_add_u32 s%d, s%d, s%d" % (sT0, sT0, sT1))
    a("s_add_u32 s%d, s%d, %d" % (sT0, sT0, WS_FP))
    a("s_mov_b32 exec_hi, 0xffff")
    g.by_mode(lambda fl: a("buffer_store_dwordx4 v[%d:%d], v%d, s[%d:%d], s%d offen %s" % (G + 4, G + 7, AL, SRD_WS, SRD_WS + 3, sT0, fl)))
    a("s_mov_b64 exec, -1")
    g.ts("x_f_fp")
    a("s_and_b32 s%d, s%d, 0xfffffffc" % (sT0, sSave)); a("s_mul_i32 s%d, s%d, 3072" % (sT0, sT0))
    a("s_mul_i32 s%d, s%d, 768" % (sT1, sSave + 1)); a("s_add_u32 s%d, s%d, s%d" % (sT0, sT0, sT1)); a("s_add_u32 s%d, s%d, %d" % (sT0, sT0, WS_FP))
    for u in range(1, 4): a("s_add_u32 s%d, s%d, %d" % (sT0 + u, sT0, u * 3072))
    D = vO
    def issue2(fl):
        for u in range(4):
            a("buffer_load_dwordx4 v[%d:%d], v%d, s[%d:%d], s%d offen %s" % (D + 4 * u, D + 4 * u + 3, AG, SRD_WS, SRD_WS + 3, sT0 + u, fl))
    poll_loop(g, "hf", issue2, lambda: chk_acc(g, [D + 4 * u for u in range(4)], t0, t1, t2), spin, local=True)
    g.ts("x_f_hf")
    for e in (0, 2):
        a("v_pk_add_f32 v[%d:%d], v[%d:%d], v[%d:%d]" % (D + e, D + e + 1, D + e, D + e + 1, D + 4 + e, D + 5 + e))
        a("v_pk_add_f32 v[%d:%d], v[%d:%d], v[%d:%d]" % (D + 8 + e, D + 9 + e, D + 8 + e, D + 9 + e, D + 12 + e, D + 13 + e))
    for e in (0, 2): a("v_pk_add_f32 v[%d:%d], v[%d:%d], v[%d:%d]" % (D + e, D + e + 1, D + e, D + e + 1, D + 8 + e, D + 9 + e))
    CG, CU = D + 4, D + 5
    a("v_mov_b32 v%d, v%d" % (t0, D)); a("v_mov_b32 v%d, v%d" % (t1, D + 1))
    a("v_permlane32_swap_b32 v%d, v%d" % (t0, CG)); a("v_permlane32_swap_b32 v%d, v%d" % (t1, CU))
    MN, VR = D + 6, D + 7
    a("v_mul_f32 v%d, 0x3b000000, v%d" % (MN, D + 2)); a("v_mul_f32 v%d, 0x3b000000, v%d" % (VR, D + 3))
    a("v_fma_f32 v%d, -v%d, v%d, v%d" % (VR, MN, MN, VR))
    a("v_cvt_pk_bf16_f32 v%d, v%d, v%d" % (t0, MN, VR))
    a("v_lshlrev_b32 v%d, 16, v%d" % (MN, t0)); a("v_and_b32 v%d, 0xffff0000, v%d" % (VR, t0))
    a("v_add_f32 v%d, 0x3727c5ac, v%d" % (VR, VR))
    a("v_cvt_pk_bf16_f32 v%d, v%d, v%d" % (VR, VR, VR)); a("v_lshlrev_b32 v%d, 16, v%d" % (VR, VR))
    a("v_sqrt_f32 v%d, v%d" % (VR, VR))
    a("v_fma_f32 v%d, -v%d, v%d, v%d" % (D, MN, CG, D)); a("v_fma_f32 v%d, -v%d, v%d, v%d" % (D + 1, MN, CU, D + 1))
    a("v_cvt_pk_bf16_f32 v%d, v%d, v%d" % (VR, VR, VR)); a("v_lshlrev_b32 v%d, 16, v%d" % (VR, VR))
    a("v_rcp_f32 v%d, v%d" % (VR, VR))
    a("v_mul_f32 v%d, v%d, v%d" % (D, D, VR)); a("v_mul_f32 v%d, v%d, v%d" % (D + 1, D + 1, VR))
    a("v_cvt_pk_bf16_f32 v%d, v%d, v%d" % (t0, D, D + 1))
    a("v_lshlrev_b32 v%d, 16, v%d" % (D, t0)); a("v_and_b32 v%d, 0xffff0000, v%d" % (D + 1, t0))
    a("v_mul_f32 v%d, s%d, v%d" % (t0, sLog2e, D)); a("v_exp_f32 v%d, -v%d" % (t0, t0)); a("v_add_f32 v%d, 1.0, v%d" % (t0, t0)); a("v_rcp_f32 v%d, v%d" % (t0, t0))
    a("v_mul_f32 v%d, v%d, v%d" % (D, D, t0))
    a("v_cvt_pk_bf16_f32 v%d, v%d, v%d" % (t0, D, D)); a("v_lshlrev_b32 v%d, 16, v%d" % (D, t0))
    a("v_mul_f32 v%d, v%d, v%d" % (D, D, D + 1))
    a("v_cvt_pk_bf16_f32 v%d, v%d, v%d" % (D, D, D))
    a("s_lshl_b32 s%d, s%d, 6" % (sT0, sWave)); a("v_lshl_add_u32 v%d, v%d, 1, s%d" % (t0, vLane, sT0))
    a("s_mov_b32 exec_hi, 0")
    a("ds_write_b16 v%d, v%d offset:%d" % (t0, D, L_GU))
    a("s_mov_b64 exec, -1")
    a("v_bfe_u32 v%d, v%d, 2, 1" % (t0, vLane)); a("v_lshlrev_b32 v%d, 5, v%d" % (t0, t0))
    a("v_lshrrev_b32 v%d, 4, v%d" % (t1, vLane)); a("v_lshl_add_u32 v%d, v%d, 3, v%d" % (t0, t1, t0)); a("v_add_u32 v%d, s%d, v%d" % (t0, sT0, t0))
    AC = vS
    a("s_waitcnt lgkmcnt(0)")
    a("ds_read_b64 v[%d:%d], v%d offset:%d" % (AC, AC + 1, t0, L_GU))
    a("s_mov_b32 s%d, 0" % sMsk); a("s_mov_b32 s%d, -1" % (sMsk + 1))
    a("s_lshl_b32 s%d, s%d, 12" % (sT0, sSave)); a("s_add_u32 s%d, s%d, %d" % (sT0, sT0, WS_OP))
    a("s_waitcnt lgkmcnt(0)")
    g.ts("x_f_act")
    YD = vO
    for j in range(8):
        a("v_mfma_f32_16x16x16_bf16 v[%d:%d], v[%d:%d], v[%d:%d], 0" % (YD + 4 * j, YD + 4 * j + 3, AC, AC + 1, DF + 2 * j, DF + 2 * j + 1))
    G = vS + 4
    for e in range(4): a("v_cndmask_b32 v%d, v%d, v%d, s[%d:%d]" % (G + e, YD + 4 * e, YD + 4 * (4 + e), sMsk, sMsk + 1))
    g.tag4(G + 4, [G, G + 1, G + 2, G + 3])
    a("buffer_store_dwordx4 v[%d:%d], v%d, s[%d:%d], s%d offen sc1" % (G + 4, G + 7, AS, SRD_WS, SRD_WS + 3, sT0))
    g.ts("f_op")
    a("s_branch L_done")

def emit(g):
    a = g.a
    weights_setup(g)
    g.comb_pre()
    o_pre(g)
    nextra = 0
    if g.o.get("prestore", False):
        nextra = pre_store(g)
        a("s_mov_b32 s%d, 4096" % sT2); a("s_mov_b32 s%d, 0" % sT3)
    g.stream(weights_hook=lambda: weights_hook(g), touch_hook=None, nextra=nextra)
    g.ts("stream")
    a.label("L_tail0")
    g.wg_combine()
    g.ts("comb")
    if g.o.get("tsn") and "x_ack" in g.o["tsn"]:
        a("s_waitcnt vmcnt(0)"); g.ts("x_ack")
    if g.o.get("stop") == "p": return
    o_stage(g)
    l = g.lab("noh1c")
    a("s_cmp_lt_u32 s%d, 28" % sJ); a("s_cbranch_scc1 %s" % l)
    h1c_role(g)
    a.label(l)
    a("s_bitcmp1_b32 s%d, 0" % sX); a("s_cbranch_scc1 L_final")
    a("s_cmp_lt_u32 s%d, 28" % sJ); a("s_cbranch_scc0 L_done")
    n0 = g.nts
    f_role(g)
    n1 = g.nts
    g.nts = n0
    a.label("L_final")
    final_role(g)
    g.nts = max(g.nts, n1)
```

```python
import sys
sys.path.insert(0, "gen")
from asmlib import Asm

NAME = "sequential_preLN__gqa_block_cached__swiglu_ffn__decode_kernel"

WS_EPOCH = 0x0
WS_Q     = 0x1A0000
WS_PO    = 0x10000
WS_PML   = 0x90000
WS_YP    = 0xA0000
WS_Y     = 0x120000
WS_OP    = 0x130000
WS_QA    = 0x1E0000
WS_FP    = 0x220000
WS_DBG   = 0x300000
WS_TS    = 0x400000
WS_SIZE  = 0x10000000

L_IMG0 = 0x0000
L_IMG1 = 0x4000
L_XN   = 0x8000
L_QP   = 0xA000
L_CO   = 0xB800
L_CML  = 0xD800
L_OA   = 0xD900
L_HST  = 0xDA00
L_HN   = 0xDB00
L_GU   = 0xE400
LDS_SIZE = 0xF000

sPX, sPK, sPV, sPWQ, sPWO, sPBX, sPG, sPU, sPD, sPOUT, sPDBG, sPWS = [4 + 2 * i for i in range(12)]
SRD_K, SRD_V, SRD_WS, SRD_W1, SRD_W2, SRD_W3, SRD_X = 28, 32, 36, 40, 44, 48, 52
sX, sJ, sWave, sB, sTag, sXcc, sSelLo, sSelHi = 56, 57, 58, 59, 60, 61, 62, 63
sTSel = 64
sTB = [68, 69, 3, 27]
sScale = 70
sLog2e, sCnt = 72, 73
sOffA, sOffB = 74, 75
sRot, sMode = 76, 77
sT0, sT1, sT2, sT3 = 78, 79, 80, 81
sSave = 82
sMsk = 84
sEp1 = 86
sP = 87
sPO, sPML = 14, 15
sTS = 88
vTid, vLane, vOffK, vOffV = 0, 1, 2, 3
vQ = 4
vM, vL, vAl = 8, 9, 10
vTmp = 12
vO = 16
vS = 48
vVS = [80, 112, 144]
vT = 176
vU = 184
vP = 192
vTagW = 196
vG = 198
vCA = vG + 44
aKS = [0, 32, 64]

def sr(n, k=1): return "s%d" % n if k == 1 else "s[%d:%d]" % (n, n + k - 1)
def vr(n, k=1): return "v%d" % n if k == 1 else "v[%d:%d]" % (n, n + k - 1)
def ar(n, k=1): return "a%d" % n if k == 1 else "a[%d:%d]" % (n, n + k - 1)

class Gen:
    def __init__(self, **opt):
        self.o = dict(stop_after=None, ts=False, dbg=None, rotw=1, rotx=4, rotj=0, ntflag="nt", spin=3000,
                      local=True, sched=None, prefetch_code=True)
        self.o.update(opt)
        self.a = Asm()
        self.nts = 0
        self.sTagW = sTag
        self.uid = 0
        self.vq = []
        self.NS = self.o.get("NS", 3)
        self.bulk = [(k, t, h) for t in range(self.NS) for k in "KV" for h in range(2)]
        self.bi = 0
    def lab(self, p):
        self.uid += 1
        return "L_%s_%d" % (p, self.uid)
    def ts(self, name=None):
        if not self.o["ts"]: return
        tsn = self.o.get("tsn")
        if tsn is not None and name not in tsn and name not in ("start", "end"): return
        if tsn is None and name is not None and name.startswith("x_"): return
        self.tsnames = getattr(self, "tsnames", {}); self.tsnames.setdefault(self.nts, []).append(name)
        a = self.a
        i = self.nts; self.nts += 1
        assert i < 12
        a("s_memrealtime s[102-2]" if False else "s_memrealtime s[%d:%d]" % (100, 101))
        a("s_waitcnt lgkmcnt(0)")
        a("s_mov_b32 s%d, s100" % (sTS + i))

    def ts_slot(self):
        if not self.o["ts"]: return None
        i = self.nts; self.nts += 1
        return i
    def ts_at(self, i, val=None):
        if i is None: return
        a = self.a
        if val is not None:
            a("s_mov_b32 s%d, %d" % (sTS + i, val)); return
        a("s_memrealtime s[100:101]"); a("s_waitcnt lgkmcnt(0)"); a("s_mov_b32 s%d, s100" % (sTS + i))

    def vm(self, tag, n=1): self.vq += [tag] * n
    def vwait(self, tag):
        idx = max(i for i, t in enumerate(self.vq) if t == tag)
        self.a("s_waitcnt vmcnt(%d)" % (len(self.vq) - 1 - idx))
    def issue_bulk(self, n):
        for _ in range(n):
            if self.bi < len(self.bulk):
                k, t, h = self.bulk[self.bi]; self.bi += 1
                self.load_half(k, t, h); self.vm("bulk", 4)

    def make_srd(self, srd, ptr, size, off_sreg=None, off_imm=None):
        a = self.a
        if off_sreg is None and off_imm is None:
            a("s_mov_b32 s%d, s%d" % (srd, ptr)); a("s_mov_b32 s%d, s%d" % (srd + 1, ptr + 1))
        elif off_sreg is not None:
            a("s_add_u32 s%d, s%d, s%d" % (srd, ptr, off_sreg)); a("s_addc_u32 s%d, s%d, 0" % (srd + 1, ptr + 1))
        else:
            a("s_add_u32 s%d, s%d, %d" % (srd, ptr, off_imm)); a("s_addc_u32 s%d, s%d, 0" % (srd + 1, ptr + 1))
        a("s_mov_b32 s%d, %s" % (srd + 2, size if isinstance(size, str) else "0x%x" % size))
        a("s_mov_b32 s%d, 0x20000" % (srd + 3))

    def tag4(self, dst, src):
        for k in range(4):
            self.a("v_perm_b32 v%d, v%d, v%d, s%d" % (dst + k, src[k], vTagW, sTSel + k))
    def allred_row16(self, op, r, t=None):
        for sh in (8, 4, 2, 1):
            self.a("%s_dpp v%d, v%d, v%d row_ror:%d row_mask:0xf bank_mask:0xf" % (op, r, r, r, sh))
    def allred_x16(self, op, r, t):
        a = self.a
        a("v_mov_b32 v%d, v%d" % (t, r)); a("v_permlane16_swap_b32 v%d, v%d" % (r, t)); a("%s v%d, v%d, v%d" % (op, r, r, t))
    def allred_x32(self, op, r, t):
        a = self.a
        a("v_mov_b32 v%d, v%d" % (t, r)); a("v_permlane32_swap_b32 v%d, v%d" % (r, t)); a("%s v%d, v%d, v%d" % (op, r, r, t))

    def prologue(self):
        a = self.a; o = self.o
        a("s_cmp_ge_u32 s2, 256"); a("s_cbranch_scc1 L_end")
        for q in range(o.get("jumps", 0)):
            a("s_branch L_jmp%d" % q); a.raw(".fill %d, 4, 0xbf800000" % (o.get("jgap", 1024) // 4)); a.label("L_jmp%d" % q)
        a("s_load_dwordx16 s[4:19], s[0:1], 0")
        a("s_load_dwordx8 s[20:27], s[0:1], 64")
        if o.get("prefetch_code"):
            a("s_getpc_b64 s[28:29]")
            a.label("L_pc")
            a("v_lshlrev_b32 v%d, 7, v0" % vTmp)
            a("v_min_u32 v%d, L_end-L_pc, v%d" % (vTmp, vTmp))
            a("global_load_dword v%d, v%d, s[28:29]" % (vG + 57, vTmp))
        if o["ts"]:
            for i in range(12): a("s_mov_b32 s%d, 0" % (sTS + i))
        self.ts("start")
        a("v_and_b32 v%d, 63, v0" % vLane)
        a("v_lshrrev_b32 v%d, 6, v0" % vTmp)
        a("s_and_b32 s%d, s2, 7" % sX)
        a("v_readfirstlane_b32 s%d, v%d" % (sWave, vTmp))
        a("s_lshr_b32 s%d, s2, 3" % sJ)
        a("s_lshr_b32 s%d, s%d, 4" % (sB, sJ))
        a("s_lshl_b32 s%d, s%d, 5" % (sP, sX)); a("s_add_u32 s%d, s%d, s%d" % (sP, sP, sJ))
        a("v_bfe_u32 v%d, v%d, 2, 2" % (vTmp, vLane)); a("v_lshlrev_b32 v%d, 8, v%d" % (vOffK, vTmp))
        a("v_lshrrev_b32 v%d, 4, v%d" % (vTmp, vLane)); a("v_lshl_add_u32 v%d, v%d, 6, v%d" % (vOffK, vTmp, vOffK))
        a("v_and_b32 v%d, 3, v%d" % (vTmp, vLane)); a("v_lshl_add_u32 v%d, v%d, 4, v%d" % (vOffK, vTmp, vOffK))
        a("v_lshlrev_b32 v%d, 4, v%d" % (vOffV, vLane))
        a("s_lshl_b32 s%d, s%d, 16" % (sT0, sWave))
        a("v_add_u32 v%d, s%d, v%d" % (vOffK, sT0, vOffK)); a("v_add_u32 v%d, s%d, v%d" % (vOffV, sT0, vOffV))
        a("v_lshrrev_b32 v%d, 5, v%d" % (vTmp, vLane)); a("v_and_b32 v%d, 31, v%d" % (vTmp + 1, vLane))
        a("v_lshlrev_b32 v%d, 10, v%d" % (vG, vTmp)); a("v_lshl_add_u32 v%d, v%d, 4, v%d" % (vG, vTmp + 1, vG))
        a("v_lshrrev_b32 v%d, 3, v%d" % (vTmp, vLane)); a("v_lshlrev_b32 v%d, 13, v%d" % (vG + 1, vTmp))
        a("v_and_b32 v%d, 7, v%d" % (vTmp, vLane)); a("v_lshl_add_u32 v%d, v%d, 4, v%d" % (vG + 1, vTmp, vG + 1))
        a("s_mul_i32 s%d, s%d, %d" % (sRot, sWave, o["rotw"])); a("s_mul_i32 s%d, s%d, %d" % (sT1, sX, o["rotx"]))
        a("s_add_u32 s%d, s%d, s%d" % (sRot, sRot, sT1)); a("s_mul_i32 s%d, s%d, %d" % (sT1, sJ, o["rotj"]))
        a("s_add_u32 s%d, s%d, s%d" % (sRot, sRot, sT1)); a("s_and_b32 s%d, s%d, 15" % (sRot, sRot))
        a("s_lshl_b32 s%d, s%d, 3" % (sT1, sB)); a("s_add_u32 s%d, s%d, s%d" % (sT1, sT1, sX)); a("s_lshl_b32 s%d, s%d, 4" % (sT1, sT1))
        a("s_and_b32 s%d, s%d, 15" % (sT2, sJ)); a("s_add_u32 s%d, s%d, s%d" % (sT1, sT1, sT2)); a("s_lshl_b32 s%d, s%d, 18" % (sT1, sT1))
        a("s_lshl_b32 s%d, s%d, 10" % (sT2, sX)); a("s_and_b32 s%d, s%d, 7" % (sT3, sJ)); a("s_lshl_b32 s%d, s%d, 7" % (sT3, sT3))
        a("s_add_u32 s%d, s%d, s%d" % (sT2, sT2, sT3)); a("s_lshr_b32 s%d, s%d, 3" % (sT3, sJ)); a("s_lshl_b32 s%d, s%d, 20" % (sT3, sT3))
        a("s_add_u32 s%d, s%d, s%d" % (sT2, sT2, sT3))
        a("s_waitcnt lgkmcnt(0)")
        self.make_srd(SRD_K, sPK, 0x40000, off_sreg=sT1)
        lab = self.lab("w0"); lab2 = self.lab("w0j")
        a("s_cmp_eq_u32 s%d, 0" % sWave); a("s_cbranch_scc1 %s" % lab)
        self.early = o.get("early", 2)
        for (k, t, h) in self.bulk[:self.early]: self.load_half(k, t, h)
        if o.get("tlbtouch", True):
            a("s_lshl_b32 s%d, s%d, 19" % (sT2, sX)); a("s_lshr_b32 s%d, s%d, 1" % (sT3, sJ)); a("s_lshl_b32 s%d, s%d, 15" % (sT3, sT3)); a("s_add_u32 s%d, s%d, s%d" % (sT2, sT2, sT3))
            self.make_srd(SRD_W2, sPWO, 0x400000)
            self.make_srd(SRD_W3, sPOUT, 2048)
            a("v_mov_b32 v%d, 0" % vTmp)
            a("s_mov_b64 exec, 1")
            a("buffer_load_dword v%d, v%d, s[%d:%d], s%d offen nt" % (vG + 56, vTmp, SRD_W2, SRD_W2 + 3, sT2))
            a("buffer_load_dword v%d, v%d, s[%d:%d], 0 offen nt" % (vG + 57, vTmp, SRD_W3, SRD_W3 + 3))
            a("s_mov_b64 exec, -1")
            self.helper_extra = 2
        else:
            self.helper_extra = 0
        self.make_srd(SRD_X, sPX, 2048)
        self.make_srd(SRD_WS, sPWS, WS_SIZE)
        a("s_branch %s" % lab2)
        a.label(lab)
        self.make_srd(SRD_X, sPX, 2048)
        a("buffer_load_dwordx4 v[%d:%d], v%d, s[%d:%d], 0 offen" % (vG + 4, vG + 7, vG, SRD_X, SRD_X + 3))
        a("buffer_load_dwordx4 v[%d:%d], v%d, s[%d:%d], 0 offen offset:512" % (vG + 8, vG + 11, vG, SRD_X, SRD_X + 3))
        self.vm("x", 2)
        self.make_srd(SRD_W1, sPWQ, 0x400000, off_sreg=sT2)
        a("s_sub_u32 s%d, 0x400000, s%d" % (SRD_W1 + 2, sT2))
        for c in range(0 if o.get("nowq") else 16):
            a("s_mov_b32 m0, %d" % (L_IMG0 + c * 1024))
            a("s_mov_b32 s%d, %d" % (sOffA, c * 8 * 8192))
            a("buffer_load_dwordx4 v%d, s[%d:%d], s%d offen nt lds" % (vG + 1, SRD_W1, SRD_W1 + 3, sOffA))
        self.vm("wq", 16)
        self.make_srd(SRD_WS, sPWS, WS_SIZE)
        if o.get("touch", True):
            a("s_lshl_b32 s%d, s%d, 15" % (sT2, sX)); a("s_lshl_b32 s%d, s%d, 12" % (sT3, sB)); a("s_add_u32 s%d, s%d, s%d" % (sT2, sT2, sT3))
            a("s_add_u32 s%d, s%d, %d" % (sT2, sT2, WS_QA))
            a("v_and_b32 v%d, 31, v%d" % (vTmp, vLane)); a("v_lshlrev_b32 v%d, 7, v%d" % (vTmp, vTmp))
            a("v_lshrrev_b32 v%d, 5, v%d" % (vTmp + 1, vLane)); a("v_lshl_add_u32 v%d, v%d, 13, v%d" % (vTmp, vTmp + 1, vTmp))
            a("buffer_load_dword v%d, v%d, s[%d:%d], s%d offen %s" % (vG + 56, vTmp, SRD_WS, SRD_WS + 3, sT2, o.get("touchflag", "sc1")))
            a("s_add_u32 s%d, s%d, 16384" % (sT2, sT2))
            a("buffer_load_dword v%d, v%d, s[%d:%d], s%d offen %s" % (vG + 57, vTmp, SRD_WS, SRD_WS + 3, sT2, o.get("touchflag", "sc1")))
            self.vm("touch", 2)
        a.label(lab2)
        a("s_load_dword s%d, s[%d:%d], 0x%x" % (sTag, sPWS, sPWS + 1, WS_EPOCH))
        self.make_srd(SRD_V, sPV, 0x40000, off_sreg=sT1)
        if o.get("probar", False): a("s_barrier")
        a("s_mov_b32 s%d, 0x05040100" % sSelLo); a("s_mov_b32 s%d, 0x07060302" % sSelHi)
        for k in range(4): a("s_mov_b32 s%d, 0x%08x" % (sTSel + k, 0x07060500 + k))
        a("s_mov_b32 s%d, 0x3db504f3" % sScale); a("s_mov_b32 s%d, 0x3db504f3" % (sScale + 1)); a("s_mov_b32 s%d, 0x3fb8aa3b" % sLog2e)
        a("s_getreg_b32 s%d, hwreg(HW_REG_XCC_ID, 0, 4)" % sXcc)

    def soff_half(self, t, half, dst):
        a = self.a
        a("s_add_u32 s%d, s%d, %d" % (dst, sRot, 2 * t + half))
        a("s_and_b32 s%d, s%d, 15" % (dst, dst)); a("s_lshl_b32 s%d, s%d, 12" % (dst, dst))

    def load_half(self, kind, t, half, dyn=False):
        a = self.a
        so = sOffA if half == 0 else sOffB
        if not dyn: self.soff_half(t, half, so)
        setsel = t % self.NS
        for i in range(4):
            slot = 4 * half + i
            if kind == "K":
                dst = ar(aKS[setsel] + 4 * slot, 4); voff = vOffK; srd = SRD_K
            else:
                dst = vr(vVS[setsel] + 4 * slot, 4); voff = vOffV; srd = SRD_V
            a("buffer_load_dwordx4 %s, v%d, s[%d:%d], s%d offen offset:%d %s" % (dst, voff, srd, srd + 3, so, i * 1024, self.o["ntflag"]))

    def tag_consts(self):
        a = self.a
        a("s_waitcnt lgkmcnt(0)")
        a("s_and_b32 s%d, s%d, 0xff" % (sT0, sTag))
        a("s_add_u32 s%d, s%d, 0x35" % (sT1, sT0)); a("s_and_b32 s%d, s%d, 0xff" % (sT1, sT1)); a("s_lshl_b32 s%d, s%d, 8" % (sT1, sT1))
        a("s_add_u32 s%d, s%d, 0x6a" % (sT2, sT0)); a("s_and_b32 s%d, s%d, 0xff" % (sT2, sT2)); a("s_lshl_b32 s%d, s%d, 16" % (sT2, sT2))
        a("s_add_u32 s%d, s%d, 0xc1" % (sT3, sT0)); a("s_lshl_b32 s%d, s%d, 24" % (sT3, sT3))
        a("s_or_b32 s%d, s%d, s%d" % (sT0, sT0, sT1)); a("s_or_b32 s%d, s%d, s%d" % (sT2, sT2, sT3)); a("s_or_b32 s%d, s%d, s%d" % (sT0, sT0, sT2))
        a("s_add_u32 s%d, s%d, 1" % (sEp1, sTag))
        a("s_mov_b32 s%d, s%d" % (self.sTagW, sT0))
        a("v_mov_b32 v%d, s%d" % (vTagW, sT0))
        for k in range(4): a("s_bfe_u32 s%d, s%d, 0x%x" % (sTB[k], sT0, 0x80000 + 8 * k))

    def helper_startup(self):
        a = self.a; o = self.o
        W = o.get("win", 10)
        n = 4 * self.early + self.helper_extra
        for (k, t, h) in self.bulk[self.early:]:
            if n + 4 > W: a("s_waitcnt vmcnt(%d)" % max(W - 4, 0))
            self.load_half(k, t, h); n += 4
        self.tag_consts()

    def ln_x(self):
        a = self.a
        X = vG + 4; F = vO
        t0, t1 = vTmp, vTmp + 1
        self.vwait("x")
        if self.o.get("tsq"): self.ts()
        for i in range(8):
            a("v_lshlrev_b32 v%d, 16, v%d" % (F + 2 * i, X + i))
            a("v_and_b32 v%d, 0xffff0000, v%d" % (F + 2 * i + 1, X + i))
        S = vO + 16
        a("v_pk_add_f32 v[%d:%d], v[%d:%d], v[%d:%d]" % (S, S + 1, F, F + 1, F + 2, F + 3))
        a("v_pk_add_f32 v[%d:%d], v[%d:%d], v[%d:%d]" % (S + 2, S + 3, F + 4, F + 5, F + 6, F + 7))
        for i in (4, 6):
            a("v_pk_add_f32 v[%d:%d], v[%d:%d], v[%d:%d]" % (S, S + 1, S, S + 1, F + 2 * i, F + 2 * i + 1))
            a("v_pk_add_f32 v[%d:%d], v[%d:%d], v[%d:%d]" % (S + 2, S + 3, S + 2, S + 3, F + 2 * i + 2, F + 2 * i + 3))
        a("v_pk_add_f32 v[%d:%d], v[%d:%d], v[%d:%d]" % (S, S + 1, S, S + 1, S + 2, S + 3))
        a("v_add_f32 v%d, v%d, v%d" % (S, S, S + 1))
        self.allred_row16("v_add_f32", S); self.allred_x16("v_add_f32", S, t0)
        a("v_mul_f32 v%d, 0x3b000000, v%d" % (S, S))
        MEAN = S; D = vO + 20
        a("v_mov_b32 v%d, v%d" % (S + 1, S))
        for i in range(8):
            a("v_pk_add_f32 v[%d:%d], v[%d:%d], v[%d:%d] neg_lo:[0,1] neg_hi:[0,1]" % (D + 2 * i, D + 2 * i + 1, F + 2 * i, F + 2 * i + 1, S, S + 1))
        Q = vO + 36
        a("v_pk_mul_f32 v[%d:%d], v[%d:%d], v[%d:%d]" % (Q, Q + 1, D, D + 1, D, D + 1))
        a("v_pk_mul_f32 v[%d:%d], v[%d:%d], v[%d:%d]" % (Q + 2, Q + 3, D + 2, D + 3, D + 2, D + 3))
        for i in range(2, 8):
            q = Q + 2 * (i & 1)
            a("v_pk_fma_f32 v[%d:%d], v[%d:%d], v[%d:%d], v[%d:%d]" % (q, q + 1, D + 2 * i, D + 2 * i + 1, D + 2 * i, D + 2 * i + 1, q, q + 1))
        a("v_pk_add_f32 v[%d:%d], v[%d:%d], v[%d:%d]" % (Q, Q + 1, Q, Q + 1, Q + 2, Q + 3))
        a("v_add_f32 v%d, v%d, v%d" % (Q, Q, Q + 1))
        self.allred_row16("v_add_f32", Q); self.allred_x16("v_add_f32", Q, t0)
        lab = self.lab("lo")
        a("s_cmp_lt_u32 s%d, 16" % sJ); a("s_cbranch_scc1 %s" % lab)
        for i in range(8): a("v_mov_b32 v%d, v%d" % (F + i, F + 8 + i))
        a.label(lab)
        a("v_mul_f32 v%d, 0x3b000000, v%d" % (Q, Q))
        a("v_cvt_pk_bf16_f32 v%d, v%d, v%d" % (t0, MEAN, Q))
        a("v_lshlrev_b32 v%d, 16, v%d" % (S, t0))
        a("v_and_b32 v%d, 0xffff0000, v%d" % (Q, t0))
        a("v_add_f32 v%d, 0x3727c5ac, v%d" % (Q, Q))
        a("v_mov_b32 v%d, v%d" % (S + 1, S))
        a("v_cvt_pk_bf16_f32 v%d, v%d, v%d" % (Q, Q, Q)); a("v_lshlrev_b32 v%d, 16, v%d" % (Q, Q))
        for i in range(4):
            a("v_pk_add_f32 v[%d:%d], v[%d:%d], v[%d:%d] neg_lo:[0,1] neg_hi:[0,1]" % (D + 2 * i, D + 2 * i + 1, F + 2 * i, F + 2 * i + 1, S, S + 1))
        a("v_sqrt_f32 v%d, v%d" % (Q, Q))
        for i in range(4):
            a("v_cvt_pk_bf16_f32 v%d, v%d, v%d" % (X + i, D + 2 * i, D + 2 * i + 1))
        a("v_cvt_pk_bf16_f32 v%d, v%d, v%d" % (Q, Q, Q)); a("v_lshlrev_b32 v%d, 16, v%d" % (Q, Q))
        a("v_rcp_f32 v%d, v%d" % (Q + 2, Q)); a("v_mov_b32 v%d, v%d" % (Q + 1, Q))
        for i in range(4):
            a("v_lshlrev_b32 v%d, 16, v%d" % (D + 2 * i, X + i)); a("v_and_b32 v%d, 0xffff0000, v%d" % (D + 2 * i + 1, X + i))
        a("v_mov_b32 v%d, v%d" % (Q + 3, Q + 2))
        for i in range(4):
            a("v_pk_mul_f32 v[%d:%d], v[%d:%d], v[%d:%d]" % (F + 2 * i, F + 2 * i + 1, D + 2 * i, D + 2 * i + 1, Q + 2, Q + 3))
        for i in range(4):
            a("v_pk_fma_f32 v[%d:%d], v[%d:%d], v[%d:%d], v[%d:%d] neg_lo:[1,0,0] neg_hi:[1,0,0]" % (D + 2 * i, D + 2 * i + 1, F + 2 * i, F + 2 * i + 1, Q, Q + 1, D + 2 * i, D + 2 * i + 1))
        for i in range(4):
            a("v_pk_fma_f32 v[%d:%d], v[%d:%d], v[%d:%d], v[%d:%d]" % (F + 2 * i, F + 2 * i + 1, D + 2 * i, D + 2 * i + 1, Q + 2, Q + 3, F + 2 * i, F + 2 * i + 1))
        for i in range(4):
            a("v_cvt_pk_bf16_f32 v%d, v%d, v%d" % (X + i, F + 2 * i, F + 2 * i + 1))

    def q_slice(self):
        a = self.a
        X = vG + 4
        AF = vG + 12; BF = vO; DQ = vG + 28
        a("ds_write_b128 v%d, v[%d:%d]" % (vG + 52, X, X + 3))
        a("s_waitcnt lgkmcnt(0)")
        for t in range(4):
            a("ds_read_b128 v[%d:%d], v%d offset:%d" % (AF + 4 * t, AF + 4 * t + 3, vG + 53, 64 * t))
        if self.o.get("tsq"): self.ts()
        self.vwait("wq")
        if self.o.get("tsq"): self.ts()
        for nt in range(4):
            a("s_waitcnt lgkmcnt(%d)" % (0 if nt == 0 else 4))
            for t in range(4):
                b = BF + 16 * nt + 4 * t
                a("ds_read_b64_tr_b16 v[%d:%d], v%d offset:%d" % (b, b + 1, vG + 54, L_IMG0 + t * 4096 + nt * 32))
                a("ds_read_b64_tr_b16 v[%d:%d], v%d offset:%d" % (b + 2, b + 3, vG + 54, L_IMG0 + t * 4096 + nt * 32 + 512))
            if nt >= 1:
                a("s_waitcnt lgkmcnt(8)")
                self._q_mfma(nt - 1, AF, BF, DQ)
        a("s_waitcnt lgkmcnt(0)")
        self._q_mfma(3, AF, BF, DQ)
        G = vG + 44
        for nt in range(4):
            g = vO + 4 * nt
            a("v_mov_b32_dpp v%d, v%d quad_perm:[0,0,2,2] row_mask:0xf bank_mask:0xf" % (g, DQ + 4 * nt))
            a("v_mov_b32_dpp v%d, v%d quad_perm:[1,1,3,3] row_mask:0xf bank_mask:0xf" % (g + 2, DQ + 4 * nt))
            a("v_mov_b32 v%d, v%d" % (g + 1, vTagW)); a("v_mov_b32 v%d, s%d" % (g + 3, sT3))
        a("s_mov_b32 exec_lo, 0x55555555"); a("s_mov_b32 exec_hi, 0")
        for nt in range(4):
            g = vO + 4 * nt
            a("buffer_store_dwordx4 v[%d:%d], v%d, s[%d:%d], s%d offen offset:%d" % (g, g + 3, vG + 55, SRD_WS, SRD_WS + 3, sT1, nt * 128))
        for nt in range(4):
            g = vO + 4 * nt
            a("buffer_store_dwordx4 v[%d:%d], v%d, s[%d:%d], s%d offen offset:%d sc1" % (g, g + 3, vG + 55, SRD_WS, SRD_WS + 3, sT0, nt * 128))
        self.vm("pub", 8)
        a("s_mov_b64 exec, -1")

    def _q_mfma(self, nt, AF, BF, DQ):
        for t in range(4):
            b = BF + 16 * nt + 4 * t
            self.a("v_mfma_f32_16x16x32_bf16 v[%d:%d], v[%d:%d], v[%d:%d], %s" % (DQ + 4 * nt, DQ + 4 * nt + 3, AF + 4 * t, AF + 4 * t + 3, b, b + 3, "0" if t == 0 else "v[%d:%d]" % (DQ + 4 * nt, DQ + 4 * nt + 3)))

    def q_pre(self):
        a = self.a
        a("v_add_u32 v%d, %d, v%d" % (vG + 52, L_XN, vG))
        a("v_bfe_u32 v%d, v%d, 2, 1" % (vTmp + 1, vLane)); a("v_lshlrev_b32 v%d, 10, v%d" % (vTmp + 1, vTmp + 1))
        a("v_lshrrev_b32 v%d, 4, v%d" % (vTmp + 2, vLane)); a("v_lshl_add_u32 v%d, v%d, 4, v%d" % (vTmp + 1, vTmp + 2, vTmp + 1))
        a("s_bfe_u32 s%d, s%d, 0x10003" % (sT1, sJ)); a("s_lshl_b32 s%d, s%d, 8" % (sT1, sT1)); a("s_add_u32 s%d, s%d, %d" % (sT1, sT1, L_XN))
        a("v_add_u32 v%d, s%d, v%d" % (vG + 53, sT1, vTmp + 1))
        a("v_bfe_u32 v%d, v%d, 2, 2" % (vTmp + 3, vLane)); a("v_lshl_add_u32 v%d, v%d, 3, v%d" % (vTmp + 3, vTmp + 2, vTmp + 3))
        a("v_lshlrev_b32 v%d, 7, v%d" % (vTmp + 3, vTmp + 3)); a("v_and_b32 v%d, 3, v%d" % (vTmp + 2, vLane))
        a("v_lshl_add_u32 v%d, v%d, 3, v%d" % (vG + 54, vTmp + 2, vTmp + 3))
        a("v_lshrrev_b32 v%d, 4, v%d" % (vTmp, vLane)); a("v_lshlrev_b32 v%d, 12, v%d" % (vTmp, vTmp))
        a("v_and_b32 v%d, 15, v%d" % (vTmp + 1, vLane)); a("v_lshl_add_u32 v%d, v%d, 3, v%d" % (vG + 55, vTmp + 1, vTmp))
        self.tag_consts()
        a("s_lshr_b32 s%d, s%d, 3" % (sT0, sJ)); a("s_lshl_b32 s%d, s%d, 2" % (sT2, sX)); a("s_add_u32 s%d, s%d, s%d" % (sT0, sT0, sT2))
        a("s_lshl_b32 s%d, s%d, 13" % (sT0, sT0)); a("s_and_b32 s%d, s%d, 7" % (sT2, sJ)); a("s_lshl_b32 s%d, s%d, 9" % (sT2, sT2))
        a("s_add_u32 s%d, s%d, s%d" % (sT0, sT0, sT2)); a("s_add_u32 s%d, s%d, %d" % (sT0, sT0, WS_Q))
        a("s_add_u32 s%d, s%d, %d" % (sT1, sT0, WS_QA - WS_Q))
        a("s_and_b32 s%d, s%d, 0xfffffff0" % (sT3, self.sTagW)); a("s_or_b32 s%d, s%d, s%d" % (sT3, sT3, sXcc))

    def q_wait(self):
        a = self.a; o = self.o
        QA = vG + 3; D = vO
        L_QB = L_QP
        a("v_lshlrev_b32 v%d, 4, v%d" % (QA, vLane))
        a("s_lshl_b32 s%d, s%d, 15" % (sT0, sX)); a("s_lshl_b32 s%d, s%d, 12" % (sT1, sB)); a("s_add_u32 s%d, s%d, s%d" % (sT0, sT0, sT1))
        a("s_add_u32 s%d, s%d, %d" % (sSave, sT0, WS_Q))
        a("s_add_u32 s%d, s%d, %d" % (sSave + 1, sT0, WS_QA))
        a("v_mov_b32 v%d, s%d" % (vG + 2, sT3))
        rem = self.bulk[self.bi:]
        pre = o.get("w0pre", 2); sizes = o.get("rounds", [2, 2, 2, 2, 2])
        for (k, t, h) in rem[:pre]: self.load_half(k, t, h)
        if o.get("waitpub", True): a("s_waitcnt vmcnt(%d)" % (4 + 4 * pre))
        rem = rem[pre:]
        rounds = []
        for n in sizes:
            if rem: rounds.append(rem[:n]); rem = rem[n:]
        if rem: rounds.append(rem)
        def poll(local):
            base = sSave + 1 if local else sSave
            for kg in range(4):
                a("s_add_u32 s%d, s%d, %d" % (sT2, base, kg * 8192))
                for u in range(4):
                    d = D + 16 * kg + 4 * u
                    a("buffer_load_dwordx4 v[%d:%d], v%d, s[%d:%d], s%d offen offset:%d %s" % (d, d + 3, QA, SRD_WS, SRD_WS + 3, sT2, u * 1024, (o.get("localpoll", "nt") if local else "sc1")))
        def check(n, stamp=False):
            a("s_waitcnt vmcnt(%d)" % n)
            if stamp: self.ts()
            t0, t1, t2, t3 = vTmp, vTmp + 1, vTmp + 2, vTmp + 3
            a("v_xor_b32 v%d, v%d, v%d" % (t0, D + 1, vTagW)); a("v_xor_b32 v%d, v%d, v%d" % (t1, D + 3, vG + 2))
            for q in range(1, 16):
                a("v_xor_b32 v%d, v%d, v%d" % (t2, D + 4 * q + 1, vTagW)); a("v_xor_b32 v%d, v%d, v%d" % (t3, D + 4 * q + 3, vG + 2))
                a("v_or_b32 v%d, v%d, v%d" % (t0, t0, t2)); a("v_or_b32 v%d, v%d, v%d" % (t1, t1, t3))
            a("v_lshrrev_b32 v%d, 4, v%d" % (t2, t1)); a("v_or_b32 v%d, v%d, v%d" % (t0, t0, t2))
            a("v_cmp_eq_u32 vcc, 0, v%d" % t1); a("s_cmp_eq_u64 vcc, -1"); a("s_cselect_b32 s%d, 1, 0" % sMode)
            a("v_cmp_eq_u32 vcc, 0, v%d" % t0); a("s_cmp_eq_u64 vcc, -1")
        done = [self.lab("qok") for _ in range(len(rounds) + 1)]
        for r, g in enumerate(rounds):
            poll(True)
            n = 0
            for (k, t, h) in g: self.load_half(k, t, h); n += 4
            check(n, stamp=(o.get("tsr") and r < 3))
            a("s_cbranch_scc1 %s" % done[r])
        lp = self.lab("qpoll")
        a("s_mov_b32 s%d, 0" % sCnt)
        a.label(lp)
        for k in range(2):
            poll(k == 0); check(0)
            a("s_cbranch_scc1 %s" % done[-1])
        a("s_add_u32 s%d, s%d, 1" % (sCnt, sCnt)); a("s_cmp_lt_u32 s%d, %d" % (sCnt, o["spin"])); a("s_cbranch_scc1 %s" % lp)
        a("s_mov_b32 s%d, 2" % sMode)
        a("s_branch %s" % done[-1])
        for r in range(len(rounds)):
            a.label(done[r])
            if r + 1 < len(rounds):
                pass
            a("s_mov_b32 s%d, %d" % (sT3, r + 1)); a("s_branch L_qsum")
        a.label(done[-1])
        a("s_mov_b32 s%d, %d" % (sT3, len(rounds)))
        a.label("L_qsum")
        if o.get("tss"):
            self.ts(); i = self.ts_slot(); a("s_mul_i32 s%d, s%d, 100" % (sTS + i, sT3))
        for u in range(4):
            for e in (0, 2):
                d = D + 4 * u + e
                a("v_add_f32 v%d, v%d, v%d" % (d, d, d + 16)); a("v_add_f32 v%d, v%d, v%d" % (d + 32, d + 32, d + 48))
        for u in range(4):
            for e in (0, 2):
                d = D + 4 * u + e
                a("v_add_f32 v%d, v%d, v%d" % (d, d, d + 32))
        a("v_lshlrev_b32 v%d, 2, v%d" % (vTmp, vLane))
        for u in range(4):
            a("v_cvt_pk_bf16_f32 v%d, v%d, v%d" % (D + 4 * u, D + 4 * u, D + 4 * u + 2))
            a("ds_write_b32 v%d, v%d offset:%d" % (vTmp, D + 4 * u, L_QB + 256 * u))
        if not o["local"]:
            a("s_and_b32 s%d, s%d, 2" % (sMode, sMode))
        a("v_mov_b32 v%d, s%d" % (vTmp + 1, sMode))
        a("ds_write_b32 v%d, v%d offset:%d" % (vTmp, vTmp + 1, L_QB + 1024))
        self.rounds = rounds
        if o.get("rem_before", False):
            for r in range(1, len(rounds)):
                l = self.lab("rb")
                a("s_cmp_gt_u32 s%d, %d" % (sT3, r)); a("s_cbranch_scc1 %s" % l)
                for (k, t, h) in rounds[r]: self.load_half(k, t, h)
                a.label(l)
            self.rounds = rounds[:1]
        a("s_waitcnt lgkmcnt(0)")

    def q_join(self):
        a = self.a
        L_QB = L_QP
        a("v_bfe_u32 v%d, v%d, 2, 2" % (vTmp, vLane)); a("v_lshlrev_b32 v%d, 4, v%d" % (vTmp, vTmp))
        a("v_lshrrev_b32 v%d, 4, v%d" % (vTmp + 1, vLane)); a("v_lshl_add_u32 v%d, v%d, 2, v%d" % (vTmp, vTmp + 1, vTmp))
        a("v_and_b32 v%d, 3, v%d" % (vTmp + 1, vLane)); a("v_add_u32 v%d, v%d, v%d" % (vTmp, vTmp, vTmp + 1))
        a("v_lshlrev_b32 v%d, 4, v%d" % (vTmp, vTmp)); a("v_mov_b32 v%d, 0" % (vTmp + 1))
        a("s_barrier")
        a("ds_read_b128 v[%d:%d], v%d offset:%d" % (vQ, vQ + 3, vTmp, L_QB))
        a("ds_read_b32 v%d, v%d offset:%d" % (vTmp + 2, vTmp + 1, L_QB + 1024))
        a("v_mov_b32 v%d, 0xff800000" % vM); a("v_mov_b32 v%d, 0" % vL)
        for i in range(32): a("v_mov_b32 v%d, 0" % (vO + i))
        a("s_waitcnt lgkmcnt(0)")
        a("v_readfirstlane_b32 s%d, v%d" % (sMode, vTmp + 2))
        a("s_cmp_eq_u32 s%d, 2" % sMode); a("s_cbranch_scc1 L_fail")
        lab = self.lab("nw0")
        a("s_cmp_lg_u32 s%d, 0" % sWave); a("s_cbranch_scc1 %s" % lab)
        for r in range(1, len(self.rounds)):
            l = self.lab("rb")
            a("s_cmp_gt_u32 s%d, %d" % (sT3, r)); a("s_cbranch_scc1 %s" % l)
            for (k, t, h) in self.rounds[r]: self.load_half(k, t, h)
            a.label(l)
        a.label(lab)

    def qwait(self, tag):
        idx = self.sq.index(tag)
        n = len(self.sq) - 1 - idx
        assert n <= 63
        self.a("s_waitcnt vmcnt(%d)" % n)

    def set_soff(self, t):
        a = self.a
        a("s_add_u32 s%d, s%d, %d" % (sOffA, sRot, 2 * t)); a("s_add_u32 s%d, s%d, %d" % (sOffB, sRot, 2 * t + 1))
        a("s_and_b32 s%d, s%d, 15" % (sOffA, sOffA)); a("s_and_b32 s%d, s%d, 15" % (sOffB, sOffB))
        a("s_lshl_b32 s%d, s%d, 12" % (sOffA, sOffA)); a("s_lshl_b32 s%d, s%d, 12" % (sOffB, sOffB))

    def tile(self, t, hook=None, qkhook=None):
        a = self.a
        st = t % self.NS
        aK = aKS[st]; vV = vVS[st]
        nt = self.o["ntflag"]
        tn = self.plan.get(t)
        refill = tn is not None
        if refill:
            assert tn % self.NS == st or tn - self.NS < t, (t, tn)
            assert tn - self.NS <= t
        nocomp = self.o.get("nocompute")
        if refill: self.set_soff(tn)
        for i in range(8):
            self.qwait(("K", t, i))
            if not nocomp:
                a("v_mfma_f32_16x16x32_bf16 v[%d:%d], a[%d:%d], v[%d:%d], 0" % (vS + 4 * i, vS + 4 * i + 3, aK + 4 * i, aK + 4 * i + 3, vQ, vQ + 3))
            if refill:
                so = sOffA if i < 4 else sOffB
                aN = aKS[tn % self.NS]
                a("buffer_load_dwordx4 a[%d:%d], v%d, s[%d:%d], s%d offen offset:%d %s" % (aN + 4 * i, aN + 4 * i + 3, vOffK, SRD_K, SRD_K + 3, so, (i & 3) * 1024, nt))
                self.sq.append(("K", tn, i))
        if qkhook: qkhook()
        if not nocomp: self.softmax_a(wgmax=(t == 7))
        for p in range(4):
            self.qwait(("V", t, 2 * p + 1))
            if not nocomp:
                for j in range(8):
                    a("v_perm_b32 v%d, v%d, v%d, s%d" % (vS + 4 * j + p, vV + 4 * (2 * p + 1) + (j >> 1), vV + 4 * (2 * p) + (j >> 1), sSelHi if j & 1 else sSelLo))
            if refill:
                for i in (2 * p, 2 * p + 1):
                    so = sOffA if i < 4 else sOffB
                    vN = vVS[tn % self.NS]
                    a("buffer_load_dwordx4 v[%d:%d], v%d, s[%d:%d], s%d offen offset:%d %s" % (vN + 4 * i, vN + 4 * i + 3, vOffV, SRD_V, SRD_V + 3, so, (i & 3) * 1024, nt))
                    self.sq.append(("V", tn, i))
        if hook: hook()
        if not nocomp: self.softmax_b()

    def softmax_a(self, wgmax=False):
        a = self.a
        for i in range(8): a("v_mov_b32_dpp v%d, v%d quad_perm:[0,0,0,0] row_mask:0xf bank_mask:0xf" % (vT + i, vS + 4 * i))
        for c in range(1, 4):
            for i in range(8):
                a("v_add_f32_dpp v%d, v%d, v%d quad_perm:[%d,%d,%d,%d] row_mask:0xf bank_mask:0xf" % (vT + i, vS + 4 * i + c, vT + i, c, c, c, c))
        for p in range(4): a("v_cvt_pk_bf16_f32 v%d, v%d, v%d" % (vP + p, vT + 2 * p, vT + 2 * p + 1))
        for p in range(4):
            a("v_lshlrev_b32 v%d, 16, v%d" % (vU + 2 * p, vP + p)); a("v_and_b32 v%d, 0xffff0000, v%d" % (vU + 2 * p + 1, vP + p))
        for p in range(4): a("v_pk_mul_f32 v[%d:%d], v[%d:%d], s[%d:%d]" % (vU + 2 * p, vU + 2 * p + 1, vU + 2 * p, vU + 2 * p + 1, sScale, sScale + 1))
        for p in range(4): a("v_cvt_pk_bf16_f32 v%d, v%d, v%d" % (vP + p, vU + 2 * p, vU + 2 * p + 1))
        for p in range(4):
            a("v_lshlrev_b32 v%d, 16, v%d" % (vT + 2 * p, vP + p)); a("v_and_b32 v%d, 0xffff0000, v%d" % (vT + 2 * p + 1, vP + p))
        t0, t1 = vTmp, vTmp + 1
        a("v_max3_f32 v%d, v%d, v%d, v%d" % (t0, vT, vT + 1, vT + 2)); a("v_max3_f32 v%d, v%d, v%d, v%d" % (t1, vT + 3, vT + 4, vT + 5))
        a("v_max3_f32 v%d, v%d, v%d, v%d" % (t0, t0, vT + 6, vT + 7)); a("v_max_f32 v%d, v%d, v%d" % (t0, t0, t1))
        self.allred_x16("v_max_f32", t0, t1); self.allred_x32("v_max_f32", t0, t1)
        a("v_max_f32 v%d, v%d, v%d" % (t0, t0, vM))
        if wgmax:
            a("s_mov_b64 exec, 0x1111")
            a("ds_write_b32 v%d, v%d offset:%d" % (vCA + 1, t0, L_CML))
            a("s_mov_b64 exec, -1")
            a("s_waitcnt lgkmcnt(0)")
            a("s_barrier")
            a("ds_read_b128 v[%d:%d], v%d offset:%d" % (vU, vU + 3, vCA + 2, L_CML))
            a("s_waitcnt lgkmcnt(0)")
            a("v_max3_f32 v%d, v%d, v%d, v%d" % (t0, vU, vU + 1, vU + 2)); a("v_max_f32 v%d, v%d, v%d" % (t0, t0, vU + 3))
        a("v_sub_f32 v%d, v%d, v%d" % (vAl, vM, t0)); a("v_mul_f32 v%d, s%d, v%d" % (vAl, sLog2e, vAl))
        a("v_mov_b32 v%d, v%d" % (vM, t0))
        a("v_mul_f32 v%d, s%d, v%d" % (t1, sLog2e, t0))
        a("v_exp_f32 v%d, v%d" % (vAl, vAl))
        for i in range(8): a("v_fma_f32 v%d, v%d, s%d, -v%d" % (vU + i, vT + i, sLog2e, t1))
        for i in range(8): a("v_exp_f32 v%d, v%d" % (vU + i, vU + i))
        for p in range(4): a("v_cvt_pk_bf16_f32 v%d, v%d, v%d" % (vP + p, vU + 2 * p, vU + 2 * p + 1))
        a("v_pk_add_f32 v[%d:%d], v[%d:%d], v[%d:%d]" % (vU, vU + 1, vU, vU + 1, vU + 2, vU + 3))
        a("v_pk_add_f32 v[%d:%d], v[%d:%d], v[%d:%d]" % (vU + 4, vU + 5, vU + 4, vU + 5, vU + 6, vU + 7))
        a("v_pk_add_f32 v[%d:%d], v[%d:%d], v[%d:%d]" % (vU, vU + 1, vU, vU + 1, vU + 4, vU + 5))
        a("v_fma_f32 v%d, v%d, v%d, v%d" % (vL, vL, vAl, vU)); a("v_add_f32 v%d, v%d, v%d" % (vL, vL, vU + 1))
        for i in range(16):
            a("v_pk_mul_f32 v[%d:%d], v[%d:%d], v[%d:%d] op_sel_hi:[1,0]" % (vO + 2 * i, vO + 2 * i + 1, vO + 2 * i, vO + 2 * i + 1, vAl, vAl + 1))
        if wgmax:
            self.allred_x16("v_add_f32", vL, t0); self.allred_x32("v_add_f32", vL, t0)
            a("s_mov_b64 exec, 0x1111")
            a("ds_write_b32 v%d, v%d offset:%d" % (vCA + 1, vL, L_CML + 64))
            a("s_mov_b64 exec, -1")

    def softmax_b(self):
        a = self.a
        for j in range(8):
            a("v_mfma_f32_16x16x32_bf16 v[%d:%d], v[%d:%d], v[%d:%d], v[%d:%d]" % (vO + 4 * j, vO + 4 * j + 3, vS + 4 * j, vS + 4 * j + 3, vP, vP + 3, vO + 4 * j, vO + 4 * j + 3))

    def stream(self, weights_hook=None, touch_hook=None, nextra=0):
        o = self.o
        if o.get("plan_even") is not None:
            l1 = self.lab("sodd"); l2 = self.lab("sjoin")
            self.a("s_bitcmp1_b32 s%d, 0" % sX); self.a("s_cbranch_scc1 %s" % l1)
            self._stream(o["plan_even"], weights_hook, touch_hook, nextra, o.get("thr_even", 0))
            self.a("s_branch %s" % l2)
            self.a.label(l1)
            n = self.nts
            self._stream(o.get("plan"), weights_hook, touch_hook, nextra, 0)
            self.a.label(l2)
        else:
            self._stream(o.get("plan"), weights_hook, touch_hook, nextra, 0)

    def _stream(self, plan, weights_hook, touch_hook, nextra, thr):
        self.sq = [(k, t, i) for t in range(self.NS) for k in "KV" for i in range(8)] + [("X", 0, i) for i in range(nextra)]
        self.thr = thr
        if plan is None:
            plan = {3: [(0, 3), (1, 4), (3, 5), (5, 6), (6, 7)], 2: [(0, 2), (1, 3), (2, 4), (3, 5), (5, 6), (6, 7)]}[self.NS]
        self.plan = dict((int(x), int(y)) for x, y in plan)
        assert sorted(self.plan.values()) == list(range(self.NS, 8))
        last = [t for t, u in self.plan.items() if u == 7][0]
        for t in range(8):
            hook = None; qkhook = None
            if t == last and self.o.get("endbar"):
                hook = lambda: self.a("s_barrier")
            if t == 7: qkhook = weights_hook
            if t == self.o.get("touch_tile", 5) and touch_hook: qkhook = touch_hook
            if t in self.o.get("tilebar", []): self.a("s_barrier")
            self.tile(t, hook, qkhook)

    def comb_pre(self):
        a = self.a
        t0, t1 = vTmp, vTmp + 1
        a("v_bfe_u32 v%d, v%d, 2, 2" % (t0, vLane)); a("v_lshlrev_b32 v%d, 9, v%d" % (vCA, t0))
        a("v_lshrrev_b32 v%d, 4, v%d" % (t1, vLane)); a("v_lshl_add_u32 v%d, v%d, 7, v%d" % (vCA, t1, vCA))
        a("s_lshl_b32 s%d, s%d, 11" % (sT0, sWave)); a("v_add_u32 v%d, s%d, v%d" % (vCA, sT0, vCA))
        a("v_lshlrev_b32 v%d, 4, v%d" % (vCA + 2, t0))
        a("s_lshl_b32 s%d, s%d, 2" % (sT0, sWave)); a("v_add_u32 v%d, s%d, v%d" % (vCA + 1, sT0, vCA + 2))
        a("v_lshlrev_b32 v%d, 4, v0" % (vCA + 3))
        a("v_lshrrev_b32 v%d, 5, v0" % t1); a("v_lshlrev_b32 v%d, 4, v%d" % (vCA + 4, t1))
        a("s_lshl_b32 s%d, s%d, 11" % (sPO, sP)); a("s_add_u32 s%d, s%d, %d" % (sPO, sPO, WS_PO))
        a("s_lshl_b32 s%d, s%d, 7" % (sPML, sP)); a("s_add_u32 s%d, s%d, %d" % (sPML, sPML, WS_PML))

    def wg_combine(self):
        a = self.a
        a("s_mov_b32 s%d, 0x11111111" % sMsk); a("s_mov_b32 s%d, 0x11111111" % (sMsk + 1))
        a("s_mov_b64 exec, s[%d:%d]" % (sMsk, sMsk + 1))
        for j in range(8):
            a("ds_write_b128 v%d, v[%d:%d] offset:%d" % (vCA, vO + 4 * j, vO + 4 * j + 3, L_CO + 16 * j))
        a("s_mov_b64 exec, -1")
        a("s_waitcnt lgkmcnt(0)")
        a("s_barrier")
        lab = self.lab("nocomb")
        a("s_cmp_ge_u32 s%d, 2" % sWave); a("s_cbranch_scc1 %s" % lab)
        R = vVS[0]
        for w in range(4):
            a("ds_read_b128 v[%d:%d], v%d offset:%d" % (R + 4 * w, R + 3 + 4 * w, vCA + 3, L_CO + 2048 * w))
        a("ds_read_b128 v[%d:%d], v%d offset:%d" % (R + 16, R + 19, vCA + 4, L_CML))
        a("ds_read_b128 v[%d:%d], v%d offset:%d" % (R + 20, R + 23, vCA + 4, L_CML + 64))
        a("s_waitcnt lgkmcnt(4)")
        for e in (0, 2): a("v_pk_add_f32 v[%d:%d], v[%d:%d], v[%d:%d]" % (R + e, R + e + 1, R + e, R + e + 1, R + 4 + e, R + 5 + e))
        a("s_waitcnt lgkmcnt(2)")
        for e in (0, 2): a("v_pk_add_f32 v[%d:%d], v[%d:%d], v[%d:%d]" % (R + 8 + e, R + 9 + e, R + 8 + e, R + 9 + e, R + 12 + e, R + 13 + e))
        for e in (0, 2): a("v_pk_add_f32 v[%d:%d], v[%d:%d], v[%d:%d]" % (R + e, R + e + 1, R + e, R + e + 1, R + 8 + e, R + 9 + e))
        G = R + 24
        self.tag4(G, [R, R + 1, R + 2, R + 3])
        a("s_waitcnt lgkmcnt(0)")
        Mx, Ls = R + 16, R + 20
        a("v_max3_f32 v%d, v%d, v%d, v%d" % (Mx, Mx, Mx + 1, Mx + 2)); a("v_pk_add_f32 v[%d:%d], v[%d:%d], v[%d:%d]" % (Ls, Ls + 1, Ls, Ls + 1, Ls + 2, Ls + 3))
        a("v_max_f32 v%d, v%d, v%d" % (Mx, Mx, Mx + 3)); a("v_add_f32 v%d, v%d, v%d" % (Ls, Ls, Ls + 1))
        self.tag4(G + 4, [Mx, Ls, Mx, Ls])
        def stores(fl):
            a("buffer_store_dwordx4 v[%d:%d], v%d, s[%d:%d], s%d offen %s" % (G, G + 3, vCA + 3, SRD_WS, SRD_WS + 3, sPO, fl))
            a("s_mov_b32 s%d, 1" % sMsk); a("s_mov_b32 s%d, 1" % (sMsk + 1)); a("s_mov_b64 exec, s[%d:%d]" % (sMsk, sMsk + 1))
            a("buffer_store_dwordx4 v[%d:%d], v%d, s[%d:%d], s%d offen %s" % (G + 4, G + 7, vCA + 4, SRD_WS, SRD_WS + 3, sPML, fl))
            a("s_mov_b64 exec, -1")
        self.by_mode(stores)
        a.label(lab)

    def by_mode(self, fn):
        a = self.a
        l1 = self.lab("m1"); l2 = self.lab("m2")
        a("s_cmp_eq_u32 s%d, 0" % sMode); a("s_cbranch_scc1 %s" % l1)
        fn(""); a("s_branch %s" % l2)
        a.label(l1); fn("sc1"); a.label(l2)

    def epilogue(self):
        a = self.a
        a.label("L_fail")
        a.label("L_done")
        a("s_mov_b64 exec, -1")
        if self.o["ts"]:
            self.ts("end")
            a("s_lshl_b32 s%d, s2, 2" % sT0); a("s_add_u32 s%d, s%d, s%d" % (sT0, sT0, sWave)); a("s_lshl_b32 s%d, s%d, 6" % (sT0, sT0))
            a("s_add_u32 s%d, s%d, %d" % (sT0, sT0, WS_TS))
            a("v_mov_b32 v%d, 0" % vTmp)
            for i in range(self.nts):
                a("v_writelane_b32 v%d, s%d, %d" % (vTmp, sTS + i, i))
            a("v_writelane_b32 v%d, s%d, 15" % (vTmp, sXcc))
            a("v_lshlrev_b32 v%d, 2, v%d" % (vTmp + 1, vLane))
            a("s_mov_b64 exec, 0xffff")
            a("buffer_store_dword v%d, v%d, s[%d:%d], s%d offen" % (vTmp, vTmp + 1, SRD_WS, SRD_WS + 3, sT0))
            if self.o.get("dbgts"):
                l = self.lab("nodbg")
                a("s_lshl_b32 s%d, s2, 2" % sT0); a("s_add_u32 s%d, s%d, s%d" % (sT0, sT0, sWave)); a("s_cmp_lg_u32 s%d, %d" % (sT0, self.o["dbgts"] - 1)); a("s_cbranch_scc1 %s" % l)
                self.make_srd(SRD_W3, sPDBG, 256)
                a("v_subrev_u32 v%d, s%d, v%d" % (vTmp, sTS, vTmp))
                a("buffer_store_dword v%d, v%d, s[%d:%d], 0 offen" % (vTmp, vTmp + 1, SRD_W3, SRD_W3 + 3))
                a.label(l)
        a("s_waitcnt vmcnt(0)")
        a.label("L_end")
        a("s_endpgm")

    def build(self):
        o = self.o
        self.prologue()
        a = self.a
        if o.get("noq"):
            l = self.lab("nq"); l2 = self.lab("nq2")
            a("s_cmp_lg_u32 s%d, 0" % sWave); a("s_cbranch_scc1 %s" % l)
            for (k, t, h) in self.bulk[:self.early]: self.load_half(k, t, h)
            a.label(l)
            for (k, t, h) in self.bulk[self.early:]: self.load_half(k, t, h)
            a("s_mov_b32 s%d, 0" % sMode); a("v_mov_b32 v%d, 0" % vTagW)
            self.ts(); self.ts()
        else:
            if o.get("prio0"):
                l = self.lab("pr"); a("s_cmp_lg_u32 s%d, 0" % sWave); a("s_cbranch_scc1 %s" % l); a("s_setprio 3"); a.label(l)
            a("s_cmp_lg_u32 s%d, 0" % sWave); a("s_cbranch_scc1 L_helper")
            self.issue_bulk(o.get("w0start", 0))
            self.q_pre()
            self.ln_x()
            self.q_slice()
            self.ts("qpub")
            self.q_wait()
            a("s_branch L_qjoin")
            a.label("L_helper")
            self.helper_startup()
            a.label("L_qjoin")
            self.q_join()
            self.ts("qjoin")
        import tail
        tail.emit(self)
        self.epilogue()
        n = self.a.fix_hazards()
        head = ["; generated by gen.py (hand-written generator) ; hazard nops inserted: %d" % n,
                "; @launch grid=(256,1,1) block=(256,1,1) lds=%d" % LDS_SIZE,
                '.amdgcn_target "amdgcn-amd-amdhsa--gfx950"', ".text", ".globl %s" % NAME, ".p2align 8",
                ".type %s,@function" % NAME, "%s:" % NAME]
        tailtxt = ['.section .rodata,"a"', ".p2align 6", ".amdhsa_kernel %s" % NAME,
                   "  .amdhsa_next_free_vgpr 512", "  .amdhsa_next_free_sgpr 102", "  .amdhsa_accum_offset 256",
                   "  .amdhsa_group_segment_fixed_size 0", "  .amdhsa_kernarg_size 96", "  .amdhsa_user_sgpr_count 2",
                   "  .amdhsa_user_sgpr_kernarg_segment_ptr 1", "  .amdhsa_system_sgpr_workgroup_id_x 1",
                   ".end_amdhsa_kernel"]
        return "\n".join(head) + "\n" + self.a.text() + "\n".join(tailtxt) + "\n"

if __name__ == "__main__":
    import json
    opt = json.loads(sys.argv[1]) if len(sys.argv) > 1 else {}
    g = Gen(**opt)
    print(g.build())
```
